```python
import torch

def _softmax(x, axis=-1):
    return torch.softmax(x, dim=axis)
def _gelu(x):
    return torch.nn.functional.gelu(x, approximate="tanh")
def _silu(x):
    return torch.nn.functional.silu(x)
def _sigmoid(x):
    return torch.sigmoid(x)
def _layernorm(x, axis=-1, eps=1e-5):
    m = x.mean(dim=axis, keepdim=True)
    v = x.var(dim=axis, keepdim=True, unbiased=False)
    return (x - m) / torch.sqrt(v + eps)
def _scatter_add(tgt, idx, src, axis=0):
    return tgt.clone().index_add_(axis, idx, src)
def _segment_sum(src, seg, n):
    out = torch.zeros((n,) + src.shape[1:], dtype=src.dtype)
    return out.index_add_(0, seg, src)
def _pad(x, pw):
    flat = tuple(v for pair in reversed(pw) for v in pair)
    return torch.nn.functional.pad(x, flat)

kernel_name = 'gated_mix__gqa_block_cached__geglu_ffn__decode'

def setup_inputs():

    _w = (lambda a: (lambda t: t.to(torch.bfloat16) if t.is_floating_point() else t)(torch.as_tensor(a)))
    def _A_setup():
        B, Sq, D = 8, 1, 512
        Hq, Hkv, Sk, Dh = 32, 8, 8192, 128
        assert Hq % Hkv == 0, (Hq, Hkv)
        return {
            "x": _w((lambda *s: torch.randn(*s, dtype=torch.bfloat16) * 0.05)(B, Sq, D)),
            "k_cache": _w((lambda *s: torch.randn(*s, dtype=torch.bfloat16) * 6.4)(B, Hkv, Sk, Dh)),
            "v_cache": _w((lambda *s: torch.randn(*s, dtype=torch.bfloat16) * 0.2)(B, Hkv, Sk, Dh)),
            "wq": _w((lambda *s: torch.randn(*s, dtype=torch.bfloat16) * 6.4)(D, Hq * Dh) * (D ** -0.5)),
            "wo": _w((lambda *s: torch.randn(*s, dtype=torch.bfloat16) * 0.2)(Hq * Dh, D) * ((Hq * Dh) ** -0.5)),
        }
    _A_in = _A_setup()

    def _B_setup():
        B, S, D, F = 8, 1, 512, 1792
        return {
            "x": _w((lambda *s: torch.randn(*s, dtype=torch.bfloat16) * 0.05)(B, S, D)),
            "w_gate": _w((lambda *s: torch.randn(*s, dtype=torch.bfloat16) * 0.05)(D, F)),
            "w_up": _w((lambda *s: torch.randn(*s, dtype=torch.bfloat16) * 0.05)(D, F)),
            "w_down": _w((lambda *s: torch.randn(*s, dtype=torch.bfloat16) * 0.05)(F, D)),
        }
    _B_in = _B_setup()

    return {
        "A_x": _A_in["x"],
        "A_k_cache": _A_in["k_cache"],
        "A_v_cache": _A_in["v_cache"],
        "A_wq": _A_in["wq"],
        "A_wo": _A_in["wo"],
        "B_x": _B_in["x"],
        "B_w_gate": _B_in["w_gate"],
        "B_w_up": _B_in["w_up"],
        "B_w_down": _B_in["w_down"],
        "gate_w": _w((lambda *s: torch.randn(*s, dtype=torch.bfloat16) * 0.05)(512) * 16.0),
    }

def reference(A_x, A_k_cache, A_v_cache, A_wq, A_wo, B_x, B_w_gate, B_w_up, B_w_down, gate_w):
    def _A_ref(x, k_cache, v_cache, wq, wo):
        B, Sq, D = x.shape
        Hq, Dh = 32, 128
        Hkv = k_cache.shape[1]
        rep = Hq // Hkv
        q = (lambda x, *d: x.permute(*d))((x @ wq).reshape(B, Sq, Hq, Dh), 0, 2, 1, 3)
        k = (lambda x, n, axis: torch.repeat_interleave(x, n, dim=axis))(k_cache, rep, axis=1)
        v = (lambda x, n, axis: torch.repeat_interleave(x, n, dim=axis))(v_cache, rep, axis=1)
        scores = torch.einsum("bhqd,bhkd->bhqk", q, k) * (Dh ** -0.5)
        p = _softmax(scores, axis=-1)
        o = torch.einsum("bhqk,bhkd->bhqd", p, v)
        return (lambda x, *d: x.permute(*d))(o, 0, 2, 1, 3).reshape(B, Sq, Hq * Dh) @ wo

    def _B_ref(x, w_gate, w_up, w_down):
        return (_gelu(x @ w_gate) * (x @ w_up)) @ w_down

    x = A_x
    g = _sigmoid((x * gate_w).sum(-1, keepdims=True))
    a = _A_ref(x, A_k_cache, A_v_cache, A_wq, A_wo)
    b = _B_ref(x, B_w_gate, B_w_up, B_w_down)
    return g * a + (1 - g) * b
```

```python
import sys

KN = "gated_mix__gqa_block_cached__geglu_ffn__decode_kernel"

WS_EPOCH = 0
WS_QG = 0x10000
WS_HG = 0x50000
WS_REC = 0x80000
REC_STRIDE = 2176
REC_HEAD = 544
WS_SIZE = 0x200000

L_RING = 0
L_H = 131072
L_STA = L_H
L_STB = L_H + 16384
L_QBUF = L_H
L_ZERO = L_H + 1024
L_ML = L_H + 1280
L_RED = L_H + 1536
L_HST = L_H + 4096
L_OBUF = 16384
LDS_TOTAL = 163840

SENT = 0xFFFFFFFF

WPOL = "nt"
WPOL2 = ""


class G:
    def __init__(self):
        self.o = []
    def __call__(self, s):
        self.o.append("    " + s)
    def label(self, s):
        self.o.append(s + ":")
    def c(self, s):
        self.o.append("    ; " + s)
    def srd(self, d, p, nbytes):
        self(f"s_mov_b32 s{d}, s{p}")
        self(f"s_and_b32 s{d+1}, s{p+1}, 0xffff")
        self(f"s_mov_b32 s{d+2}, {nbytes:#x}")
        self(f"s_mov_b32 s{d+3}, 0x20000")


def vr(a, n=1):
    return f"v{a}" if n == 1 else f"v[{a}:{a+n-1}]"
def ar(a, n=1):
    return f"a{a}" if n == 1 else f"a[{a}:{a+n-1}]"
def sr(a, n=1):
    return f"s{a}" if n == 1 else f"s[{a}:{a+n-1}]"


def gen(dbg=0):
    g = G()
    g.o.append(f"; @launch grid=(256,1,1) block=(512,1,1) lds={LDS_TOTAL}")
    g.o.append('.amdgcn_target "amdgcn-amd-amdhsa--gfx950"')
    g.o.append(".text")
    g.o.append(f".globl {KN}")
    g.o.append(".p2align 8")
    g.o.append(f".type {KN},@function")
    g.label(KN)
    P_X, P_K, P_V, P_WQ, P_WO, P_WG, P_WU, P_WD, P_GW, P_OUT, P_DBG, P_WS = 32, 34, 36, 38, 40, 44, 46, 48, 50, 52, 54, 56
    sWAVE, sHKV, sR, sB, sSPLIT = 3, 4, 5, 6, 7
    sKs, sVs, sWSs = 8, 12, 16
    g("s_cmp_ge_u32 s2, 256")
    g("s_cbranch_scc1 L_end")
    g("s_load_dwordx16 s[32:47], s[0:1], 0")
    g("s_load_dwordx8 s[48:55], s[0:1], 64")
    g("s_load_dwordx2 s[56:57], s[0:1], 96")
    g("v_lshrrev_b32 v1, 6, v0")
    g("v_and_b32 v0, 63, v0")
    g(f"v_readfirstlane_b32 s{sWAVE}, v1")
    g(f"s_and_b32 s{sHKV}, s2, 7")
    g(f"s_lshr_b32 s{sR}, s2, 3")
    g(f"s_lshr_b32 s{sB}, s{sR}, 2")
    g(f"s_and_b32 s{sSPLIT}, s{sR}, 3")
    g(f"s_cmp_ge_u32 s{sWAVE}, 4")
    g("s_cbranch_scc1 L_H")

    vKoff, vVoff, vKrd, vVrd = 2, 6, 8, 12
    vM, vL = 20, 21
    vD = 24
    vP01, vP23 = 28, 32
    vT = 36
    vF = 48
    vAcc = 80
    sT, sNext, sRK, sRV, sTmp, sCnt, sLog2e, sScale, sThr = 20, 21, 22, 23, 24, 25, 26, 27, 28
    g.c("---- S wave setup ----")
    g("v_and_b32 v44, 15, v0")
    g("v_lshrrev_b32 v45, 4, v0")
    for i in range(4):
        g(f"v_add_u32 v46, {4*i}, v45")
        g("v_xor_b32 v46, v44, v46")
        g("v_lshlrev_b32 v46, 4, v46")
        g(f"v_lshl_add_u32 v{vKoff+i}, v45, 8, v46")
    for i in range(2):
        g(f"v_add_u32 v46, {4*i}, v45")
        g("v_lshlrev_b32 v46, 1, v46")
        g("v_xor_b32 v46, v44, v46")
        g("v_lshlrev_b32 v46, 4, v46")
        g(f"v_lshl_add_u32 v{vVoff+i}, v45, 8, v46")
    g(f"s_lshl_b32 s{sRK}, s{sWAVE}, 15")
    g(f"s_add_u32 s{sRV}, s{sRK}, 16384")
    g(f"s_lshl_b32 s{sT}, s{sB}, 3")
    g(f"s_add_u32 s{sT}, s{sT}, s{sHKV}")
    g(f"s_lshl_b32 s{sT}, s{sT}, 21")
    g(f"s_lshl_b32 s{sTmp}, s{sSPLIT}, 19")
    g(f"s_add_u32 s{sT}, s{sT}, s{sTmp}")
    g(f"s_lshl_b32 s{sTmp}, s{sWAVE}, 14")
    g(f"s_add_u32 s{sT}, s{sT}, s{sTmp}")
    g("s_waitcnt lgkmcnt(0)")
    g.srd(sKs, P_K, 0x8000000)
    g.srd(sVs, P_V, 0x8000000)

    def dmaK(j, sbase):
        g(f"s_add_u32 m0, s{sRK}, {j*4096}")
        g(f"s_add_u32 s{sTmp}, s{sbase}, {j*4096}")
        for i in range(4):
            g(f"buffer_load_dwordx4 v{vKoff+i}, s[{sKs}:{sKs+3}], s{sTmp} offen offset:{i*1024} nt lds")
    def dmaV(j, sbase):
        g(f"s_add_u32 m0, s{sRV}, {j*4096}")
        g(f"s_add_u32 s{sTmp}, s{sbase}, {j*4096}")
        for i in range(4):
            g(f"buffer_load_dwordx4 v{vVoff+(i&1)}, s[{sVs}:{sVs+3}], s{sTmp} offen offset:{i*1024} nt lds")
    for j in range(4):
        dmaK(j, sT)
    for j in range(4):
        dmaV(j, sT)
    g.srd(sWSs, P_WS, WS_SIZE)
    for c in range(4):
        g(f"v_add_u32 v46, {4*c}, v45")
        g("v_xor_b32 v46, v44, v46")
        g("v_lshlrev_b32 v46, 4, v46")
        g("v_lshl_add_u32 v46, v44, 8, v46")
        g(f"v_add_u32 v{vKrd+c}, s{sRK}, v46")
    g("v_lshrrev_b32 v46, 2, v0")
    g("v_and_b32 v47, 7, v46")
    g("v_lshlrev_b32 v46, 8, v46")
    g("v_and_b32 v43, 3, v0")
    g("v_lshl_add_u32 v46, v43, 3, v46")
    g(f"v_add_u32 v46, s{sRV}, v46")
    for db in range(8):
        g(f"v_xor_b32 v43, {db}, v47")
        g(f"v_lshl_add_u32 v{vVrd+db}, v43, 5, v46")
    g("v_and_b32 v43, 3, v0")
    g("v_lshlrev_b32 v43, 8, v43")
    g("v_lshl_add_u32 v43, v45, 4, v43")
    g(f"v_add_u32 v43, {L_QBUF}, v43")
    g("v_lshrrev_b32 v42, 2, v44")
    g(f"v_mov_b32 v41, {L_ZERO}")
    for j in range(4):
        g(f"v_cmp_eq_u32 vcc, {j}, v42")
        g("s_nop 1")
        g(f"v_cndmask_b32 v{vT+j}, v41, v43, vcc")
    g(f"v_mov_b32 v{vM}, 0xff800000")
    g(f"v_mov_b32 v{vL}, 0")
    for i in range(32):
        g(f"v_mov_b32 v{vAcc+i}, 0")
    g(f"s_mov_b32 s{sLog2e}, 0x3fb8aa3b")
    g(f"s_mov_b32 s{sScale}, 0x3db504f3")
    g(f"s_mov_b32 s{sThr}, 0x41000000")
    g(f"s_mov_b32 s{sCnt}, 0")
    g.c("barrier 1: q in LDS")
    g("s_barrier")
    for j in range(4):
        for c in range(4):
            g(f"ds_read_b128 {ar(16*j+4*c,4)}, v{vT+j} offset:{c*64}")
    g("s_waitcnt lgkmcnt(0)")

    g.label("L_tile")
    g(f"s_add_u32 s{sNext}, s{sT}, 65536")
    g(f"s_cmp_lt_u32 s{sCnt}, 7")
    g(f"s_cselect_b32 s{sNext}, s{sNext}, 0x80000000")
    for j in range(4):
        g("s_waitcnt vmcnt(28)")
        for c in range(4):
            g(f"ds_read_b128 {vr(vF+16*(j&1)+4*c,4)}, v{vKrd+c} offset:{j*4096}")
        g("s_waitcnt lgkmcnt(0)")
        dmaK(j, sNext)
        for c in range(4):
            srcc = "0" if (j == 0 and c == 0) else vr(vD, 4)
            g(f"v_mfma_f32_16x16x32_bf16 {vr(vD,4)}, {vr(vF+16*(j&1)+4*c,4)}, {ar(16*j+4*c,4)}, {srcc}")
    g("s_nop 7")
    g("s_nop 1")
    e = vT
    g(f"v_cvt_pk_bf16_f32 v{vT+4}, v{vD}, v{vD+1}")
    g(f"v_cvt_pk_bf16_f32 v{vT+5}, v{vD+2}, v{vD+3}")
    g(f"v_lshlrev_b32 v{e}, 16, v{vT+4}")
    g(f"v_and_b32 v{e+1}, 0xffff0000, v{vT+4}")
    g(f"v_lshlrev_b32 v{e+2}, 16, v{vT+5}")
    g(f"v_and_b32 v{e+3}, 0xffff0000, v{vT+5}")
    for i in range(4):
        g(f"v_mul_f32 v{e+i}, s{sScale}, v{e+i}")
    g(f"v_cvt_pk_bf16_f32 v{vT+4}, v{e}, v{e+1}")
    g(f"v_cvt_pk_bf16_f32 v{vT+5}, v{e+2}, v{e+3}")
    g(f"v_lshlrev_b32 v{e}, 16, v{vT+4}")
    g(f"v_and_b32 v{e+1}, 0xffff0000, v{vT+4}")
    g(f"v_lshlrev_b32 v{e+2}, 16, v{vT+5}")
    g(f"v_and_b32 v{e+3}, 0xffff0000, v{vT+5}")
    g(f"v_max3_f32 v{vT+6}, v{e}, v{e+1}, v{e+2}")
    g(f"v_max_f32 v{vT+6}, v{vT+6}, v{e+3}")
    g(f"v_fma_f32 v{vT+7}, v{vT+6}, s{sLog2e}, -v{vM}")
    g(f"v_cmp_lt_f32 vcc, s{sThr}, v{vT+7}")
    g("s_cbranch_vccnz L_rescale")
    g.label("L_back")
    for i in range(4):
        g(f"v_fma_f32 v{e+i}, v{e+i}, s{sLog2e}, -v{vM}")
    for i in range(4):
        g(f"v_exp_f32 v{e+i}, v{e+i}")
    g("s_nop 0")
    g(f"v_cvt_pk_bf16_f32 v{vP01}, v{e}, v{e+1}")
    g(f"v_cvt_pk_bf16_f32 v{vP01+1}, v{e+2}, v{e+3}")
    g(f"v_add_f32 v{vT+4}, v{e}, v{e+1}")
    g(f"v_add_f32 v{vT+5}, v{e+2}, v{e+3}")
    for (dst, rot) in ((vP01+2, 12), (vP23, 8), (vP23+2, 4)):
        g(f"v_mov_b32_dpp v{dst}, v{vP01} row_ror:{rot} row_mask:0xf bank_mask:0xf")
        g(f"v_mov_b32_dpp v{dst+1}, v{vP01+1} row_ror:{rot} row_mask:0xf bank_mask:0xf")
    g(f"v_add_f32 v{vT+4}, v{vT+4}, v{vT+5}")
    g(f"v_add_f32 v{vL}, v{vL}, v{vT+4}")
    for p in range(2):
        g("s_waitcnt vmcnt(24)")
        for db in range(8):
            g(f"ds_read_b64_tr_b16 {vr(vF+4*db,2)}, v{vVrd+db} offset:{(2*p)*4096}")
            g(f"ds_read_b64_tr_b16 {vr(vF+4*db+2,2)}, v{vVrd+db} offset:{(2*p+1)*4096}")
        g("s_waitcnt lgkmcnt(0)")
        dmaV(2*p, sNext)
        dmaV(2*p+1, sNext)
        pb = vP01 if p == 0 else vP23
        for db in range(8):
            g(f"v_mfma_f32_16x16x32_bf16 {vr(vAcc+4*db,4)}, {vr(vF+4*db,4)}, {vr(pb,4)}, {vr(vAcc+4*db,4)}")
    g(f"s_mov_b32 s{sT}, s{sNext}")
    g(f"s_add_u32 s{sCnt}, s{sCnt}, 1")
    g(f"s_cmp_lt_u32 s{sCnt}, 8")
    g("s_cbranch_scc1 L_tile")
    g("s_branch L_Sdone")

    g.label("L_rescale")
    g(f"v_mul_f32 v{vT+6}, s{sLog2e}, v{vT+6}")
    g("s_nop 1")
    g(f"v_max_f32_dpp v{vT+7}, v{vT+6}, v{vT+6} row_ror:4 row_mask:0xf bank_mask:0xf")
    g("s_nop 1")
    g(f"v_max_f32_dpp v{vT+6}, v{vT+7}, v{vT+7} row_ror:8 row_mask:0xf bank_mask:0xf")
    g(f"v_mov_b32 v{vT+7}, v{vT+6}")
    g("s_nop 1")
    g(f"v_permlane16_swap_b32 v{vT+6}, v{vT+7}")
    g(f"v_max_f32 v{vT+6}, v{vT+6}, v{vT+7}")
    g(f"v_mov_b32 v{vT+7}, v{vT+6}")
    g("s_nop 1")
    g(f"v_permlane32_swap_b32 v{vT+6}, v{vT+7}")
    g(f"v_max3_f32 v{vT+6}, v{vT+6}, v{vT+7}, v{vM}")
    g(f"v_sub_f32 v{vT+7}, v{vM}, v{vT+6}")
    g(f"v_exp_f32 v{vT+7}, v{vT+7}")
    g(f"v_mov_b32 v{vM}, v{vT+6}")
    g(f"v_mul_f32 v{vL}, v{vL}, v{vT+7}")
    for i in range(32):
        g(f"v_mul_f32 v{vAcc+i}, v{vAcc+i}, v{vT+7}")
    g("s_branch L_back")

    g.label("L_Sdone")
    g(f"v_add_f32_dpp v{vT}, v{vL}, v{vL} row_ror:4 row_mask:0xf bank_mask:0xf")
    g("s_nop 1")
    g(f"v_add_f32_dpp v{vL}, v{vT}, v{vT} row_ror:8 row_mask:0xf bank_mask:0xf")
    g(f"v_mov_b32 v{vT}, v{vL}")
    g("s_nop 1")
    g(f"v_permlane16_swap_b32 v{vL}, v{vT}")
    g(f"v_add_f32 v{vL}, v{vL}, v{vT}")
    g(f"v_mov_b32 v{vT}, v{vL}")
    g("s_nop 1")
    g(f"v_permlane32_swap_b32 v{vL}, v{vT}")
    g(f"v_add_f32 v{vL}, v{vL}, v{vT}")
    g(f"v_and_b32 v{vT+1}, 15, v0")
    g(f"v_lshrrev_b32 v{vT+2}, 4, v0")
    g(f"v_lshlrev_b32 v{vT+3}, 9, v{vT+1}")
    g(f"v_lshl_add_u32 v{vT+3}, v{vT+2}, 4, v{vT+3}")
    g(f"v_add_u32 v{vT+3}, s{sRK}, v{vT+3}")
    g(f"s_lshl_b32 s{sTmp}, s{sWAVE}, 5")
    g(f"s_add_u32 s{sTmp}, s{sTmp}, {L_ML}")
    g(f"v_lshl_add_u32 v{vT+4}, v{vT+1}, 3, s{sTmp}")
    g(f"v_cmp_gt_u32 vcc, 4, v{vT+1}")
    g("s_waitcnt vmcnt(0)")
    g("s_and_saveexec_b64 s[68:69], vcc")
    for db in range(8):
        g(f"ds_write_b128 v{vT+3}, {vr(vAcc+4*db,4)} offset:{db*64}")
    g(f"ds_write_b64 v{vT+4}, {vr(vM,2)}")
    g("s_mov_b64 exec, s[68:69]")
    g("s_waitcnt lgkmcnt(0)")
    g.c("barrier 2")
    g("s_barrier")
    g(f"s_cmp_ge_u32 s{sWAVE}, 2")
    g("s_cbranch_scc1 L_gather")
    g(f"s_lshl_b32 s{sTmp}, s{sWAVE}, 1")
    g(f"v_lshrrev_b32 v2, 5, v0")
    g(f"v_add_u32 v2, s{sTmp}, v2")
    g(f"v_and_b32 v3, 31, v0")
    g(f"v_lshlrev_b32 v4, 9, v2")
    g(f"v_lshl_add_u32 v4, v3, 4, v4")
    g(f"v_lshlrev_b32 v5, 3, v2")
    g(f"v_add_u32 v5, {L_ML}, v5")
    g(f"v_add_u32 v6, 65536, v4")
    g(f"ds_read_b128 v[48:51], v4")
    g(f"ds_read_b128 v[52:55], v4 offset:32768")
    g(f"ds_read_b128 v[56:59], v6")
    g(f"ds_read_b128 v[60:63], v6 offset:32768")
    for w in range(4):
        g(f"ds_read_b64 v[{64+2*w}:{65+2*w}], v5 offset:{w*32}")
    g(f"s_mul_i32 s{sTmp}, s2, {REC_STRIDE}")
    g(f"s_add_u32 s{sTmp}, s{sTmp}, {WS_REC}")
    g(f"v_mul_u32_u24 v7, {REC_HEAD}, v2")
    g(f"v_lshl_add_u32 v8, v3, 4, v7")
    g("s_waitcnt lgkmcnt(0)")
    g("v_max3_f32 v72, v64, v66, v68")
    g("v_max_f32 v72, v72, v70")
    for w in range(4):
        g(f"v_sub_f32 v{74+w}, v{64+2*w}, v72")
    for w in range(4):
        g(f"v_exp_f32 v{74+w}, v{74+w}")
    g("s_nop 0")
    for i in range(4):
        g(f"v_mul_f32 v{80+i}, v74, v{48+i}")
    g("v_mul_f32 v73, v74, v65")
    for w in range(1, 4):
        for i in range(4):
            g(f"v_fmac_f32 v{80+i}, v{74+w}, v{48+4*w+i}")
        g(f"v_fmac_f32 v73, v{74+w}, v{65+2*w}")
    for i in (72, 73, 80, 81, 82, 83):
        g(f"v_min_u32 v{i}, -2, v{i}")
    g(f"buffer_store_dwordx4 v[80:83], v8, s[{sWSs}:{sWSs+3}], s{sTmp} offen sc1")
    g("v_cmp_eq_u32 vcc, 0, v3")
    g("s_and_saveexec_b64 s[68:69], vcc")
    g(f"buffer_store_dwordx2 v[72:73], v7, s[{sWSs}:{sWSs+3}], s{sTmp} offen offset:512 sc1")
    g("s_mov_b64 exec, s[68:69]")
    g("s_branch L_gather")

    g.label("L_H")
    sHW = 20
    sTlo, sThi = 22, 23
    sA, sBs = 24, 28
    sU, sU2, sU3 = 58, 59, 60
    g(f"s_sub_u32 s{sHW}, s{sWAVE}, 4")
    g("s_waitcnt lgkmcnt(0)")
    g(f"s_load_dwordx2 s[{sTlo}:{sThi}], s[{P_WS}:{P_WS+1}], {WS_EPOCH}")
    g.srd(sWSs, P_WS, WS_SIZE)
    g("v_and_b32 v2, 15, v0")
    g("v_lshrrev_b32 v3, 4, v0")
    g(f"s_cmp_ge_u32 s{sHW}, 2")
    g("s_cbranch_scc1 L_H23")
    g.srd(sBs, P_X, 8192)
    g("v_and_b32 v4, 7, v0")
    g("v_lshlrev_b32 v4, 10, v4")
    g("v_lshl_add_u32 v4, v3, 4, v4")
    g(f"s_cmp_eq_u32 s{sHW}, 1")
    g("s_cbranch_scc1 L_H1")
    g.srd(sA, P_WQ, 512 * 4096 * 2)
    g("v_lshrrev_b32 v5, 1, v0")
    g("v_lshlrev_b32 v5, 13, v5")
    g("v_and_b32 v6, 1, v0")
    g("v_lshl_add_u32 v5, v6, 4, v5")
    g(f"s_lshl_b32 s{sU}, s{sHKV}, 10")
    g(f"s_lshl_b32 s{sU2}, s{sR}, 5")
    g(f"s_add_u32 s{sU}, s{sU}, s{sU2}")
    for i in range(16):
        g(f"s_mov_b32 m0, {L_STA + i*1024}")
        g(f"s_add_u32 s{sU2}, s{sU}, {i*262144}")
        g(f"buffer_load_dwordx4 v5, s[{sA}:{sA+3}], s{sU2} offen {WPOL} lds")
    for i in range(16):
        g(f"buffer_load_dwordx4 {vr(16+4*i,4)}, v4, s[{sBs}:{sBs+3}], 0 offen offset:{i*64}")
    g("v_lshrrev_b32 v6, 2, v2")
    g("v_lshl_add_u32 v6, v3, 3, v6")
    g("v_lshlrev_b32 v6, 5, v6")
    g("v_and_b32 v7, 3, v0")
    g("v_lshl_add_u32 v6, v7, 3, v6")
    g(f"v_add_u32 v6, {L_STA}, v6")
    g("s_waitcnt lgkmcnt(0)")
    g(f"s_and_b32 s{sTlo}, s{sTlo}, 0xffff0000")
    g(f"s_add_u32 s{sTlo}, s{sTlo}, 0x10000")
    g(f"s_addc_u32 s{sThi}, s{sThi}, 0")
    g("s_waitcnt vmcnt(0)")
    for half in range(2):
        for i in range(8):
            ii = half * 8 + i
            g(f"ds_read_b64_tr_b16 {vr(80+4*i,2)}, v6 offset:{ii*1024}")
            g(f"ds_read_b64_tr_b16 {vr(82+4*i,2)}, v6 offset:{ii*1024+128}")
        g("s_waitcnt lgkmcnt(0)")
        for i in range(8):
            ii = half * 8 + i
            srcc = "0" if ii == 0 else "v[8:11]"
            g(f"v_mfma_f32_16x16x32_bf16 v[8:11], {vr(80+4*i,4)}, {vr(16+4*ii,4)}, {srcc}")
    g("v_lshlrev_b32 v12, 15, v2")
    g("v_lshl_add_u32 v12, v3, 5, v12")
    g(f"s_lshl_b32 s{sU2}, s{sU}, 2")
    g(f"s_add_u32 s{sU2}, s{sU2}, {WS_QG}")
    g(f"v_mov_b32 v17, s{sThi}")
    g(f"v_mov_b32 v19, s{sThi}")
    g(f"v_mov_b32 v21, s{sThi}")
    g(f"v_mov_b32 v23, s{sThi}")
    g("v_cmp_gt_u32 vcc, 8, v2")
    g("s_nop 2")
    g("v_cvt_pk_bf16_f32 v13, v8, v9")
    g("v_cvt_pk_bf16_f32 v14, v10, v11")
    g("v_and_b32 v16, 0xffff, v13")
    g("v_lshrrev_b32 v18, 16, v13")
    g("v_and_b32 v20, 0xffff, v14")
    g("v_lshrrev_b32 v22, 16, v14")
    for r_ in (16, 18, 20, 22):
        g(f"v_or_b32 v{r_}, s{sTlo}, v{r_}")
    g("s_and_saveexec_b64 s[68:69], vcc")
    g(f"buffer_store_dwordx4 v[16:19], v12, s[{sWSs}:{sWSs+3}], s{sU2} offen sc1")
    g(f"buffer_store_dwordx4 v[20:23], v12, s[{sWSs}:{sWSs+3}], s{sU2} offen offset:16 sc1")
    g("s_mov_b64 exec, s[68:69]")
    g("v_mov_b32 v24, 0")
    g("v_lshlrev_b32 v25, 2, v0")
    g(f"v_add_u32 v25, {L_QBUF}, v25")
    g(f"ds_write_b32 v25, v24 offset:{L_ZERO-L_QBUF}")
    g(f"s_lshl_b32 s{sU2}, s{sB}, 15")
    g(f"s_lshl_b32 s{sU3}, s{sHKV}, 12")
    g(f"s_add_u32 s{sU2}, s{sU2}, s{sU3}")
    g(f"s_add_u32 s{sU2}, s{sU2}, {WS_QG}")
    g("v_lshlrev_b32 v26, 4, v0")
    g("s_mov_b32 s70, 0x40000")
    g.label("L_pollq")
    for u in range(4):
        g(f"buffer_load_dwordx4 {vr(32+4*u,4)}, v26, s[{sWSs}:{sWSs+3}], s{sU2} offen offset:{u*1024} sc1")
    g("s_waitcnt vmcnt(0)")
    g("v_mov_b32 v27, 0")
    for k in range(8):
        g(f"v_and_b32 v28, 0xffff0000, v{32+2*k}")
        g(f"v_xor_b32 v28, s{sTlo}, v28")
        g(f"v_xor_b32 v29, s{sThi}, v{33+2*k}")
        g("v_or3_b32 v27, v27, v28, v29")
    g("v_cmp_ne_u32 vcc, 0, v27")
    g("s_cbranch_vccz L_qok")
    g("s_sleep 2")
    g("s_sub_u32 s70, s70, 1")
    g("s_cmp_lg_u32 s70, 0")
    g("s_cbranch_scc1 L_pollq")
    g.label("L_qok")
    for u in range(4):
        g(f"v_and_b32 v28, 0xffff, v{32+4*u}")
        g(f"v_lshl_or_b32 v28, v{34+4*u}, 16, v28")
        g(f"ds_write_b32 v25, v28 offset:{u*256}")
    g("s_waitcnt lgkmcnt(0)")
    g("s_branch L_Hbar1")

    g.label("L_H1")
    g(f"s_and_b32 s{sU}, s{sR}, 24")
    g(f"s_add_u32 s{sU}, s{sU}, s{sHKV}")
    g(f"s_cmp_ge_u32 s{sU}, 28")
    g("s_cbranch_scc1 L_Hbar1w")
    g(f"s_lshl_b32 s{sU}, s{sU}, 6")
    g(f"s_and_b32 s{sU2}, s{sR}, 7")
    g(f"s_lshl_b32 s{sU2}, s{sU2}, 3")
    g(f"s_add_u32 s{sU}, s{sU}, s{sU2}")
    g(f"s_lshl_b32 s{sU3}, s{sU}, 1")
    g("s_movk_i32 s61, 3584")
    g("v_mul_u32_u24 v5, s61, v0")
    for which, P in ((0, P_WG), (1, P_WU)):
        g.srd(sA, P, 512 * 1792 * 2)
        for i in range(8):
            g(f"s_mov_b32 m0, {L_STB + which*8192 + i*1024}")
            g(f"s_add_u32 s{sU2}, s{sU3}, {i*64*3584}")
            g(f"buffer_load_dwordx4 v5, s[{sA}:{sA+3}], s{sU2} offen {WPOL} lds")
    for i in range(16):
        g(f"buffer_load_dwordx4 {vr(16+4*i,4)}, v4, s[{sBs}:{sBs+3}], 0 offen offset:{i*64}")
    g("v_lshrrev_b32 v6, 2, v2")
    g("v_lshl_add_u32 v6, v3, 3, v6")
    g("v_lshlrev_b32 v6, 4, v6")
    g("v_and_b32 v7, 1, v0")
    g("v_lshl_add_u32 v6, v7, 3, v6")
    g("v_bfe_u32 v7, v0, 1, 1")
    g("v_lshl_add_u32 v6, v7, 13, v6")
    g(f"v_add_u32 v6, {L_STB}, v6")
    g("s_waitcnt lgkmcnt(0)")
    g(f"s_and_b32 s{sTlo}, s{sTlo}, 0xffff0000")
    g(f"s_add_u32 s{sTlo}, s{sTlo}, 0x10000")
    g(f"s_addc_u32 s{sThi}, s{sThi}, 0")
    g("s_waitcnt vmcnt(0)")
    for half in range(2):
        for i in range(8):
            ii = half * 8 + i
            g(f"ds_read_b64_tr_b16 {vr(80+4*i,2)}, v6 offset:{ii*512}")
            g(f"ds_read_b64_tr_b16 {vr(82+4*i,2)}, v6 offset:{ii*512+64}")
        g("s_waitcnt lgkmcnt(0)")
        for i in range(8):
            ii = half * 8 + i
            srcc = "0" if ii == 0 else "v[8:11]"
            g(f"v_mfma_f32_16x16x32_bf16 v[8:11], {vr(80+4*i,4)}, {vr(16+4*ii,4)}, {srcc}")
    g("s_nop 7")
    g("s_nop 1")
    g("v_cvt_pk_bf16_f32 v12, v8, v9")
    g("v_cvt_pk_bf16_f32 v13, v10, v11")
    g("v_mov_b32 v14, v12")
    g("v_mov_b32 v15, v13")
    g("s_nop 1")
    g("v_permlane32_swap_b32 v12, v14")
    g("v_permlane32_swap_b32 v13, v15")
    g("v_lshlrev_b32 v16, 16, v12")
    g("v_and_b32 v17, 0xffff0000, v12")
    g("v_lshlrev_b32 v18, 16, v13")
    g("v_and_b32 v19, 0xffff0000, v13")
    g("v_lshlrev_b32 v20, 16, v14")
    g("v_and_b32 v21, 0xffff0000, v14")
    g("v_lshlrev_b32 v22, 16, v15")
    g("v_and_b32 v23, 0xffff0000, v15")
    g("s_mov_b32 s61, 0x3d372713")
    g("s_mov_b32 s62, 0x40135761")
    for i in range(4):
        x = 16 + i
        g(f"v_mul_f32 v{24+i}, v{x}, v{x}")
        g(f"v_mul_f32 v{24+i}, v{24+i}, v{x}")
        g(f"v_fma_f32 v{24+i}, v{24+i}, s61, v{x}")
        g(f"v_mul_f32 v{24+i}, s62, v{24+i}")
    for i in range(4):
        g(f"v_exp_f32 v{24+i}, v{24+i}")
    g("s_nop 0")
    for i in range(4):
        g(f"v_add_f32 v{24+i}, 1.0, v{24+i}")
    for i in range(4):
        g(f"v_rcp_f32 v{24+i}, v{24+i}")
    g("s_nop 0")
    for i in range(4):
        g(f"v_sub_f32 v{24+i}, 1.0, v{24+i}")
        g(f"v_mul_f32 v{24+i}, v{16+i}, v{24+i}")
    g("v_cvt_pk_bf16_f32 v12, v24, v25")
    g("v_cvt_pk_bf16_f32 v13, v26, v27")
    g("v_lshlrev_b32 v24, 16, v12")
    g("v_and_b32 v25, 0xffff0000, v12")
    g("v_lshlrev_b32 v26, 16, v13")
    g("v_and_b32 v27, 0xffff0000, v13")
    for i in range(4):
        g(f"v_mul_f32 v{24+i}, v{24+i}, v{20+i}")
    g("v_cvt_pk_bf16_f32 v13, v24, v25")
    g("v_cvt_pk_bf16_f32 v14, v26, v27")
    g("v_and_b32 v16, 0xffff, v13")
    g("v_lshrrev_b32 v18, 16, v13")
    g("v_and_b32 v20, 0xffff, v14")
    g("v_lshrrev_b32 v22, 16, v14")
    for r_ in (16, 18, 20, 22):
        g(f"v_or_b32 v{r_}, s{sTlo}, v{r_}")
        g(f"v_mov_b32 v{r_+1}, s{sThi}")
    g("s_movk_i32 s61, 14336")
    g("v_mul_u32_u24 v12, s61, v2")
    g("v_lshl_add_u32 v12, v3, 5, v12")
    g(f"s_lshl_b32 s{sU2}, s{sU}, 3")
    g(f"s_add_u32 s{sU2}, s{sU2}, {WS_HG}")
    g("v_and_b32 v13, 0x28, v0")
    g("v_cmp_eq_u32 vcc, 0, v13")
    g("s_and_saveexec_b64 s[68:69], vcc")
    g(f"buffer_store_dwordx4 v[16:19], v12, s[{sWSs}:{sWSs+3}], s{sU2} offen sc1")
    g(f"buffer_store_dwordx4 v[20:23], v12, s[{sWSs}:{sWSs+3}], s{sU2} offen offset:16 sc1")
    g("s_mov_b64 exec, s[68:69]")
    g("s_branch L_Hbar1")

    g.label("L_H23")
    g(f"s_cmp_eq_u32 s{sHW}, 3")
    g("s_cbranch_scc1 L_Hbar1w")
    g(f"s_mul_i32 s{sU}, s2, {REC_STRIDE}")
    g(f"s_add_u32 s{sU}, s{sU}, {WS_REC}")
    g("v_mov_b32 v8, -1")
    g("v_mov_b32 v9, -1")
    g("v_mov_b32 v10, -1")
    g("v_mov_b32 v11, -1")
    g("v_lshlrev_b32 v5, 4, v0")
    g(f"buffer_store_dwordx4 v[8:11], v5, s[{sWSs}:{sWSs+3}], s{sU} offen sc1")
    g(f"buffer_store_dwordx4 v[8:11], v5, s[{sWSs}:{sWSs+3}], s{sU} offen offset:1024 sc1")
    g("v_cmp_gt_u32 vcc, 8, v0")
    g("s_and_saveexec_b64 s[68:69], vcc")
    g(f"buffer_store_dwordx4 v[8:11], v5, s[{sWSs}:{sWSs+3}], s{sU} offen offset:2048 sc1")
    g("s_mov_b64 exec, s[68:69]")
    g("s_waitcnt vmcnt(0)")
    g.label("L_Hbar1w")
    g("s_waitcnt lgkmcnt(0)")
    g(f"s_and_b32 s{sTlo}, s{sTlo}, 0xffff0000")
    g(f"s_add_u32 s{sTlo}, s{sTlo}, 0x10000")
    g(f"s_addc_u32 s{sThi}, s{sThi}, 0")
    g.label("L_Hbar1")
    g.c("barrier 1")
    g("s_barrier")
    sDBG = 8
    g.srd(sDBG, P_DBG, 256)
    g(f"s_cmp_lg_u32 s{sHW}, 0")
    g("s_cbranch_scc1 L_Hwo")
    g("v_cmp_eq_u32 vcc, 0, v0")
    g("s_and_saveexec_b64 s[68:69], vcc")
    g("v_mov_b32 v4, 1")
    g("v_mov_b32 v5, 0")
    g(f"buffer_atomic_add v4, v5, s[{sDBG}:{sDBG+3}], 0 offen sc0 sc1")
    g("s_waitcnt vmcnt(0)")
    g("v_cmp_eq_u32 vcc, 255, v4")
    g("s_and_b64 exec, exec, vcc")
    g("s_cbranch_execz L_noepoch")
    g(f"v_mov_b32 v6, s{sTlo}")
    g(f"v_mov_b32 v7, s{sThi}")
    g(f"buffer_store_dwordx2 v[6:7], v5, s[{sWSs}:{sWSs+3}], 0 offen offset:{WS_EPOCH} sc1")
    g.label("L_noepoch")
    g("s_mov_b64 exec, s[68:69]")

    g.label("L_Hwo")
    sST = 61
    g(f"s_mul_i32 s{sST}, s{sHW}, 7168")
    g(f"s_add_u32 s{sST}, s{sST}, {L_HST}")
    g.srd(sA, P_WO, 4096 * 512 * 2)
    g.srd(sBs, P_WD, 1792 * 512 * 2)
    g("v_lshrrev_b32 v5, 1, v0")
    g("v_lshlrev_b32 v5, 10, v5")
    g("v_and_b32 v6, 1, v0")
    g("v_lshl_add_u32 v5, v6, 4, v5")
    g(f"s_lshl_b32 s{sU}, s{sHKV}, 7")
    g(f"s_lshl_b32 s{sU2}, s{sSPLIT}, 5")
    g(f"s_add_u32 s{sU}, s{sU}, s{sU2}")
    g(f"s_lshl_b32 s{sU2}, s{sHW}, 20")
    g(f"s_add_u32 s62, s{sU}, s{sU2}")
    g(f"s_mul_i32 s{sU2}, s{sHW}, {448*1024}")
    g(f"s_add_u32 s63, s{sU}, s{sU2}")
    g("v_lshrrev_b32 v6, 2, v2")
    g("v_lshl_add_u32 v6, v3, 3, v6")
    g("v_lshlrev_b32 v6, 5, v6")
    g("v_and_b32 v7, 3, v0")
    g("v_lshl_add_u32 v6, v7, 3, v6")
    g(f"v_add_u32 v6, s{sST}, v6")
    NB = 46
    def hdma(i):
        slot = i % 6
        g(f"s_add_u32 m0, s{sST}, {slot*1024}")
        if i < 32:
            g(f"s_add_u32 s{sU2}, s62, {i*32768}")
            g(f"buffer_load_dwordx4 v5, s[{sA}:{sA+3}], s{sU2} offen {WPOL2} lds")
        else:
            g(f"s_add_u32 s{sU2}, s63, {(i-32)*32768}")
            g(f"buffer_load_dwordx4 v5, s[{sBs}:{sBs+3}], s{sU2} offen {WPOL2} lds")
    g("s_waitcnt vmcnt(0)")
    for i in range(6):
        hdma(i)
    for i in range(NB):
        rem = min(5, NB - 1 - i)
        g(f"s_waitcnt vmcnt({rem})")
        slot = i % 6
        if i < 32:
            g(f"ds_read_b64_tr_b16 {ar(4*i,2)}, v6 offset:{slot*1024}")
            g(f"ds_read_b64_tr_b16 {ar(4*i+2,2)}, v6 offset:{slot*1024+128}")
        else:
            k = i - 32
            g(f"ds_read_b64_tr_b16 {vr(16+4*k,2)}, v6 offset:{slot*1024}")
            g(f"ds_read_b64_tr_b16 {vr(18+4*k,2)}, v6 offset:{slot*1024+128}")
        if i + 6 < NB:
            g("s_waitcnt lgkmcnt(0)")
            hdma(i + 6)
    g(f"s_mul_i32 s{sU2}, s{sB}, 14336")
    g(f"s_mul_i32 s{sU3}, s{sHW}, 3584")
    g(f"s_add_u32 s{sU2}, s{sU2}, s{sU3}")
    g(f"s_add_u32 s{sU2}, s{sU2}, {WS_HG}")
    g("v_min_u32 v7, 55, v0")
    g("v_lshlrev_b32 v8, 4, v7")
    g("v_lshlrev_b32 v9, 2, v7")
    g(f"v_add_u32 v9, s{sST}, v9")
    g("s_mov_b32 s70, 0x40000")
    g.label("L_pollh")
    for u in range(4):
        g(f"buffer_load_dwordx4 {vr(80+4*u,4)}, v8, s[{sWSs}:{sWSs+3}], s{sU2} offen offset:{u*896} sc1")
    g("s_waitcnt vmcnt(0)")
    g("v_mov_b32 v10, 0")
    for k in range(8):
        g(f"v_and_b32 v11, 0xffff0000, v{80+2*k}")
        g(f"v_xor_b32 v11, s{sTlo}, v11")
        g(f"v_xor_b32 v12, s{sThi}, v{81+2*k}")
        g("v_or3_b32 v10, v10, v11, v12")
    g("v_cmp_ne_u32 vcc, 0, v10")
    g("s_cbranch_vccz L_hok")
    g("s_sleep 8")
    g("s_sub_u32 s70, s70, 1")
    g("s_cmp_lg_u32 s70, 0")
    g("s_cbranch_scc1 L_pollh")
    g.label("L_hok")
    for u in range(4):
        g(f"v_and_b32 v11, 0xffff, v{80+4*u}")
        g(f"v_lshl_or_b32 v11, v{82+4*u}, 16, v11")
        g(f"ds_write_b32 v9, v11 offset:{6144 + u*224}")
    g("v_lshlrev_b32 v10, 4, v3")
    g(f"v_add_u32 v10, s{sST}, v10")
    g("s_waitcnt lgkmcnt(0)")
    for half in range(2):
        for k in range(7):
            g(f"ds_read_b128 {vr(80+4*k,4)}, v10 offset:{6144 + (half*7+k)*64}")
        g("s_waitcnt lgkmcnt(0)")
        for k in range(7):
            kk = half * 7 + k
            srcc = "0" if kk == 0 else "v[12:15]"
            g(f"v_mfma_f32_16x16x32_bf16 v[12:15], {vr(16+4*kk,4)}, {vr(80+4*k,4)}, {srcc}")
    g.srd(sA, P_X, 8192)
    g.srd(sBs, P_GW, 1024)
    g("v_lshlrev_b32 v8, 4, v0")
    g(f"s_lshl_b32 s{sU2}, s{sB}, 10")
    g(f"buffer_load_dwordx4 v[16:19], v8, s[{sA}:{sA+3}], s{sU2} offen")
    g(f"buffer_load_dwordx4 v[20:23], v8, s[{sBs}:{sBs+3}], 0 offen")
    g("v_mov_b32 v9, 0")
    g("s_mov_b32 s70, 0x40000")
    g.label("L_pollc")
    g(f"buffer_load_dword v10, v9, s[{sDBG}:{sDBG+3}], 0 offen sc1")
    g("s_waitcnt vmcnt(0)")
    g("v_cmp_ne_u32 vcc, 0x100, v10")
    g("s_cbranch_vccz L_cok")
    g("s_sleep 8")
    g("s_sub_u32 s70, s70, 1")
    g("s_cmp_lg_u32 s70, 0")
    g("s_cbranch_scc1 L_pollc")
    g.label("L_cok")
    for i in range(4):
        g(f"v_lshlrev_b32 v{24+2*i}, 16, v{16+i}")
        g(f"v_and_b32 v{25+2*i}, 0xffff0000, v{16+i}")
        g(f"v_lshlrev_b32 v{32+2*i}, 16, v{20+i}")
        g(f"v_and_b32 v{33+2*i}, 0xffff0000, v{20+i}")
    for i in range(8):
        g(f"v_mul_f32 v{24+i}, v{24+i}, v{32+i}")
    for i in range(4):
        g(f"v_cvt_pk_bf16_f32 v{32+i}, v{24+2*i}, v{25+2*i}")
    for i in range(4):
        g(f"v_lshlrev_b32 v{24+2*i}, 16, v{32+i}")
        g(f"v_and_b32 v{25+2*i}, 0xffff0000, v{32+i}")
    g("v_add_f32 v24, v24, v25")
    g("v_add_f32 v26, v26, v27")
    g("v_add_f32 v28, v28, v29")
    g("v_add_f32 v30, v30, v31")
    g("v_add_f32 v24, v24, v26")
    g("v_add_f32 v28, v28, v30")
    g("v_add_f32 v24, v24, v28")
    for rot in (1, 2, 4, 8):
        g("s_nop 1")
        g(f"v_add_f32_dpp v25, v24, v24 row_ror:{rot} row_mask:0xf bank_mask:0xf")
        g("v_mov_b32 v24, v25")
    g("s_nop 1")
    g("v_permlane16_swap_b32 v24, v25")
    g("v_add_f32 v24, v24, v25")
    g("v_mov_b32 v25, v24")
    g("s_nop 1")
    g("v_permlane32_swap_b32 v24, v25")
    g("v_add_f32 v24, v24, v25")
    g("v_cvt_pk_bf16_f32 v24, v24, v24")
    g("v_and_b32 v24, 0xffff0000, v24")
    g("v_mul_f32 v24, 0xbfb8aa3b, v24")
    g("v_exp_f32 v24, v24")
    g("s_nop 0")
    g("v_add_f32 v24, 1.0, v24")
    g("v_rcp_f32 v24, v24")
    g("s_nop 0")
    g("v_cvt_pk_bf16_f32 v24, v24, v24")
    g("v_and_b32 v10, 0xffff0000, v24")
    g("v_sub_f32 v11, 1.0, v10")
    g("v_cvt_pk_bf16_f32 v11, v11, v11")
    g("v_and_b32 v11, 0xffff0000, v11")
    g.c("barrier 2")
    g("s_barrier")

    g.label("L_gather")
    sG0, sG1, sG2, sG3 = 64, 65, 66, 67
    g(f"s_lshl_b32 s{sG0}, s{sB}, 5")
    g(f"s_add_u32 s{sG0}, s{sG0}, s{sWAVE}")
    g(f"s_mul_i32 s{sG0}, s{sG0}, {REC_STRIDE}")
    g(f"s_add_u32 s{sG0}, s{sG0}, {WS_REC}")
    g(f"s_add_u32 s{sG1}, s{sG0}, {8*REC_STRIDE}")
    g(f"s_add_u32 s{sG2}, s{sG0}, {16*REC_STRIDE}")
    g(f"s_add_u32 s{sG3}, s{sG0}, {24*REC_STRIDE}")
    g("v_lshrrev_b32 v16, 4, v0")
    g(f"v_mul_u32_u24 v16, {REC_HEAD}, v16")
    g("v_and_b32 v17, 15, v0")
    g("v_lshl_add_u32 v17, v17, 5, v16")
    g("s_mov_b32 s70, 0x40000")
    g.label("L_pollr")
    for s in range(4):
        g(f"buffer_load_dwordx4 {vr(64+8*s,4)}, v17, s[{sWSs}:{sWSs+3}], s{sG0+s} offen sc1")
        g(f"buffer_load_dwordx4 {vr(68+8*s,4)}, v17, s[{sWSs}:{sWSs+3}], s{sG0+s} offen offset:16 sc1")
        g(f"buffer_load_dwordx2 {vr(96+2*s,2)}, v16, s[{sWSs}:{sWSs+3}], s{sG0+s} offen offset:512 sc1")
    g("s_waitcnt vmcnt(0)")
    g("v_max3_u32 v18, v64, v65, v66")
    for k in range(67, 103, 2):
        g(f"v_max3_u32 v18, v18, v{k}, v{k+1}")
    g("v_max_u32 v18, v18, v103")
    g("v_cmp_eq_u32 vcc, -1, v18")
    g("s_cbranch_vccz L_rok")
    g("s_sleep 1")
    g("s_sub_u32 s70, s70, 1")
    g("s_cmp_lg_u32 s70, 0")
    g("s_cbranch_scc1 L_pollr")
    g.label("L_rok")
    g("v_max3_f32 v18, v96, v98, v100")
    g("v_max_f32 v18, v18, v102")
    for s in range(4):
        g(f"v_sub_f32 v{20+s}, v{96+2*s}, v18")
    for s in range(4):
        g(f"v_exp_f32 v{20+s}, v{20+s}")
    g("s_nop 0")
    g("v_mul_f32 v19, v20, v97")
    for s in range(1, 4):
        g(f"v_fmac_f32 v19, v{20+s}, v{97+2*s}")
    g("v_rcp_f32 v19, v19")
    for i in range(8):
        g(f"v_mul_f32 v{24+i}, v20, v{64+i}")
    for s in range(1, 4):
        for i in range(8):
            g(f"v_fmac_f32 v{24+i}, v{20+s}, v{64+8*s+i}")
    for i in range(8):
        g(f"v_mul_f32 v{24+i}, v19, v{24+i}")
    for i in range(4):
        g(f"v_cvt_pk_bf16_f32 v{32+i}, v{24+2*i}, v{25+2*i}")
    g(f"s_lshl_b32 s{sG1}, s{sWAVE}, 10")
    g(f"s_add_u32 s{sG1}, s{sG1}, {L_OBUF}")
    g(f"v_lshl_add_u32 v18, v0, 4, s{sG1}")
    g("ds_write_b128 v18, v[32:35]")
    g("s_waitcnt lgkmcnt(0)")
    g.c("barrier 3")
    g("s_barrier")
    g(f"s_cmp_lt_u32 s{sWAVE}, 4")
    g("s_cbranch_scc1 L_end")
    g(f"s_lshl_b32 s{sG1}, s{sHW}, 11")
    g(f"s_add_u32 s{sG1}, s{sG1}, {L_OBUF}")
    g(f"v_lshl_add_u32 v18, v3, 4, s{sG1}")
    for q4 in range(4):
        for k in range(8):
            g(f"ds_read_b128 {vr(64+4*k+32*(q4&1),4)}, v18 offset:{(q4*8+k)*64}")
        if q4 > 0:
            g("s_waitcnt lgkmcnt(8)")
            for k in range(8):
                kk = (q4 - 1) * 8 + k
                srcc = "0" if kk == 0 else "v[20:23]"
                g(f"v_mfma_f32_16x16x32_bf16 v[20:23], {ar(4*kk,4)}, {vr(64+4*k+32*((q4-1)&1),4)}, {srcc}")
    g("s_waitcnt lgkmcnt(0)")
    for k in range(8):
        kk = 24 + k
        g(f"v_mfma_f32_16x16x32_bf16 v[20:23], {ar(4*kk,4)}, {vr(64+4*k+32,4)}, v[20:23]")
    g(f"s_lshl_b32 s{sG1}, s{sHW}, 7")
    g(f"s_add_u32 s{sG1}, s{sG1}, {L_RED}")
    g(f"v_lshl_add_u32 v18, v3, 4, s{sG1}")
    g("v_cmp_eq_u32 vcc, 0, v2")
    g("s_nop 4")
    g("s_and_saveexec_b64 s[68:69], vcc")
    g("ds_write_b128 v18, v[20:23]")
    g("ds_write_b128 v18, v[12:15] offset:64")
    g("s_mov_b64 exec, s[68:69]")
    g("s_waitcnt lgkmcnt(0)")
    g.c("barrier 4 (H waves only)")
    g("s_barrier")
    g(f"s_cmp_lg_u32 s{sHW}, 0")
    g("s_cbranch_scc1 L_end")
    g("v_lshlrev_b32 v18, 2, v2")
    g(f"v_add_u32 v18, {L_RED}, v18")
    for w in range(4):
        g(f"ds_read_b32 v{24+w}, v18 offset:{w*128}")
        g(f"ds_read_b32 v{28+w}, v18 offset:{w*128 + 64}")
    g.srd(sA, P_OUT, 8192)
    g(f"s_lshl_b32 s{sU2}, s{sB}, 10")
    g(f"s_add_u32 s{sU2}, s{sU2}, s{sU}")
    g("v_lshlrev_b32 v19, 1, v2")
    g("s_waitcnt lgkmcnt(0)")
    g("v_add_f32 v24, v24, v25")
    g("v_add_f32 v26, v26, v27")
    g("v_add_f32 v28, v28, v29")
    g("v_add_f32 v30, v30, v31")
    g("v_add_f32 v24, v24, v26")
    g("v_add_f32 v28, v28, v30")
    g("v_cvt_pk_bf16_f32 v24, v24, v28")
    g("v_lshlrev_b32 v25, 16, v24")
    g("v_and_b32 v26, 0xffff0000, v24")
    g("v_mul_f32 v25, v10, v25")
    g("v_mul_f32 v26, v11, v26")
    g("v_cvt_pk_bf16_f32 v24, v25, v26")
    g("v_lshlrev_b32 v25, 16, v24")
    g("v_and_b32 v26, 0xffff0000, v24")
    g("v_add_f32 v25, v25, v26")
    g("v_cvt_pk_bf16_f32 v25, v25, v25")
    g("v_cmp_gt_u32 vcc, 16, v0")
    g("s_and_saveexec_b64 s[68:69], vcc")
    g(f"buffer_store_short v25, v19, s[{sA}:{sA+3}], s{sU2} offen")
    g.label("L_end")
    g("s_endpgm")
    g.o.append('.section .rodata,"a"')
    g.o.append(".p2align 6")
    g.o.append(f".amdhsa_kernel {KN}")
    for l in ("next_free_vgpr 256", "next_free_sgpr 72", "accum_offset 128", "group_segment_fixed_size 0",
              "kernarg_size 104", "user_sgpr_count 2", "user_sgpr_kernarg_segment_ptr 1",
              "system_sgpr_workgroup_id_x 1"):
        g.o.append("  .amdhsa_" + l)
    g.o.append(".end_amdhsa_kernel")
    return "\n".join(g.o) + "\n"


if __name__ == "__main__":
    out = sys.argv[1] if len(sys.argv) > 1 else "k.s"
    open(out, "w").write(gen())
```

```python
import sys, os

KN = "gated_mix__gqa_block_cached__geglu_ffn__decode_kernel"

WS_EPOCH = 0
WS_CNT = 0x20000
WS_QG = 0x40000
WS_ML = 0x60000
WS_RO = 0x80000
WS_PAB = 0x200000
WS_SIZE = 0x300000

L_H = 131072
L_QBUF = L_H
L_ZERO = L_H + 2048
L_ML = L_H + 2304
L_FLAG = L_H + 2560
L_HEAD = L_H + 2576
L_Q = L_H + 2624
L_HB = L_H + 3072
L_ST = L_H + 4096
L_OBUF = 16384
LDS_TOTAL = 163840

HPD = int(os.environ.get("HPD", "2"))
RSLEEP = int(os.environ.get("RSLEEP", "2"))
ASLEEP = int(os.environ.get("ASLEEP", "1"))
QSLEEP0 = int(os.environ.get("QSLEEP0", "40"))
TH = int(os.environ.get("TH", "4"))
PDF = int(os.environ.get("PDF", "5"))
NOFFN = int(os.environ.get("NOFFN", "0"))
STATIC = int(os.environ.get("STATIC", "0"))
SDELAY = int(os.environ.get("SDELAY", "0"))
FDELAY = int(os.environ.get("FDELAY", "0"))
GEAGER = int(os.environ.get("GEAGER", "1"))
NS = 7
NU = 512
MINIT = 0xf149f2ca


class G:
    def __init__(self):
        self.o = []
    def __call__(self, s):
        self.o.append("    " + s)
    def label(self, s):
        self.o.append(s + ":")
    def c(self, s):
        self.o.append("    ; " + s)
    def stamp(self, i):
        if not self.stamps: return
        self("s_memrealtime s[90:91]")
        self("s_waitcnt lgkmcnt(0)")
        self(f"s_mov_b32 s{72+i}, s90")
    def stamp_out(self, sWSs):
        if not self.stamps: return
        self("s_lshl_b32 s90, s2, 9")
        self("s_lshl_b32 s91, s3, 6")
        self("s_add_u32 s90, s90, s91")
        self("s_add_u32 s90, s90, 0x180000")
        self("s_mov_b64 exec, 1")
        self("v_mov_b32 v1, 0")
        for i in range(16):
            self(f"v_mov_b32 v2, s{72+i}")
            self(f"buffer_store_dword v2, v1, s[{sWSs}:{sWSs+3}], s90 offen offset:{4*i}")
            self("s_nop 1")
    def srd(self, d, p, nbytes):
        self(f"s_mov_b32 s{d}, s{p}")
        self(f"s_and_b32 s{d+1}, s{p+1}, 0xffff")
        self(f"s_mov_b32 s{d+2}, {nbytes:#x}")
        self(f"s_mov_b32 s{d+3}, 0x20000")


def vr(a, n=1):
    return f"v{a}" if n == 1 else f"v[{a}:{a+n-1}]"
def ar(a, n=1):
    return f"a{a}" if n == 1 else f"a[{a}:{a+n-1}]"


def gen(dbg=0):
    g = G()
    g.stamps = dbg
    g.o.append(f"; @launch grid=(256,1,1) block=(512,1,1) lds={LDS_TOTAL}")
    g.o.append('.amdgcn_target "amdgcn-amd-amdhsa--gfx950"')
    g.o.append(".text")
    g.o.append(f".globl {KN}")
    g.o.append(".p2align 8")
    g.o.append(f".type {KN},@function")
    g.label(KN)
    P_X, P_K, P_V, P_WQ, P_WO, P_WG, P_WU, P_WD, P_GW, P_OUT, P_DBG, P_WS = 32, 34, 36, 38, 40, 44, 46, 48, 50, 52, 54, 56
    sWAVE, sX, sA_, sB, sSPLIT = 3, 4, 5, 6, 7
    sKs, sVs, sWSs = 8, 12, 16
    sTag, sGRP = 88, 89
    sSEL = 92
    vTag = 126

    def tagit(dst, src, i):
        g(f"v_perm_b32 v{dst}, v{src}, v{vTag}, s{sSEL+i}")

    def tagchk(acc, r, first, t0, t1):
        g(f"v_perm_b32 v{t0}, v{r+1}, v{r}, s64")
        g(f"v_perm_b32 v{t1}, v{r+3}, v{r+2}, s65")
        if first:
            g(f"v_or_b32 v{acc}, v{t0}, v{t1}")
            g(f"v_xor_b32 v{acc}, v{vTag}, v{acc}")
        else:
            g(f"v_or_b32 v{t0}, v{t0}, v{t1}")
            g(f"v_xor_b32 v{t0}, v{vTag}, v{t0}")
            g(f"v_or_b32 v{acc}, v{acc}, v{t0}")

    g("s_cmp_ge_u32 s2, 256")
    g("s_cbranch_scc1 L_end")
    g("s_load_dwordx16 s[32:47], s[0:1], 0")
    g("s_load_dwordx2 s[56:57], s[0:1], 96")
    g("s_load_dwordx8 s[48:55], s[0:1], 64")
    g("v_lshrrev_b32 v1, 6, v0")
    g("v_and_b32 v0, 63, v0")
    g(f"v_readfirstlane_b32 s{sWAVE}, v1")
    g(f"s_and_b32 s{sX}, s2, 7")
    g(f"s_lshr_b32 s{sA_}, s2, 3")
    g(f"s_lshr_b32 s{sB}, s{sA_}, 2")
    g(f"s_and_b32 s{sSPLIT}, s{sA_}, 3")
    g(f"s_lshl_b32 s{sGRP}, s{sX}, 2")
    g(f"s_add_u32 s{sGRP}, s{sGRP}, s{sA_}")
    g(f"s_and_b32 s{sGRP}, s{sGRP}, 31")
    if dbg:
        for i in range(16): g(f"s_mov_b32 s{72+i}, 0")
    g.stamp(0)
    g(f"s_cmp_lt_u32 s{sWAVE}, 4")
    g("s_cbranch_scc1 L_H")
    sSW = 29
    g(f"s_sub_u32 s{sSW}, s{sWAVE}, 4")

    vKoff, vVoff, vKrd, vVrd = 2, 6, 8, 12
    vM, vL = 20, 21
    vPop, vEnt = 22, 23
    vD = 24
    vP01 = 28
    vHeadA, vOne, vQa = 32, 33, 34
    vT = 36
    vF = 48
    vAcc = 80
    vQB = 112
    sT, sNext, sRK, sRV, sTmp, sCnt, sLog2e, sScale, sThr = 20, 21, 22, 23, 24, 25, 26, 27, 28
    sBase, sBaseB, sRK2, sRV2, sRK0, sPop, sSwd, sTmp2 = 58, 59, 60, 61, 62, 63, 30, 31
    g.c("---- S wave setup ----")
    g(f"s_lshl_b32 s{sRK}, s{sSW}, 15")
    g("v_and_b32 v44, 15, v0")
    g("v_lshrrev_b32 v45, 4, v0")
    g("v_lshrrev_b32 v118, 3, v0")
    g("v_and_b32 v113, 7, v0")
    g(f"s_cmp_ge_u32 s{sA_}, 8")
    g("s_cbranch_scc1 L_Snoq")
    g("v_lshlrev_b32 v112, 13, v118")
    g("v_lshl_add_u32 v112, v113, 4, v112")
    g(f"s_lshl_b32 s{sT}, s{sX}, 10")
    g(f"s_lshl_b32 s{sTmp}, s{sA_}, 7")
    g(f"s_add_u32 s{sT}, s{sT}, s{sTmp}")
    g(f"s_lshl_b32 s{sTmp}, s{sSW}, 20")
    g(f"s_add_u32 s{sT}, s{sT}, s{sTmp}")
    g(f"s_mov_b32 m0, s{sRK}")
    g("v_lshlrev_b32 v113, 10, v113")
    g("v_lshl_add_u32 v113, v45, 4, v113")
    g(f"s_lshl_b32 s{sTmp}, s{sSW}, 8")
    g("s_waitcnt lgkmcnt(0)")
    g.srd(sVs, P_X, 8192)
    g.srd(sKs, P_WQ, 512 * 4096 * 2)
    for i in range(4):
        g(f"buffer_load_dwordx4 {vr(96+4*i,4)}, v113, s[{sVs}:{sVs+3}], s{sTmp} offen offset:{i*64}")
    for i in range(16):
        g(f"buffer_load_dwordx4 v112, s[{sKs}:{sKs+3}], s{sT} offen nt lds")
        if i < 15:
            g(f"s_add_u32 m0, m0, 1024")
            g(f"s_add_u32 s{sT}, s{sT}, 65536")
    def prejob_addrs():
        g("v_lshrrev_b32 v114, 2, v44")
        g("v_lshl_add_u32 v114, v45, 3, v114")
        g("v_lshlrev_b32 v114, 7, v114")
        g("v_and_b32 v115, 3, v0")
        g("v_lshl_add_u32 v114, v115, 3, v114")
        g(f"v_add_u32 v114, s{sRK}, v114")
        g(f"s_lshl_b32 s{sTmp}, s{sSW}, 11")
        g(f"s_add_u32 s{sTmp}, s{sTmp}, {L_ST}")
        g("v_lshlrev_b32 v115, 8, v44")
        g("v_lshl_add_u32 v115, v45, 4, v115")
        g(f"v_add_u32 v115, s{sTmp}, v115")
        g(f"s_lshl_b32 s{sTmp}, s{sSW}, 2")
        g(f"s_add_u32 s{sTmp}, s{sTmp}, {L_FLAG}")
        g(f"v_mov_b32 v116, s{sTmp}")
        g("v_mov_b32 v117, 1")
        g("v_cmp_gt_u32 s[66:67], 8, v44")
        g.c("barrier 0: flags zeroed")
        g("s_barrier")
    def prejob_mm(nkb, xf, acc, after):
        for kb in range(nkb):
            fr = vF + 16 * (kb & 1)
            g(f"s_waitcnt vmcnt({4*(nkb-1-kb) + after})")
            for ct in range(4):
                g(f"ds_read_b64_tr_b16 {vr(fr+4*ct,2)}, v114 offset:{kb*4096 + ct*32}")
                g(f"ds_read_b64_tr_b16 {vr(fr+4*ct+2,2)}, v114 offset:{kb*4096 + ct*32 + 512}")
            g("s_waitcnt lgkmcnt(0)")
            for ct in range(4):
                srcc = "0" if kb == 0 else vr(acc+4*ct, 4)
                g(f"v_mfma_f32_16x16x32_bf16 {vr(acc+4*ct,4)}, {vr(fr+4*ct,4)}, {vr(xf+4*kb,4)}, {srcc}")
    def prejob_pub(acc):
        g("s_mov_b64 exec, s[66:67]")
        for ct in range(4):
            g(f"ds_write_b128 v115, {vr(acc+4*ct,4)} offset:{ct*64}")
        g("s_mov_b64 exec, 1")
        g("s_waitcnt lgkmcnt(0)")
        g("ds_write_b32 v116, v117")
        g("s_mov_b64 exec, -1")
    prejob_addrs()
    prejob_mm(4, 96, 80, 0)
    g.stamp(5)
    g("s_nop 7")
    g("s_nop 3")
    prejob_pub(80)
    g.stamp(6)
    g("s_branch L_Sgo")

    g.label("L_Snoq")
    sG = 21
    g(f"s_sub_u32 s{sG}, s2, 128")
    g(f"s_cmp_ge_u32 s{sG}, {0 if NOFFN else 28}")
    g("s_cbranch_scc1 L_Snof")
    g("s_movk_i32 s61, 3584")
    g("v_mul_u32_u24 v112, s61, v118")
    g("v_lshl_add_u32 v112, v113, 4, v112")
    g("v_lshlrev_b32 v119, 10, v118")
    g("v_lshl_add_u32 v119, v113, 4, v119")
    g("v_lshlrev_b32 v113, 10, v113")
    g("v_lshl_add_u32 v113, v45, 4, v113")
    g(f"s_and_b32 s{sTmp2}, s{sSW}, 1")
    g(f"s_mul_i32 s{sT}, s{sTmp2}, {256*3584}")
    g(f"s_lshl_b32 s{sTmp}, s{sG}, 7")
    g(f"s_add_u32 s{sT}, s{sT}, s{sTmp}")
    g(f"s_lshl_b32 s{sTmp}, s{sTmp2}, 9")
    g(f"s_mov_b32 m0, s{sRK}")
    if FDELAY:
        g(f"s_sleep {FDELAY}")
    g("s_waitcnt lgkmcnt(0)")
    g(f"s_load_dword s{sTag}, s[{P_WS}:{P_WS+1}], {WS_EPOCH}")
    g.srd(sVs, P_X, 8192)
    g(f"s_cmp_ge_u32 s{sSW}, 2")
    g(f"s_cselect_b32 s{sKs}, s{P_WU}, s{P_WG}")
    g(f"s_cselect_b32 s{sKs+1}, s{P_WU+1}, s{P_WG+1}")
    g(f"s_and_b32 s{sKs+1}, s{sKs+1}, 0xffff")
    g(f"s_mov_b32 s{sKs+2}, {512*1792*2:#x}")
    g(f"s_mov_b32 s{sKs+3}, 0x20000")
    XF = 4
    for i in range(8):
        g(f"buffer_load_dwordx4 {vr(XF+4*i,4)}, v113, s[{sVs}:{sVs+3}], s{sTmp} offen offset:{i*64}")
    for i in range(32):
        g(f"buffer_load_dwordx4 v112, s[{sKs}:{sKs+3}], s{sT} offen nt lds")
        if i < 31:
            g(f"s_add_u32 m0, m0, 1024")
            g(f"s_add_u32 s{sT}, s{sT}, {8*3584}")
    prejob_addrs()
    g.srd(sVs, P_WD, 1792 * 512 * 2)
    g.srd(sWSs, P_WS, WS_SIZE)
    for i in range(4):
        g(f"s_mov_b32 s{sSEL+i}, {0x07060500 | i:#x}")
    prejob_mm(8, XF, 80, 0)
    g.stamp(5)
    g(f"s_lshl_b32 s{sT}, s{sG}, 16")
    g(f"s_lshl_b32 s{sTmp}, s{sSW}, 8")
    g(f"s_add_u32 s{sT}, s{sT}, s{sTmp}")
    g(f"s_mov_b32 m0, s{sRK}")
    for i in range(16):
        g(f"s_add_u32 s{sTmp}, s{sT}, {(i & 7)*8192 + (i >> 3)*128}")
        g(f"buffer_load_dwordx4 v119, s[{sVs}:{sVs+3}], s{sTmp} offen nt lds")
        if i < 15:
            g(f"s_add_u32 m0, m0, 1024")
    prejob_pub(80)
    g("v_and_b32 v116, 3, v0")
    g("v_lshlrev_b32 v116, 2, v116")
    g(f"v_add_u32 v116, {L_FLAG}, v116")
    g("v_and_b32 v115, 7, v0")
    g("v_lshlrev_b32 v115, 8, v115")
    g("v_lshl_add_u32 v115, v45, 5, v115")
    g(f"v_add_u32 v115, {L_ST}, v115")
    g(f"s_add_u32 s{sTag}, s{sTag}, 1")
    g(f"v_mov_b32 v{vTag}, s{sTag}")
    g("s_mov_b32 s70, 0x40000")
    g.label("L_ff")
    g("ds_read_b32 v117, v116")
    g("s_sub_u32 s70, s70, 1")
    g("s_waitcnt lgkmcnt(0)")
    g("v_cmp_ne_u32 vcc, 1, v117")
    g("s_cbranch_vccz L_ffok")
    g("s_sleep 1")
    g("s_cmp_lg_u32 s70, 0")
    g("s_cbranch_scc1 L_ff")
    g.label("L_ffok")
    GA, UA, T = 4, 20, 80
    for w in range(4):
        dst = (GA, 48, UA, 64)[w]
        for q4 in range(4):
            g(f"ds_read_b128 {vr(dst+4*q4,4)}, v115 offset:{w*2048 + (q4>>1)*128 + (q4&1)*16}")
    g("s_waitcnt lgkmcnt(0)")
    for i in range(16):
        g(f"v_add_f32 v{GA+i}, v{GA+i}, v{48+i}")
        g(f"v_add_f32 v{UA+i}, v{UA+i}, v{64+i}")
    for i in range(8):
        g(f"v_cvt_pk_bf16_f32 v{48+i}, v{GA+2*i}, v{GA+2*i+1}")
        g(f"v_cvt_pk_bf16_f32 v{56+i}, v{UA+2*i}, v{UA+2*i+1}")
    for i in range(8):
        g(f"v_lshlrev_b32 v{GA+2*i}, 16, v{48+i}")
        g(f"v_and_b32 v{GA+2*i+1}, 0xffff0000, v{48+i}")
        g(f"v_lshlrev_b32 v{UA+2*i}, 16, v{56+i}")
        g(f"v_and_b32 v{UA+2*i+1}, 0xffff0000, v{56+i}")
    g("s_mov_b32 s61, 0x3d372713")
    g("s_mov_b32 s63, 0x40135761")
    for i in range(16):
        x = GA + i
        g(f"v_mul_f32 v{T+i}, v{x}, v{x}")
        g(f"v_mul_f32 v{T+i}, v{T+i}, v{x}")
        g(f"v_fma_f32 v{T+i}, v{T+i}, s61, v{x}")
        g(f"v_mul_f32 v{T+i}, s63, v{T+i}")
    for i in range(16):
        g(f"v_exp_f32 v{T+i}, v{T+i}")
    g("s_nop 0")
    for i in range(16):
        g(f"v_add_f32 v{T+i}, 1.0, v{T+i}")
    for i in range(16):
        g(f"v_rcp_f32 v{T+i}, v{T+i}")
    g("s_nop 0")
    for i in range(16):
        g(f"v_sub_f32 v{T+i}, 1.0, v{T+i}")
        g(f"v_mul_f32 v{T+i}, v{GA+i}, v{T+i}")
    for i in range(8):
        g(f"v_cvt_pk_bf16_f32 v{48+i}, v{T+2*i}, v{T+2*i+1}")
    for i in range(8):
        g(f"v_lshlrev_b32 v{T+2*i}, 16, v{48+i}")
        g(f"v_and_b32 v{T+2*i+1}, 0xffff0000, v{48+i}")
    for i in range(16):
        g(f"v_mul_f32 v{T+i}, v{T+i}, v{UA+i}")
    for i in range(8):
        g(f"v_cvt_pk_bf16_f32 v{4+i}, v{T+2*i}, v{T+2*i+1}")
    for t in range(4):
        cb2, kb = t >> 1, t & 1
        fr = vF + 16 * (t & 1)
        acc = 80 + 16 * cb2
        g(f"s_waitcnt vmcnt({4*(3-t)})")
        for ct in range(4):
            g(f"ds_read_b64_tr_b16 {vr(fr+4*ct,2)}, v114 offset:{t*4096 + ct*32}")
            g(f"ds_read_b64_tr_b16 {vr(fr+4*ct+2,2)}, v114 offset:{t*4096 + ct*32 + 512}")
        g("s_waitcnt lgkmcnt(0)")
        for ct in range(4):
            srcc = "0" if kb == 0 else vr(acc+4*ct, 4)
            g(f"v_mfma_f32_16x16x32_bf16 {vr(acc+4*ct,4)}, {vr(fr+4*ct,4)}, {vr(4+4*kb,4)}, {srcc}")
    g("v_lshlrev_b32 v112, 17, v44")
    g("v_lshl_add_u32 v112, v45, 4, v112")
    g(f"s_lshl_b32 s{sT}, s{sG}, 6")
    g(f"s_lshl_b32 s{sTmp}, s{sSW}, 13")
    g(f"s_add_u32 s{sT}, s{sT}, s{sTmp}")
    g(f"s_add_u32 s{sT}, s{sT}, {WS_PAB + 2048}")
    g("s_nop 7")
    g("s_nop 3")
    g("s_mov_b64 exec, s[66:67]")
    for cb2 in range(2):
        for ct in range(4):
            d = 80 + 16*cb2 + 4*ct
            for i in range(4):
                tagit(d+i, d+i, i)
            g(f"s_add_u32 s{sTmp}, s{sT}, {cb2*4096 + ct*32768}")
            g(f"buffer_store_dwordx4 {vr(d,4)}, v112, s[{sWSs}:{sWSs+3}], s{sTmp} offen sc1")
    g("s_mov_b64 exec, -1")
    g("s_waitcnt vmcnt(0)")
    g.stamp(6)
    g("s_branch L_Sgo")
    g.label("L_Snof")
    if SDELAY:
        g(f"s_sleep {SDELAY}")
    g.label("L_Sgo")
    for i in range(4):
        g(f"v_add_u32 v46, {4*i}, v45")
        g("v_xor_b32 v46, v44, v46")
        g("v_lshlrev_b32 v46, 4, v46")
        g(f"v_lshl_add_u32 v{vKoff+i}, v45, 8, v46")
    g(f"s_mov_b32 s{sRK0}, s{sRK}")
    g(f"s_add_u32 s{sRV}, s{sRK}, 16384")
    g(f"s_add_u32 s{sRK2}, s{sRK}, 8192")
    g(f"s_add_u32 s{sRV2}, s{sRV}, 8192")
    g(f"s_lshl_b32 s{sBase}, s{sGRP}, 22")
    g(f"s_add_u32 s{sBaseB}, s{sBase}, 0x200000")
    g(f"s_lshl_b32 s{sTmp}, s{sX}, 2")
    g(f"s_add_u32 s{sTmp}, s{sTmp}, s{sSW}")
    g(f"s_lshl_b32 s{sTmp}, s{sTmp}, 13")
    g(f"s_add_u32 s{sT}, s{sBase}, s{sTmp}")
    USTR = 32 * 8192
    g(f"s_add_u32 s{sNext}, s{sT}, {USTR}")
    g("s_waitcnt lgkmcnt(0)")
    g.srd(sKs, P_K, 0x8000000)
    g.srd(sVs, P_V, 0x8000000)

    def dmaB(i, sbase, nxt):
        j = i & 1
        if i < 2:
            g(f"s_add_u32 m0, s{sRK2 if nxt else sRK}, {j*4096}")
            g(f"s_add_u32 s{sTmp}, s{sbase}, {j*4096}")
            for k in range(4):
                g(f"buffer_load_dwordx4 v{vKoff+k}, s[{sKs}:{sKs+3}], s{sTmp} offen offset:{k*1024} nt lds")
        else:
            g(f"s_add_u32 m0, s{sRV2 if nxt else sRV}, {j*4096}")
            g(f"s_add_u32 s{sTmp}, s{sbase}, {j*4096}")
            for k in range(4):
                g(f"buffer_load_dwordx4 v{vVoff+(k&1)}, s[{sVs}:{sVs+3}], s{sTmp} offen offset:{k*1024} nt lds")
    def headB(i):
        dmaB(i & 3, sT if i < 4 else sNext, i >= 4)
    for i in range(min(HPD, 2)):
        headB(i)
    g(f"s_load_dword s{sTag}, s[{P_WS}:{P_WS+1}], {WS_EPOCH}")
    for i in range(2):
        g(f"v_add_u32 v46, {4*i}, v45")
        g("v_lshlrev_b32 v46, 1, v46")
        g("v_xor_b32 v46, v44, v46")
        g("v_lshlrev_b32 v46, 4, v46")
        g(f"v_lshl_add_u32 v{vVoff+i}, v45, 8, v46")
    for i in range(2, HPD):
        headB(i)
    g.srd(sWSs, P_WS, WS_SIZE)
    for c in range(4):
        g(f"v_add_u32 v46, {4*c}, v45")
        g("v_xor_b32 v46, v44, v46")
        g("v_lshlrev_b32 v46, 4, v46")
        g("v_lshl_add_u32 v46, v44, 8, v46")
        g(f"v_add_u32 v{vKrd+c}, s{sRK}, v46")
    g("v_lshrrev_b32 v46, 2, v0")
    g("v_and_b32 v47, 7, v46")
    g("v_lshlrev_b32 v46, 8, v46")
    g("v_and_b32 v43, 3, v0")
    g("v_lshl_add_u32 v46, v43, 3, v46")
    g(f"v_add_u32 v46, s{sRV}, v46")
    for db in range(8):
        g(f"v_xor_b32 v43, {db}, v47")
        g(f"v_lshl_add_u32 v{vVrd+db}, v43, 5, v46")
    g("v_and_b32 v43, 3, v0")
    g("v_lshlrev_b32 v43, 8, v43")
    g("v_lshl_add_u32 v43, v45, 4, v43")
    g(f"v_add_u32 v43, {L_QBUF}, v43")
    g(f"v_add_u32 v40, 1024, v43")
    g("v_bfe_u32 v42, v0, 2, 1")
    g(f"v_mov_b32 v41, {L_ZERO}")
    for j in range(2):
        g(f"v_cmp_eq_u32 vcc, {j}, v42")
        g("s_nop 1")
        g(f"v_cndmask_b32 v{vT+j}, v41, v43, vcc")
        g(f"v_cndmask_b32 v{vQB+j}, v41, v40, vcc")
    g(f"v_mov_b32 v{vM}, {MINIT:#x}")
    g(f"v_mov_b32 v{vL}, 0")
    g(f"v_mov_b32 v{vHeadA}, {L_HEAD}")
    g(f"v_mov_b32 v{vOne}, 1")
    for i in range(32):
        g(f"v_mov_b32 v{vAcc+i}, 0")
    g(f"s_mov_b32 s{sLog2e}, 0x3fb8aa3b")
    g(f"s_mov_b32 s{sScale}, 0x3db504f3")
    g(f"s_mov_b32 s{sThr}, 0x41000000")
    g(f"s_mov_b32 s{sCnt}, 0")
    g(f"s_mov_b32 s{sSwd}, 0")
    for i in range(4):
        g(f"s_mov_b32 s{sSEL+i}, {0x07060500 | i:#x}")
    g("s_mov_b32 s64, 0x0c0c0400")
    g("s_mov_b32 s65, 0x04000c0c")
    for i in range(HPD, 8):
        g(f"s_waitcnt vmcnt({4*(HPD-1)})")
        headB(i)
    g("s_waitcnt lgkmcnt(0)")
    g(f"s_add_u32 s{sTag}, s{sTag}, 1")
    g(f"v_mov_b32 v{vTag}, s{sTag}")
    g.stamp(1)
    g.c("barrier 1: q in LDS")
    g("s_barrier")
    g.stamp(2)
    for j in range(2):
        for c in range(4):
            g(f"ds_read_b128 {ar(16*j+4*c,4)}, v{vT+j} offset:{c*64}")
    g("s_waitcnt lgkmcnt(0)")

    g.label("L_unit")
    g("s_waitcnt vmcnt(8)")
    for c in range(4):
        g(f"ds_read_b128 {vr(vF+4*c,4)}, v{vKrd+c}")
    g(f"s_cmp_lt_u32 s{sCnt}, 2")
    g("s_cbranch_scc1 L_skip0")
    if not STATIC:
        g(f"ds_read_b32 v{vEnt}, v{vQa}")
    dmaB(3, sT, False)
    g.label("L_skip0")
    g("s_waitcnt lgkmcnt(0)")
    for c in range(4):
        srcc = "0" if c == 0 else vr(vD, 4)
        g(f"v_mfma_f32_16x16x32_bf16 {vr(vD,4)}, {vr(vF+4*c,4)}, {ar(4*c,4)}, {srcc}")
    g("s_waitcnt vmcnt(8)")
    for c in range(4):
        g(f"ds_read_b128 {vr(vF+16+4*c,4)}, v{vKrd+c} offset:4096")
    g(f"s_cmp_eq_u32 s{sCnt}, 0")
    g("s_cbranch_scc1 L_skip1")
    g(f"s_add_u32 s{sNext}, s{sT}, {USTR}")
    if STATIC:
        g(f"s_cmp_lt_u32 s{sCnt}, 15")
        g(f"s_cselect_b32 s{sNext}, s{sNext}, 0x80000000")
    else:
        g(f"s_cmp_eq_u32 s{sCnt}, 1")
        g("s_cbranch_scc1 L_static")
        g.label("L_qchk")
        g(f"v_readfirstlane_b32 s{sTmp}, v{vEnt}")
        g(f"s_lshr_b32 s{sTmp2}, s{sPop}, 2")
        g(f"s_add_u32 s{sTmp2}, s{sTmp2}, 1")
        g(f"s_lshr_b32 s{sNext}, s{sTmp}, 16")
        g(f"s_cmp_lg_u32 s{sNext}, s{sTmp2}")
        g("s_cbranch_scc1 L_qwait")
        g.label("L_qgo")
        g(f"s_and_b32 s{sTmp}, s{sTmp}, 0xffff")
        g(f"s_and_b32 s{sTmp2}, s{sPop}, 3")
        g(f"s_add_u32 s{sTmp}, s{sTmp}, s{sTmp2}")
        g(f"s_lshl_b32 s{sNext}, s{sTmp}, 13")
        g(f"s_add_u32 s{sNext}, s{sNext}, s{sBase}")
        g(f"s_cmp_lt_u32 s{sTmp}, {NU}")
        g(f"s_cselect_b32 s{sNext}, s{sNext}, 0x80000000")
        g.label("L_static")
    dmaB(0, sNext, True)
    g.label("L_skip1")
    g("s_waitcnt lgkmcnt(0)")
    for c in range(4):
        g(f"v_mfma_f32_16x16x32_bf16 {vr(vD,4)}, {vr(vF+16+4*c,4)}, {ar(16+4*c,4)}, {vr(vD,4)}")
    g("s_waitcnt vmcnt(8)")
    for db in range(8):
        g(f"ds_read_b64_tr_b16 {vr(vF+4*db,2)}, v{vVrd+db}")
    g(f"s_cmp_eq_u32 s{sCnt}, 0")
    g("s_cbranch_scc1 L_skip2")
    dmaB(1, sNext, True)
    g.label("L_skip2")
    g("s_nop 3")
    e = vT
    g(f"v_cvt_pk_bf16_f32 v{vT+4}, v{vD}, v{vD+1}")
    g(f"v_cvt_pk_bf16_f32 v{vT+5}, v{vD+2}, v{vD+3}")
    g(f"v_lshlrev_b32 v{e}, 16, v{vT+4}")
    g(f"v_and_b32 v{e+1}, 0xffff0000, v{vT+4}")
    g(f"v_lshlrev_b32 v{e+2}, 16, v{vT+5}")
    g(f"v_and_b32 v{e+3}, 0xffff0000, v{vT+5}")
    for i in range(4):
        g(f"v_mul_f32 v{e+i}, s{sScale}, v{e+i}")
    g(f"v_cvt_pk_bf16_f32 v{vT+4}, v{e}, v{e+1}")
    g(f"v_cvt_pk_bf16_f32 v{vT+5}, v{e+2}, v{e+3}")
    g(f"v_lshlrev_b32 v{e}, 16, v{vT+4}")
    g(f"v_and_b32 v{e+1}, 0xffff0000, v{vT+4}")
    g(f"v_lshlrev_b32 v{e+2}, 16, v{vT+5}")
    g(f"v_and_b32 v{e+3}, 0xffff0000, v{vT+5}")
    g(f"v_max3_f32 v{vT+6}, v{e}, v{e+1}, v{e+2}")
    g(f"v_max_f32 v{vT+6}, v{vT+6}, v{e+3}")
    g(f"v_fma_f32 v{vT+7}, v{vT+6}, s{sLog2e}, -v{vM}")
    g(f"v_cmp_lt_f32 vcc, s{sThr}, v{vT+7}")
    g("s_cbranch_vccnz L_rescale")
    g.label("L_back")
    for i in range(4):
        g(f"v_fma_f32 v{e+i}, v{e+i}, s{sLog2e}, -v{vM}")
    for i in range(4):
        g(f"v_exp_f32 v{e+i}, v{e+i}")
    g("s_nop 0")
    g(f"v_cvt_pk_bf16_f32 v{vP01}, v{e}, v{e+1}")
    g(f"v_cvt_pk_bf16_f32 v{vP01+1}, v{e+2}, v{e+3}")
    g(f"v_add_f32 v{vT+4}, v{e}, v{e+1}")
    g(f"v_add_f32 v{vT+5}, v{e+2}, v{e+3}")
    g(f"v_mov_b32_dpp v{vP01+2}, v{vP01} row_ror:12 row_mask:0xf bank_mask:0xf")
    g(f"v_mov_b32_dpp v{vP01+3}, v{vP01+1} row_ror:12 row_mask:0xf bank_mask:0xf")
    g(f"v_add_f32 v{vT+4}, v{vT+4}, v{vT+5}")
    g(f"v_add_f32 v{vL}, v{vL}, v{vT+4}")
    g("s_waitcnt vmcnt(8)")
    for db in range(8):
        g(f"ds_read_b64_tr_b16 {vr(vF+4*db+2,2)}, v{vVrd+db} offset:4096")
    g(f"s_cmp_eq_u32 s{sCnt}, 0")
    g("s_cbranch_scc1 L_skip3")
    if not STATIC:
        g("s_mov_b64 exec, 1")
        g(f"ds_add_rtn_u32 v{vPop}, v{vHeadA}, v{vOne}")
        g("s_mov_b64 exec, -1")
    dmaB(2, sNext, True)
    g.label("L_skip3")
    for i in range(12):
        g(f"v_xor_b32 v{vKrd+i}, 0x2000, v{vKrd+i}")
    for r_ in (sRK, sRV, sRK2, sRV2):
        g(f"s_xor_b32 s{r_}, s{r_}, 0x2000")
    g("s_waitcnt lgkmcnt(0)")
    for db in range(8):
        g(f"v_mfma_f32_16x16x32_bf16 {vr(vAcc+4*db,4)}, {vr(vF+4*db,4)}, {vr(vP01,4)}, {vr(vAcc+4*db,4)}")
    if not STATIC:
        g(f"v_readfirstlane_b32 s{sPop}, v{vPop}")
        g(f"s_mov_b32 s{sT}, s{sNext}")
        g(f"s_and_b32 s{sTmp}, s{sPop}, 60")
        g(f"s_add_u32 s{sTmp}, s{sTmp}, {L_Q}")
        g(f"v_mov_b32 v{vQa}, s{sTmp}")
    else:
        g(f"s_mov_b32 s{sT}, s{sNext}")
    g(f"s_add_u32 s{sCnt}, s{sCnt}, 1")
    g(f"s_cmp_lt_u32 s{sT}, s{sBaseB}")
    g("s_cbranch_scc1 L_unit")
    g(f"s_cmp_eq_u32 s{sSwd}, 0")
    g("s_cbranch_scc1 L_switch")
    g.label("L_after_switch")
    g(f"s_cmp_lt_u32 s{sT}, 0x80000000")
    g("s_cbranch_scc1 L_unit")
    g("s_branch L_Sdone")

    if not STATIC:
        g.label("L_qwait")
        g("s_mov_b32 s70, 0x40000")
        g.label("L_qw1")
        g("s_sleep 1")
        g(f"ds_read_b32 v{vEnt}, v{vQa}")
        g("s_waitcnt lgkmcnt(0)")
        g(f"v_readfirstlane_b32 s{sTmp}, v{vEnt}")
        g("s_sub_u32 s70, s70, 1")
        g(f"s_lshr_b32 s{sNext}, s{sTmp}, 16")
        g(f"s_cmp_eq_u32 s{sNext}, s{sTmp2}")
        g("s_cbranch_scc1 L_qgo")
        g("s_cmp_lg_u32 s70, 0")
        g("s_cbranch_scc1 L_qw1")
        g(f"s_mov_b32 s{sTmp}, {NU}")
        g("s_branch L_qgo")

    g.label("L_rescale")
    g(f"v_mul_f32 v{vT+6}, s{sLog2e}, v{vT+6}")
    g("s_nop 1")
    g(f"v_max_f32_dpp v{vT+7}, v{vT+6}, v{vT+6} row_ror:4 row_mask:0xf bank_mask:0xf")
    g(f"v_mov_b32 v{vT+6}, v{vT+7}")
    g("s_nop 1")
    g(f"v_permlane16_swap_b32 v{vT+6}, v{vT+7}")
    g(f"v_max_f32 v{vT+6}, v{vT+6}, v{vT+7}")
    g(f"v_mov_b32 v{vT+7}, v{vT+6}")
    g("s_nop 1")
    g(f"v_permlane32_swap_b32 v{vT+6}, v{vT+7}")
    g(f"v_max3_f32 v{vT+6}, v{vT+6}, v{vT+7}, v{vM}")
    g(f"v_sub_f32 v{vT+7}, v{vM}, v{vT+6}")
    g(f"v_exp_f32 v{vT+7}, v{vT+7}")
    g(f"v_mov_b32 v{vM}, v{vT+6}")
    g(f"v_mul_f32 v{vL}, v{vL}, v{vT+7}")
    for i in range(32):
        g(f"v_mul_f32 v{vAcc+i}, v{vAcc+i}, v{vT+7}")
    g("s_branch L_back")

    def reduce_l():
        g(f"v_add_f32_dpp v{vT}, v{vL}, v{vL} row_ror:4 row_mask:0xf bank_mask:0xf")
        g(f"v_mov_b32 v{vL}, v{vT}")
        g("s_nop 1")
        g(f"v_permlane16_swap_b32 v{vL}, v{vT}")
        g(f"v_add_f32 v{vL}, v{vL}, v{vT}")
        g(f"v_mov_b32 v{vT}, v{vL}")
        g("s_nop 1")
        g(f"v_permlane32_swap_b32 v{vL}, v{vT}")
        g(f"v_add_f32 v{vL}, v{vL}, v{vT}")

    g.label("L_switch")
    for j in range(2):
        for c in range(4):
            g(f"ds_read_b128 {ar(16*j+4*c,4)}, v{vQB+j} offset:{c*64}")
    reduce_l()
    g("s_nop 7")
    g(f"v_accvgpr_write_b32 a64, v{vM}")
    g(f"v_accvgpr_write_b32 a65, v{vL}")
    for i in range(32):
        g(f"v_accvgpr_write_b32 a{32+i}, v{vAcc+i}")
    for i in range(32):
        g(f"v_mov_b32 v{vAcc+i}, 0")
    g(f"v_mov_b32 v{vM}, {MINIT:#x}")
    g(f"v_mov_b32 v{vL}, 0")
    g(f"s_mov_b32 s{sSwd}, 1")
    if dbg:
        g(f"s_mov_b32 s86, s{sCnt}")
    g("s_waitcnt lgkmcnt(0)")
    g("s_branch L_after_switch")

    g.label("L_Sdone")
    g.stamp(3)
    if dbg:
        g(f"s_mov_b32 s85, s{sCnt}")
    reduce_l()
    g(f"v_and_b32 v{vT+1}, 15, v0")
    g(f"v_lshrrev_b32 v{vT+2}, 4, v0")
    g(f"v_lshlrev_b32 v{vT+3}, 9, v{vT+1}")
    g(f"v_lshl_add_u32 v{vT+3}, v{vT+2}, 4, v{vT+3}")
    g(f"v_add_u32 v{vT+3}, s{sRK0}, v{vT+3}")
    g(f"s_lshl_b32 s{sTmp}, s{sSW}, 5")
    g(f"s_add_u32 s{sTmp}, s{sTmp}, {L_ML}")
    g(f"v_lshl_add_u32 v{vT+4}, v{vT+1}, 3, s{sTmp}")
    g(f"v_cmp_gt_u32 vcc, 4, v{vT+1}")
    g("s_waitcnt vmcnt(0)")
    g("s_and_saveexec_b64 s[68:69], vcc")
    for db in range(8):
        g(f"ds_write_b128 v{vT+3}, {ar(32+4*db,4)} offset:{db*64}")
    g(f"ds_write_b64 v{vT+4}, a[64:65]")
    for db in range(8):
        g(f"ds_write_b128 v{vT+3}, {vr(vAcc+4*db,4)} offset:{2048+db*64}")
    g(f"ds_write_b64 v{vT+4}, {vr(vM,2)} offset:128")
    g("s_mov_b64 exec, s[68:69]")
    g(f"s_lshl_b32 s{sTmp}, s{sSW}, 10")
    g(f"v_lshl_add_u32 v4, v0, 4, s{sTmp}")
    g(f"v_add_u32 v6, 65536, v4")
    g(f"s_lshr_b32 s{sTmp2}, s{sSW}, 1")
    g(f"s_and_b32 s{sTmp}, s{sSW}, 1")
    g(f"s_lshl_b32 s{sTmp}, s{sTmp}, 1")
    g(f"v_lshrrev_b32 v2, 5, v0")
    g(f"v_add_u32 v2, s{sTmp}, v2")
    g(f"s_lshl_b32 s{sTmp}, s{sTmp2}, 7")
    g(f"s_add_u32 s{sTmp}, s{sTmp}, {L_ML}")
    g(f"v_lshl_add_u32 v5, v2, 3, s{sTmp}")
    g(f"s_lshl_b32 s{sT}, s{sGRP}, 1")
    g(f"s_add_u32 s{sT}, s{sT}, s{sTmp2}")
    g(f"s_lshl_b32 s{sNext}, s{sT}, 14")
    g(f"s_lshl_b32 s{sTmp}, s{sX}, 11")
    g(f"s_add_u32 s{sNext}, s{sNext}, s{sTmp}")
    g(f"s_and_b32 s{sTmp}, s{sSW}, 1")
    g(f"s_lshl_b32 s{sTmp}, s{sTmp}, 10")
    g(f"s_add_u32 s{sNext}, s{sNext}, s{sTmp}")
    g(f"s_add_u32 s{sNext}, s{sNext}, {WS_RO}")
    g("v_lshlrev_b32 v8, 4, v0")
    g(f"s_lshl_b32 s{sT}, s{sT}, 9")
    g(f"s_lshl_b32 s{sTmp}, s{sX}, 4")
    g(f"s_add_u32 s{sT}, s{sT}, s{sTmp}")
    g(f"s_add_u32 s{sT}, s{sT}, {WS_ML}")
    g("v_lshlrev_b32 v7, 7, v2")
    g("v_and_b32 v3, 31, v0")
    g("v_cmp_eq_u32 s[66:67], 0, v3")
    g("s_waitcnt lgkmcnt(0)")
    g.c("barrier 2")
    g("s_barrier")
    g.stamp(4)
    for w in range(4):
        g(f"ds_read_b64 v[{64+2*w}:{65+2*w}], v5 offset:{w*32}")
    g(f"ds_read_b128 v[48:51], v4")
    g(f"ds_read_b128 v[52:55], v4 offset:32768")
    g(f"ds_read_b128 v[56:59], v6")
    g(f"ds_read_b128 v[60:63], v6 offset:32768")
    g("s_waitcnt lgkmcnt(4)")
    g("v_max3_f32 v72, v64, v66, v68")
    g("v_max_f32 v72, v72, v70")
    g("v_and_b32 v72, 0xffffff00, v72")
    for w in range(4):
        g(f"v_sub_f32 v{74+w}, v{64+2*w}, v72")
    for w in range(4):
        g(f"v_exp_f32 v{74+w}, v{74+w}")
    g("s_waitcnt lgkmcnt(0)")
    for i in range(4):
        g(f"v_mul_f32 v{80+i}, v74, v{48+i}")
    for w in range(1, 4):
        for i in range(4):
            g(f"v_fmac_f32 v{80+i}, v{74+w}, v{48+4*w+i}")
    for i in range(4):
        tagit(80+i, 80+i, i)
    g(f"buffer_store_dwordx4 v[80:83], v8, s[{sWSs}:{sWSs+3}], s{sNext} offen sc1")
    g("v_mul_f32 v73, v74, v65")
    for w in range(1, 4):
        g(f"v_fmac_f32 v73, v{74+w}, v{65+2*w}")
    tagit(84, 72, 0)
    tagit(85, 73, 1)
    tagit(86, 72, 2)
    tagit(87, 72, 3)
    g("s_mov_b64 exec, s[66:67]")
    g(f"buffer_store_dwordx4 v[84:87], v7, s[{sWSs}:{sWSs+3}], s{sT} offen sc1")
    g("s_mov_b64 exec, -1")
    g("s_branch L_gather")

    g.label("L_H")
    sHW = sWAVE
    sA, sBs = 24, 28
    sU, sU2, sU3 = 58, 59, 60
    g("v_mov_b32 v24, 0")
    g("v_lshlrev_b32 v25, 2, v0")
    g(f"v_add_u32 v25, {L_ZERO}, v25")
    g("ds_write_b32 v25, v24")
    g("v_and_b32 v25, 12, v25")
    g(f"ds_write_b32 v25, v24 offset:{L_FLAG - 65536*2 + 0}" if False else f"v_add_u32 v25, {L_FLAG}, v25")
    g("ds_write_b32 v25, v24")
    g("v_and_b32 v2, 15, v0")
    g("v_lshrrev_b32 v3, 4, v0")
    for i in range(4):
        g(f"s_mov_b32 s{sSEL+i}, {0x07060500 | i:#x}")
    g("s_mov_b32 s64, 0x0c0c0400")
    g("s_mov_b32 s65, 0x04000c0c")
    g("s_waitcnt lgkmcnt(0)")
    g(f"s_cmp_lt_u32 s{sA_}, 8")
    g("s_cbranch_scc1 L_Hb0")
    g("s_sub_u32 s20, s2, 128")
    g(f"s_cmp_ge_u32 s20, {0 if NOFFN else 28}")
    g("s_cbranch_scc1 L_Hnb0")
    g.label("L_Hb0")
    g("s_barrier")
    g.label("L_Hnb0")
    g(f"s_load_dword s{sTag}, s[{P_WS}:{P_WS+1}], {WS_EPOCH}")
    g.srd(sWSs, P_WS, WS_SIZE)
    g("v_lshrrev_b32 v4, 3, v0")
    g("v_and_b32 v5, 7, v0")
    g("v_lshlrev_b32 v5, 4, v5")
    g("v_lshrrev_b32 v6, 2, v2")
    g("v_lshl_add_u32 v6, v3, 3, v6")
    g("v_lshlrev_b32 v6, 7, v6")
    g("v_and_b32 v7, 3, v0")
    g("v_lshl_add_u32 v6, v7, 3, v6")
    g(f"s_cmp_lg_u32 s{sHW}, 0")
    g("s_cbranch_scc1 L_H123")
    g(f"s_cmp_ge_u32 s{sA_}, 8")
    g("s_cbranch_scc1 L_H0np")
    g(f"s_bitcmp1_b32 s{sX}, 0")
    g("s_cbranch_scc1 L_nocnt")
    g(f"s_lshl_b32 s{sU2}, s{sA_}, 3")
    g(f"s_add_u32 s{sU2}, s{sU2}, s{sX}")
    g(f"s_lshl_b32 s{sU2}, s{sU2}, 11")
    g(f"s_add_u32 s{sU2}, s{sU2}, {WS_CNT}")
    g("v_mov_b32 v8, 96")
    g("s_mov_b64 exec, 1")
    g(f"buffer_store_dword v8, v24, s[{sWSs}:{sWSs+3}], s{sU2} offen sc1")
    g("s_mov_b64 exec, -1")
    g.label("L_nocnt")
    g("v_lshlrev_b32 v8, 2, v7")
    g(f"v_add_u32 v8, {L_FLAG}, v8")
    g("v_lshlrev_b32 v9, 4, v0")
    g(f"v_add_u32 v9, {L_ST}, v9")
    g("v_lshlrev_b32 v10, 14, v3")
    g("v_lshl_add_u32 v10, v2, 4, v10")
    g(f"s_lshl_b32 s{sU}, s{sX}, 11")
    g(f"s_lshl_b32 s{sU2}, s{sA_}, 8")
    g(f"s_add_u32 s{sU}, s{sU}, s{sU2}")
    g(f"s_add_u32 s{sU}, s{sU}, {WS_QG}")
    g(f"s_add_u32 s{sU2}, s{sU}, 65536")
    g("s_mov_b32 s20, 0x05040c00")
    g("s_mov_b32 s21, 0x07060c01")
    g("s_mov_b32 s22, 0x05040c02")
    g("s_mov_b32 s23, 0x07060c03")
    g("s_waitcnt lgkmcnt(0)")
    g(f"s_add_u32 s{sTag}, s{sTag}, 1")
    g(f"v_mov_b32 v{vTag}, s{sTag}")
    g("s_mov_b32 s70, 0x40000")
    g.label("L_pf")
    g("ds_read_b32 v11, v8")
    g("s_sub_u32 s70, s70, 1")
    g("s_waitcnt lgkmcnt(0)")
    g(f"v_cmp_ne_u32 vcc, 1, v11")
    g("s_cbranch_vccz L_pfok")
    g("s_cmp_lg_u32 s70, 0")
    g("s_cbranch_scc1 L_pf")
    g.label("L_pfok")
    g.stamp(1)
    for hb in range(2):
        for w in range(4):
            g(f"ds_read_b128 {vr(32+16*hb+4*w,4)}, v9 offset:{w*2048 + hb*1024}")
    g("s_waitcnt lgkmcnt(0)")
    for hb in range(2):
        b0 = 32 + 16*hb
        for i in range(4):
            g(f"v_add_f32 v{b0+i}, v{b0+i}, v{b0+4+i}")
            g(f"v_add_f32 v{b0+8+i}, v{b0+8+i}, v{b0+12+i}")
        for i in range(4):
            g(f"v_add_f32 v{b0+i}, v{b0+i}, v{b0+8+i}")
        g(f"v_cvt_pk_bf16_f32 v{b0+4}, v{b0}, v{b0+1}")
        g(f"v_cvt_pk_bf16_f32 v{b0+5}, v{b0+2}, v{b0+3}")
        g(f"v_perm_b32 v{b0+8}, v{b0+4}, v{vTag}, s20")
        g(f"v_perm_b32 v{b0+9}, v{b0+4}, v{vTag}, s21")
        g(f"v_perm_b32 v{b0+10}, v{b0+5}, v{vTag}, s22")
        g(f"v_perm_b32 v{b0+11}, v{b0+5}, v{vTag}, s23")
    g("s_waitcnt vmcnt(0)")
    g(f"buffer_store_dwordx4 v[40:43], v10, s[{sWSs}:{sWSs+3}], s{sU} offen sc1")
    g(f"buffer_store_dwordx4 v[56:59], v10, s[{sWSs}:{sWSs+3}], s{sU2} offen sc1")
    g.stamp(2)
    g("s_branch L_H0q")
    g.label("L_H0np")
    if QSLEEP0:
        g(f"s_sleep {QSLEEP0}")
    g("s_waitcnt lgkmcnt(0)")
    g(f"s_add_u32 s{sTag}, s{sTag}, 1")
    g(f"v_mov_b32 v{vTag}, s{sTag}")
    g.label("L_H0q")
    g(f"s_lshl_b32 s{sU2}, s{sGRP}, 12")
    g(f"s_add_u32 s{sU2}, s{sU2}, {WS_QG}")
    g("v_lshlrev_b32 v26, 4, v0")
    g("v_lshlrev_b32 v25, 3, v0")
    g(f"v_add_u32 v25, {L_QBUF}, v25")
    g("s_mov_b32 s20, 0x07060302")
    g("s_mov_b32 s71, 15")
    g("s_mov_b32 s70, 0x40000")
    g.label("L_pollq")
    for u in range(4):
        g(f"s_bitcmp1_b32 s71, {u}")
        g(f"s_cbranch_scc0 L_qa{u}")
        g(f"buffer_load_dwordx4 {vr(32+4*u,4)}, v26, s[{sWSs}:{sWSs+3}], s{sU2} offen offset:{u*1024} sc1")
        g.label(f"L_qa{u}")
    g("s_waitcnt vmcnt(0)")
    for u in range(4):
        tagchk(27, 32+4*u, True, 28, 29)
        g("v_cmp_ne_u32 vcc, 0, v27")
        g(f"s_cbranch_vccnz L_qb{u}")
        g(f"s_bitset0_b32 s71, {u}")
        g.label(f"L_qb{u}")
    g("s_cmp_eq_u32 s71, 0")
    g("s_cbranch_scc1 L_qok")
    g("s_sub_u32 s70, s70, 1")
    g("s_cmp_lg_u32 s70, 0")
    g("s_cbranch_scc1 L_pollq")
    g.label("L_qok")
    g.stamp(3)
    for u in range(4):
        g(f"v_perm_b32 v{48+2*u}, v{33+4*u}, v{32+4*u}, s20")
        g(f"v_perm_b32 v{49+2*u}, v{35+4*u}, v{34+4*u}, s20")
        g(f"ds_write_b64 v25, {vr(48+2*u,2)} offset:{u*512}")
    g("s_waitcnt lgkmcnt(0)")
    g("s_barrier")
    g.stamp(4)
    g.srd(sA, P_X, 8192)
    g.srd(sBs, P_GW, 1024)
    g("v_lshlrev_b32 v8, 4, v0")
    g(f"s_lshl_b32 s{sU2}, s{sB}, 10")
    g(f"buffer_load_dwordx4 v[16:19], v8, s[{sA}:{sA+3}], s{sU2} offen")
    g(f"buffer_load_dwordx4 v[20:23], v8, s[{sBs}:{sBs+3}], 0 offen")
    g("s_waitcnt vmcnt(0)")
    for i in range(4):
        g(f"v_lshlrev_b32 v{24+2*i}, 16, v{16+i}")
        g(f"v_and_b32 v{25+2*i}, 0xffff0000, v{16+i}")
        g(f"v_lshlrev_b32 v{32+2*i}, 16, v{20+i}")
        g(f"v_and_b32 v{33+2*i}, 0xffff0000, v{20+i}")
    for i in range(8):
        g(f"v_mul_f32 v{24+i}, v{24+i}, v{32+i}")
    for i in range(4):
        g(f"v_cvt_pk_bf16_f32 v{32+i}, v{24+2*i}, v{25+2*i}")
    for i in range(4):
        g(f"v_lshlrev_b32 v{24+2*i}, 16, v{32+i}")
        g(f"v_and_b32 v{25+2*i}, 0xffff0000, v{32+i}")
    g("v_add_f32 v24, v24, v25")
    g("v_add_f32 v26, v26, v27")
    g("v_add_f32 v28, v28, v29")
    g("v_add_f32 v30, v30, v31")
    g("v_add_f32 v24, v24, v26")
    g("v_add_f32 v28, v28, v30")
    g("v_add_f32 v24, v24, v28")
    for rot in (1, 2, 4, 8):
        g("s_nop 1")
        g(f"v_add_f32_dpp v25, v24, v24 row_ror:{rot} row_mask:0xf bank_mask:0xf")
        g("v_mov_b32 v24, v25")
    g("s_nop 1")
    g("v_permlane16_swap_b32 v24, v25")
    g("v_add_f32 v24, v24, v25")
    g("v_mov_b32 v25, v24")
    g("s_nop 1")
    g("v_permlane32_swap_b32 v24, v25")
    g("v_add_f32 v24, v24, v25")
    g("v_cvt_pk_bf16_f32 v24, v24, v24")
    g("v_and_b32 v24, 0xffff0000, v24")
    g("v_mul_f32 v24, 0xbfb8aa3b, v24")
    g("v_exp_f32 v24, v24")
    g("s_nop 0")
    g("v_add_f32 v24, 1.0, v24")
    g("v_rcp_f32 v24, v24")
    g("s_nop 0")
    g("v_cvt_pk_bf16_f32 v24, v24, v24")
    g("v_and_b32 v10, 0xffff0000, v24")
    g("v_sub_f32 v11, 1.0, v10")
    g("v_cvt_pk_bf16_f32 v11, v11, v11")
    g("v_and_b32 v11, 0xffff0000, v11")

    def inbox_reduce(tag, off, nchunk2, sleep, dst, presleep=0):
        g(f"s_lshl_b32 s{sU2}, s2, 12")
        g(f"s_add_u32 s{sU2}, s{sU2}, {WS_PAB + off}")
        g("v_lshlrev_b32 v8, 4, v0")
        if nchunk2 < 64:
            g(f"v_cmp_gt_u32 s[66:67], {nchunk2}, v0")
            g(f"v_min_u32 v9, {nchunk2-1}, v0")
            g("v_lshlrev_b32 v9, 4, v9")
        g("s_mov_b32 s70, 0x40000")
        for _ in range(presleep):
            g("s_sleep 127")
        g.label(f"L_polli{tag}")
        g(f"buffer_load_dwordx4 v[16:19], v8, s[{sWSs}:{sWSs+3}], s{sU2} offen sc1")
        g(f"buffer_load_dwordx4 v[20:23], {'v9' if nchunk2 < 64 else 'v8'}, s[{sWSs}:{sWSs+3}], s{sU2} offen offset:1024 sc1")
        g("s_waitcnt vmcnt(0)")
        tagchk(24, 16, True, 25, 26)
        tagchk(24, 20, False, 25, 26)
        g("v_cmp_ne_u32 vcc, 0, v24")
        g(f"s_cbranch_vccz L_iok{tag}")
        g(f"s_sleep {sleep}")
        g("s_sub_u32 s70, s70, 1")
        g("s_cmp_lg_u32 s70, 0")
        g(f"s_cbranch_scc1 L_polli{tag}")
        g.label(f"L_iok{tag}")
        if tag == "a": g.stamp(13)
        if nchunk2 < 64:
            for i in range(4):
                g(f"v_cndmask_b32 v{20+i}, 0, v{20+i}, s[66:67]")
        for i in range(4):
            g(f"v_add_f32 v{16+i}, v{16+i}, v{20+i}")
        g("s_nop 0")
        for i in range(4):
            g(f"v_add_f32_dpp v{20+i}, v{16+i}, v{16+i} row_ror:4 row_mask:0xf bank_mask:0xf")
        g("s_nop 0")
        for i in range(4):
            g(f"v_add_f32_dpp v{16+i}, v{20+i}, v{20+i} row_ror:8 row_mask:0xf bank_mask:0xf")
        for i in range(4):
            g(f"v_mov_b32 v{20+i}, v{16+i}")
        g("s_nop 0")
        for i in range(4):
            g(f"v_permlane16_swap_b32 v{16+i}, v{20+i}")
        for i in range(4):
            g(f"v_add_f32 v{16+i}, v{16+i}, v{20+i}")
        for i in range(4):
            g(f"v_mov_b32 v{20+i}, v{16+i}")
        g("s_nop 0")
        for i in range(4):
            g(f"v_permlane32_swap_b32 v{16+i}, v{20+i}")
        for i in range(4):
            g(f"v_add_f32 v{dst+i}, v{16+i}, v{20+i}")
    g.stamp(5)
    if not NOFFN:
        inbox_reduce("b", 2048, 48, 32, 12, presleep=3)
    g.stamp(6)
    g("s_branch L_Hbar2")

    g.label("L_H123")
    g(f"s_cmp_lg_u32 s{sHW}, 2")
    g("s_cbranch_scc1 L_H13")
    g("v_mov_b32 v8, 0")
    g("v_lshlrev_b32 v9, 2, v0")
    g(f"v_min_u32 v9, {L_Q + 60 - L_HEAD}, v9")
    g(f"v_add_u32 v9, {L_HEAD}, v9")
    g("ds_write_b32 v9, v8")
    g(f"v_mov_b32 v9, {L_HEAD}")
    g(f"s_lshl_b32 s{sU}, s{sGRP}, 12")
    g(f"s_add_u32 s{sU}, s{sU}, {WS_CNT}")
    g("s_mov_b32 s20, 0")
    g("s_mov_b32 s70, 0x100000")
    g("s_waitcnt lgkmcnt(0)")
    g(f"s_add_u32 s{sTag}, s{sTag}, 1")
    g(f"v_mov_b32 v{vTag}, s{sTag}")
    g("s_barrier")
    g.stamp(4)
    if not STATIC:
        g("s_mov_b64 exec, 1")
        g("s_branch L_Dclaim")
        g.label("L_Dloop")
        g("ds_read_b32 v10, v9")
        g("s_sub_u32 s70, s70, 1")
        g("s_waitcnt lgkmcnt(0)")
        g("v_readfirstlane_b32 s21, v10")
        g("s_cmp_eq_u32 s70, 0")
        g("s_cbranch_scc1 L_Ddone")
        g("s_sub_u32 s21, s20, s21")
        g(f"s_cmp_lt_i32 s21, {TH}")
        g("s_cbranch_scc1 L_Dclaim")
        g("s_sleep 1")
        g("s_branch L_Dloop")
        g.label("L_Dclaim")
        g("v_mov_b32 v11, 4")
        g(f"buffer_atomic_add v11, v8, s[{sWSs}:{sWSs+3}], s{sU} offen sc0 sc1")
        g("s_and_b32 s22, s20, 60")
        g(f"s_add_u32 s22, s22, {L_Q}")
        g("v_mov_b32 v12, s22")
        g("s_add_u32 s20, s20, 4")
        g("s_lshl_b32 s23, s20, 14")
        g("s_waitcnt vmcnt(0)")
        g(f"v_min_u32 v11, {NU}, v11")
        g("v_or_b32 v13, s23, v11")
        g("ds_write_b32 v12, v13")
        g(f"v_cmp_gt_u32 vcc, {NU}, v11")
        g("s_cbranch_vccnz L_Dloop")
        g("s_and_b32 s22, s20, 60")
        g(f"s_add_u32 s22, s22, {L_Q}")
        g("v_mov_b32 v12, s22")
        g("v_add_u32 v13, 0x10000, v13")
        g("ds_write_b32 v12, v13")
        g.label("L_Ddone")
        g("s_mov_b64 exec, -1")
        g("s_waitcnt lgkmcnt(0)")
    g.stamp(5)
    g("s_branch L_Hbar2")

    g.label("L_H13")
    g("s_waitcnt lgkmcnt(0)")
    g(f"s_add_u32 s{sTag}, s{sTag}, 1")
    g(f"v_mov_b32 v{vTag}, s{sTag}")
    g("s_barrier")
    g.stamp(4)
    g(f"s_cmp_eq_u32 s{sHW}, 3")
    g("s_cbranch_scc1 L_Hbar2")
    g.label("L_H1wo")
    g.srd(sA, P_WO, 4096 * 512 * 2)
    g("v_lshl_add_u32 v8, v4, 10, v5")
    g(f"s_lshl_b32 s{sU}, s{sX}, 2")
    g(f"s_add_u32 s{sU}, s{sU}, s{sSPLIT}")
    g(f"s_lshl_b32 s{sU}, s{sU}, 17")
    g(f"s_lshl_b32 s{sU2}, s{sB}, 7")
    g(f"s_add_u32 s{sU}, s{sU}, s{sU2}")
    for i in range(16):
        g(f"s_mov_b32 m0, {L_ST + i*1024}")
        g(f"s_add_u32 s{sU2}, s{sU}, {i*8192}")
        g(f"buffer_load_dwordx4 v8, s[{sA}:{sA+3}], s{sU2} offen nt lds")
    g("s_waitcnt vmcnt(0)")
    g.stamp(5)

    g.label("L_Hbar2")
    g(f"s_lshl_b32 s{sU}, s{sHW}, 5")
    g(f"s_add_u32 s{sU}, s{sU}, {L_ST}")
    g(f"v_add_u32 v9, s{sU}, v6")
    g.stamp(7)
    g.c("barrier 2")
    g("s_barrier")
    for kb in range(4):
        g(f"ds_read_b64_tr_b16 {vr(32+4*kb,2)}, v9 offset:{kb*4096}")
        g(f"ds_read_b64_tr_b16 {vr(34+4*kb,2)}, v9 offset:{kb*4096+512}")

    g.label("L_gather")
    g.stamp(8)
    g(f"s_lshl_b32 s58, s{sWAVE}, 3")
    g(f"s_add_u32 s58, s58, s{sX}")
    g(f"s_lshl_b32 s59, s58, 2")
    g(f"s_add_u32 s59, s59, s{sSPLIT}")
    g(f"s_lshl_b32 s59, s59, 7")
    g(f"s_add_u32 s59, s59, {WS_ML}")
    g(f"s_lshl_b32 s58, s58, 14")
    g(f"s_lshl_b32 s60, s{sSPLIT}, 9")
    g(f"s_add_u32 s58, s58, s60")
    g(f"s_add_u32 s60, s58, {WS_RO}")
    g(f"s_add_u32 s61, s58, {WS_RO + 4096}")
    g(f"s_add_u32 s62, s58, {WS_RO + 8192}")
    g(f"s_add_u32 s63, s58, {WS_RO + 12288}")
    g("v_lshrrev_b32 v50, 5, v0")
    g("v_and_b32 v51, 31, v0")
    g("v_lshlrev_b32 v48, 11, v50")
    g("v_lshl_add_u32 v48, v51, 4, v48")
    g("v_and_b32 v49, 3, v0")
    g("v_lshl_add_u32 v49, v49, 1, v50")
    g("v_lshlrev_b32 v49, 4, v49")
    g("s_mov_b32 s71, 15")
    g("s_mov_b32 s68, 0")
    g("s_mov_b32 s70, 0x40000")
    if dbg: g("s_mov_b32 s87, 0")
    g.label("L_pollr")
    if dbg: g("s_add_u32 s87, s87, 1")
    g("s_andn2_b32 s69, s71, s68")
    g("s_bcnt1_i32_b32 s69, s69")
    g(f"s_cmp_le_u32 s69, {GEAGER}")
    g("s_cselect_b32 s69, 15, s68")
    g("s_and_b32 s69, s69, s71")
    g("s_cmp_eq_u32 s68, 15")
    g("s_cbranch_scc1 L_pr4")
    g(f"buffer_load_dwordx4 {vr(72,4)}, v49, s[{sWSs}:{sWSs+3}], s59 offen sc1")
    g.label("L_pr4")
    for s_ in range(4):
        g(f"s_bitcmp1_b32 s69, {s_}")
        g(f"s_cbranch_scc0 L_pr{s_}")
        g(f"buffer_load_dwordx4 {vr(56+4*s_,4)}, v48, s[{sWSs}:{sWSs+3}], s{60+s_} offen sc1")
        g.label(f"L_pr{s_}")
    g("s_waitcnt vmcnt(0)")
    tagchk(52, 72, True, 53, 54)
    g("v_cmp_eq_u32 vcc, 0, v52")
    g("s_and_b32 s68, vcc_lo, vcc_hi")
    g("s_and_b32 s68, s68, 15")
    for s_ in range(4):
        g(f"s_bitcmp1_b32 s69, {s_}")
        g(f"s_cbranch_scc0 L_pq{s_}")
        tagchk(52, 56+4*s_, True, 53, 54)
        g("v_cmp_ne_u32 vcc, 0, v52")
        g(f"s_cbranch_vccnz L_pq{s_}")
        g(f"s_bitset0_b32 s71, {s_}")
        g.label(f"L_pq{s_}")
    g("s_xor_b32 s69, s68, 15")
    g("s_or_b32 s69, s69, s71")
    g("s_cmp_eq_u32 s69, 0")
    g("s_cbranch_scc1 L_rok")
    if RSLEEP:
        g(f"s_sleep {RSLEEP}")
    g("s_sub_u32 s70, s70, 1")
    g("s_cmp_lg_u32 s70, 0")
    g("s_cbranch_scc1 L_pollr")
    g.label("L_rok")
    g.stamp(9)
    g("v_and_b32 v72, 0xffffff00, v72")
    g("s_nop 1")
    g("v_max_f32_dpp v52, v72, v72 quad_perm:[1,0,3,2] row_mask:0xf bank_mask:0xf")
    g("s_nop 1")
    g("v_max_f32_dpp v53, v52, v52 quad_perm:[2,3,0,1] row_mask:0xf bank_mask:0xf")
    g("v_mov_b32 v52, v53")
    g("s_nop 1")
    g("v_permlane32_swap_b32 v52, v53")
    g("v_max_f32 v52, v52, v53")
    g("v_sub_f32 v52, v72, v52")
    g("v_exp_f32 v52, v52")
    g("s_nop 0")
    g("v_mul_f32 v53, v52, v73")
    g("s_nop 0")
    for i in range(4):
        g(f"v_mul_f32_dpp v{76+i}, v52, v{56+i} quad_perm:[0,0,0,0] row_mask:0xf bank_mask:0xf")
    g("v_add_f32_dpp v54, v53, v53 quad_perm:[1,0,3,2] row_mask:0xf bank_mask:0xf")
    for s_ in range(1, 4):
        for i in range(4):
            g(f"v_fmac_f32_dpp v{76+i}, v52, v{56+4*s_+i} quad_perm:[{s_},{s_},{s_},{s_}] row_mask:0xf bank_mask:0xf")
        if s_ == 1:
            g("v_add_f32_dpp v53, v54, v54 quad_perm:[2,3,0,1] row_mask:0xf bank_mask:0xf")
    g("v_mov_b32 v54, v53")
    for i in range(4):
        g(f"v_mov_b32 v{56+i}, v{76+i}")
    g("s_nop 0")
    g("v_permlane32_swap_b32 v53, v54")
    for i in range(4):
        g(f"v_permlane32_swap_b32 v{76+i}, v{56+i}")
    g("v_add_f32 v53, v53, v54")
    g("v_rcp_f32 v53, v53")
    for i in range(4):
        g(f"v_add_f32 v{76+i}, v{76+i}, v{56+i}")
    for i in range(4):
        g(f"v_mul_f32 v{76+i}, v53, v{76+i}")
    g("v_cvt_pk_bf16_f32 v52, v76, v77")
    g("v_cvt_pk_bf16_f32 v53, v78, v79")
    g(f"s_lshl_b32 s58, s{sWAVE}, 8")
    g(f"s_add_u32 s58, s58, {L_OBUF}")
    g(f"v_lshl_add_u32 v50, v51, 3, s58")
    g("ds_write_b64 v50, v[52:53]")
    g("s_waitcnt lgkmcnt(0)")
    g.c("barrier 3")
    g("s_barrier")
    g.stamp(10)
    g(f"s_cmp_ge_u32 s{sWAVE}, 4")
    g("s_cbranch_scc1 L_fin")
    g("v_and_b32 v9, 7, v0")
    g("v_lshlrev_b32 v9, 8, v9")
    g("v_lshl_add_u32 v9, v3, 4, v9")
    for kb in range(4):
        g(f"ds_read_b128 {vr(48+4*kb,4)}, v9 offset:{L_OBUF + kb*64}")
    g("v_lshlrev_b32 v8, 17, v2")
    g("v_lshl_add_u32 v8, v3, 4, v8")
    g(f"s_lshl_b32 s{sU}, s{sHW}, 3")
    g(f"s_add_u32 s{sU}, s{sU}, s{sB}")
    g(f"s_lshl_b32 s{sU}, s{sU}, 12")
    g(f"s_lshl_b32 s{sU2}, s{sX}, 2")
    g(f"s_add_u32 s{sU2}, s{sU2}, s{sSPLIT}")
    g(f"s_lshl_b32 s{sU2}, s{sU2}, 6")
    g(f"s_add_u32 s{sU}, s{sU}, s{sU2}")
    g(f"s_add_u32 s{sU}, s{sU}, {WS_PAB}")
    g("v_cmp_gt_u32 s[66:67], 8, v2")
    g("s_waitcnt lgkmcnt(0)")
    for kb in range(4):
        srcc = "0" if kb == 0 else "v[64:67]"
        g(f"v_mfma_f32_16x16x32_bf16 v[64:67], {vr(32+4*kb,4)}, {vr(48+4*kb,4)}, {srcc}")
    g("s_nop 7")
    g("s_nop 3")
    for i in range(4):
        tagit(64+i, 64+i, i)
    g("s_mov_b64 exec, s[66:67]")
    g(f"buffer_store_dwordx4 v[64:67], v8, s[{sWSs}:{sWSs+3}], s{sU} offen sc1")
    g("s_mov_b64 exec, -1")
    g.stamp(11)
    g(f"s_cmp_lg_u32 s{sHW}, 0")
    g("s_cbranch_scc1 L_fin")
    g.srd(sA, P_OUT, 8192)
    inbox_reduce("a", 0, 64, ASLEEP, 24)
    g(f"s_lshl_b32 s{sU}, s{sB}, 10")
    g(f"s_lshl_b32 s{sU2}, s{sX}, 7")
    g(f"s_add_u32 s{sU}, s{sU}, s{sU2}")
    g(f"s_lshl_b32 s{sU2}, s{sSPLIT}, 5")
    g(f"s_add_u32 s{sU}, s{sU}, s{sU2}")
    g("v_lshlrev_b32 v8, 3, v0")
    for i in range(4):
        g(f"v_cvt_pk_bf16_f32 v{16+i}, v{24+i}, v{12+i}")
    for i in range(4):
        g(f"v_lshlrev_b32 v{20+i}, 16, v{16+i}")
        g(f"v_and_b32 v{24+i}, 0xffff0000, v{16+i}")
    for i in range(4):
        g(f"v_mul_f32 v{20+i}, v10, v{20+i}")
        g(f"v_mul_f32 v{24+i}, v11, v{24+i}")
    for i in range(4):
        g(f"v_cvt_pk_bf16_f32 v{16+i}, v{20+i}, v{24+i}")
    for i in range(4):
        g(f"v_lshlrev_b32 v{20+i}, 16, v{16+i}")
        g(f"v_and_b32 v{24+i}, 0xffff0000, v{16+i}")
    for i in range(4):
        g(f"v_add_f32 v{20+i}, v{20+i}, v{24+i}")
    g("v_cvt_pk_bf16_f32 v16, v20, v21")
    g("v_cvt_pk_bf16_f32 v17, v22, v23")
    g("s_mov_b64 exec, 15")
    g(f"buffer_store_dwordx2 v[16:17], v8, s[{sA}:{sA+3}], s{sU} offen")
    g("s_cmp_lg_u32 s2, 0")
    g("s_cbranch_scc1 L_noep")
    g("s_mov_b64 exec, 1")
    g(f"buffer_store_dword v{vTag}, v8, s[{sWSs}:{sWSs+3}], 0 offen offset:{WS_EPOCH} sc1")
    g.label("L_noep")
    if dbg:
        g("s_waitcnt vmcnt(0)")
    g.stamp(12)
    g.label("L_fin")
    g.stamp_out(sWSs)
    g.label("L_end")
    g("s_endpgm")
    g.o.append('.section .rodata,"a"')
    g.o.append(".p2align 6")
    g.o.append(f".amdhsa_kernel {KN}")
    for l in ("next_free_vgpr 256", "next_free_sgpr 96", "accum_offset 128", "group_segment_fixed_size 0",
              "kernarg_size 104", "user_sgpr_count 2", "user_sgpr_kernarg_segment_ptr 1",
              "system_sgpr_workgroup_id_x 1"):
        g.o.append("  .amdhsa_" + l)
    g.o.append(".end_amdhsa_kernel")
    return "\n".join(g.o) + "\n"


if __name__ == "__main__":
    out = sys.argv[1] if len(sys.argv) > 1 else "k4.s"
    open(out, "w").write(gen(dbg=int(sys.argv[2]) if len(sys.argv) > 2 else 0))
```

```python
import sys, os

KN = "gated_mix__gqa_block_cached__geglu_ffn__decode_kernel"

WS_EPOCH = 0
WS_CNT = 0x20000
WS_QG = 0x40000
WS_ML = 0x60000
WS_RO = 0x80000
WS_PAB = 0x200000
WS_SIZE = 0x300000

L_H = 131072
L_QBUF = L_H
L_ZERO = L_H + 2048
L_ML = L_H + 2304
L_FLAG = L_H + 2560
L_HEAD = L_H + 2576
L_Q = L_H + 2624
L_HB = L_H + 3072
L_ST = L_H + 4096
L_OBUF = 16384
LDS_TOTAL = 163840

HPD = int(os.environ.get("HPD", "2"))
RSLEEP = int(os.environ.get("RSLEEP", "2"))
ASLEEP = int(os.environ.get("ASLEEP", "1"))
QSLEEP0 = int(os.environ.get("QSLEEP0", "40"))
TH = int(os.environ.get("TH", "4"))
PDF = int(os.environ.get("PDF", "5"))
NOFFN = int(os.environ.get("NOFFN", "0"))
STATIC = int(os.environ.get("STATIC", "0"))
SDELAY = int(os.environ.get("SDELAY", "0"))
FDELAY = int(os.environ.get("FDELAY", "0"))
GEAGER = int(os.environ.get("GEAGER", "1"))
KPOL = os.environ.get("KPOL", "nt").replace("+", " ").replace("def", "")
VPOL = os.environ.get("VPOL", "nt").replace("+", " ").replace("def", "")
WPOL = os.environ.get("WPOL", "nt").replace("+", " ").replace("def", "")
NS = 7
NU = 512
MINIT = 0xf149f2ca


class G:
    def __init__(self):
        self.o = []
    def __call__(self, s):
        self.o.append("    " + s)
    def label(self, s):
        self.o.append(s + ":")
    def c(self, s):
        self.o.append("    ; " + s)
    def stamp(self, i):
        if not self.stamps: return
        self("s_memrealtime s[90:91]")
        self("s_waitcnt lgkmcnt(0)")
        self(f"s_mov_b32 s{72+i}, s90")
    def stamp_out(self, sWSs):
        if not self.stamps: return
        self("s_lshl_b32 s90, s2, 9")
        self("s_lshl_b32 s91, s3, 6")
        self("s_add_u32 s90, s90, s91")
        self("s_add_u32 s90, s90, 0x180000")
        self("s_mov_b64 exec, 1")
        self("v_mov_b32 v1, 0")
        for i in range(16):
            self(f"v_mov_b32 v2, s{72+i}")
            self(f"buffer_store_dword v2, v1, s[{sWSs}:{sWSs+3}], s90 offen offset:{4*i}")
            self("s_nop 1")
    def srd(self, d, p, nbytes):
        self(f"s_mov_b32 s{d}, s{p}")
        self(f"s_and_b32 s{d+1}, s{p+1}, 0xffff")
        self(f"s_mov_b32 s{d+2}, {nbytes:#x}")
        self(f"s_mov_b32 s{d+3}, 0x20000")


def vr(a, n=1):
    return f"v{a}" if n == 1 else f"v[{a}:{a+n-1}]"
def ar(a, n=1):
    return f"a{a}" if n == 1 else f"a[{a}:{a+n-1}]"


def gen(dbg=0):
    g = G()
    g.stamps = dbg
    g.o.append(f"; @launch grid=(256,1,1) block=(512,1,1) lds={LDS_TOTAL}")
    g.o.append('.amdgcn_target "amdgcn-amd-amdhsa--gfx950"')
    g.o.append(".text")
    g.o.append(f".globl {KN}")
    g.o.append(".p2align 8")
    g.o.append(f".type {KN},@function")
    g.label(KN)
    P_X, P_K, P_V, P_WQ, P_WO, P_WG, P_WU, P_WD, P_GW, P_OUT, P_DBG, P_WS = 32, 34, 36, 38, 40, 44, 46, 48, 50, 52, 54, 56
    sWAVE, sX, sA_, sB, sSPLIT = 3, 4, 5, 6, 7
    sKs, sVs, sWSs = 8, 12, 16
    sTag, sGRP = 88, 89
    sSEL = 92
    vTag = 126

    def tagit(dst, src, i):
        g(f"v_perm_b32 v{dst}, v{src}, v{vTag}, s{sSEL+i}")

    def tagchk(acc, r, first, t0, t1):
        g(f"v_perm_b32 v{t0}, v{r+1}, v{r}, s64")
        g(f"v_perm_b32 v{t1}, v{r+3}, v{r+2}, s65")
        if first:
            g(f"v_or_b32 v{acc}, v{t0}, v{t1}")
            g(f"v_xor_b32 v{acc}, v{vTag}, v{acc}")
        else:
            g(f"v_or_b32 v{t0}, v{t0}, v{t1}")
            g(f"v_xor_b32 v{t0}, v{vTag}, v{t0}")
            g(f"v_or_b32 v{acc}, v{acc}, v{t0}")

    g("s_cmp_ge_u32 s2, 256")
    g("s_cbranch_scc1 L_end")
    g("s_load_dwordx16 s[32:47], s[0:1], 0")
    g("s_load_dwordx2 s[56:57], s[0:1], 96")
    g("s_load_dwordx8 s[48:55], s[0:1], 64")
    g("v_lshrrev_b32 v1, 6, v0")
    g("v_and_b32 v0, 63, v0")
    g(f"v_readfirstlane_b32 s{sWAVE}, v1")
    g(f"s_and_b32 s{sX}, s2, 7")
    g(f"s_lshr_b32 s{sA_}, s2, 3")
    g(f"s_lshr_b32 s{sB}, s{sA_}, 2")
    g(f"s_and_b32 s{sSPLIT}, s{sA_}, 3")
    g(f"s_lshl_b32 s{sGRP}, s{sX}, 2")
    g(f"s_add_u32 s{sGRP}, s{sGRP}, s{sA_}")
    g(f"s_and_b32 s{sGRP}, s{sGRP}, 31")
    if dbg:
        for i in range(16): g(f"s_mov_b32 s{72+i}, 0")
    g.stamp(0)
    g(f"s_cmp_lt_u32 s{sWAVE}, 4")
    g("s_cbranch_scc1 L_H")
    sSW = 29
    g(f"s_sub_u32 s{sSW}, s{sWAVE}, 4")

    vKoff, vVoff, vKrd, vVrd = 2, 6, 8, 12
    vM, vL = 20, 21
    vPop, vEnt = 22, 23
    vD = 24
    vP01 = 28
    vHeadA, vOne, vQa = 32, 33, 34
    vT = 36
    vF = 48
    vAcc = 80
    vQB = 112
    sT, sNext, sRK, sRV, sTmp, sCnt, sLog2e, sScale, sThr = 20, 21, 22, 23, 24, 25, 26, 27, 28
    sBase, sBaseB, sRK2, sRV2, sRK0, sPop, sSwd, sTmp2 = 58, 59, 60, 61, 62, 63, 30, 31
    g.c("---- S wave setup ----")
    g(f"s_lshl_b32 s{sRK}, s{sSW}, 15")
    g("v_and_b32 v44, 15, v0")
    g("v_lshrrev_b32 v45, 4, v0")
    g("v_lshrrev_b32 v118, 3, v0")
    g("v_and_b32 v113, 7, v0")
    g(f"s_cmp_ge_u32 s{sA_}, 8")
    g("s_cbranch_scc1 L_Snoq")
    g("v_lshlrev_b32 v112, 13, v118")
    g("v_lshl_add_u32 v112, v113, 4, v112")
    g(f"s_lshl_b32 s{sT}, s{sX}, 10")
    g(f"s_lshl_b32 s{sTmp}, s{sA_}, 7")
    g(f"s_add_u32 s{sT}, s{sT}, s{sTmp}")
    g(f"s_lshl_b32 s{sTmp}, s{sSW}, 20")
    g(f"s_add_u32 s{sT}, s{sT}, s{sTmp}")
    g(f"s_mov_b32 m0, s{sRK}")
    g("v_lshlrev_b32 v113, 10, v113")
    g("v_lshl_add_u32 v113, v45, 4, v113")
    g(f"s_lshl_b32 s{sTmp}, s{sSW}, 8")
    g("s_waitcnt lgkmcnt(0)")
    g.srd(sVs, P_X, 8192)
    g.srd(sKs, P_WQ, 512 * 4096 * 2)
    for i in range(4):
        g(f"buffer_load_dwordx4 {vr(96+4*i,4)}, v113, s[{sVs}:{sVs+3}], s{sTmp} offen offset:{i*64}")
    for i in range(16):
        g(f"buffer_load_dwordx4 v112, s[{sKs}:{sKs+3}], s{sT} offen {WPOL} lds")
        if i < 15:
            g(f"s_add_u32 m0, m0, 1024")
            g(f"s_add_u32 s{sT}, s{sT}, 65536")
    def prejob_addrs():
        g("v_lshrrev_b32 v114, 2, v44")
        g("v_lshl_add_u32 v114, v45, 3, v114")
        g("v_lshlrev_b32 v114, 7, v114")
        g("v_and_b32 v115, 3, v0")
        g("v_lshl_add_u32 v114, v115, 3, v114")
        g(f"v_add_u32 v114, s{sRK}, v114")
        g(f"s_lshl_b32 s{sTmp}, s{sSW}, 11")
        g(f"s_add_u32 s{sTmp}, s{sTmp}, {L_ST}")
        g("v_lshlrev_b32 v115, 8, v44")
        g("v_lshl_add_u32 v115, v45, 4, v115")
        g(f"v_add_u32 v115, s{sTmp}, v115")
        g(f"s_lshl_b32 s{sTmp}, s{sSW}, 2")
        g(f"s_add_u32 s{sTmp}, s{sTmp}, {L_FLAG}")
        g(f"v_mov_b32 v116, s{sTmp}")
        g("v_mov_b32 v117, 1")
        g("v_cmp_gt_u32 s[66:67], 8, v44")
        g.c("barrier 0: flags zeroed")
        g("s_barrier")
    def prejob_mm(nkb, xf, acc, after):
        for kb in range(nkb):
            fr = vF + 16 * (kb & 1)
            g(f"s_waitcnt vmcnt({4*(nkb-1-kb) + after})")
            for ct in range(4):
                g(f"ds_read_b64_tr_b16 {vr(fr+4*ct,2)}, v114 offset:{kb*4096 + ct*32}")
                g(f"ds_read_b64_tr_b16 {vr(fr+4*ct+2,2)}, v114 offset:{kb*4096 + ct*32 + 512}")
            g("s_waitcnt lgkmcnt(0)")
            for ct in range(4):
                srcc = "0" if kb == 0 else vr(acc+4*ct, 4)
                g(f"v_mfma_f32_16x16x32_bf16 {vr(acc+4*ct,4)}, {vr(fr+4*ct,4)}, {vr(xf+4*kb,4)}, {srcc}")
    def prejob_pub(acc):
        g("s_mov_b64 exec, s[66:67]")
        for ct in range(4):
            g(f"ds_write_b128 v115, {vr(acc+4*ct,4)} offset:{ct*64}")
        g("s_mov_b64 exec, 1")
        g("s_waitcnt lgkmcnt(0)")
        g("ds_write_b32 v116, v117")
        g("s_mov_b64 exec, -1")
    prejob_addrs()
    prejob_mm(4, 96, 80, 0)
    g.stamp(5)
    g("s_nop 7")
    g("s_nop 3")
    prejob_pub(80)
    g.stamp(6)
    g("s_branch L_Sgo")

    g.label("L_Snoq")
    sG = 21
    g(f"s_sub_u32 s{sG}, s2, 128")
    g(f"s_cmp_ge_u32 s{sG}, {0 if NOFFN else 28}")
    g("s_cbranch_scc1 L_Snof")
    g("s_movk_i32 s61, 3584")
    g("v_mul_u32_u24 v112, s61, v118")
    g("v_lshl_add_u32 v112, v113, 4, v112")
    g("v_lshlrev_b32 v119, 10, v118")
    g("v_lshl_add_u32 v119, v113, 4, v119")
    g("v_lshlrev_b32 v113, 10, v113")
    g("v_lshl_add_u32 v113, v45, 4, v113")
    g(f"s_and_b32 s{sTmp2}, s{sSW}, 1")
    g(f"s_mul_i32 s{sT}, s{sTmp2}, {256*3584}")
    g(f"s_lshl_b32 s{sTmp}, s{sG}, 7")
    g(f"s_add_u32 s{sT}, s{sT}, s{sTmp}")
    g(f"s_lshl_b32 s{sTmp}, s{sTmp2}, 9")
    g(f"s_mov_b32 m0, s{sRK}")
    if FDELAY:
        g(f"s_sleep {FDELAY}")
    g("s_waitcnt lgkmcnt(0)")
    g(f"s_load_dword s{sTag}, s[{P_WS}:{P_WS+1}], {WS_EPOCH}")
    g.srd(sVs, P_X, 8192)
    g(f"s_cmp_ge_u32 s{sSW}, 2")
    g(f"s_cselect_b32 s{sKs}, s{P_WU}, s{P_WG}")
    g(f"s_cselect_b32 s{sKs+1}, s{P_WU+1}, s{P_WG+1}")
    g(f"s_and_b32 s{sKs+1}, s{sKs+1}, 0xffff")
    g(f"s_mov_b32 s{sKs+2}, {512*1792*2:#x}")
    g(f"s_mov_b32 s{sKs+3}, 0x20000")
    XF = 4
    for i in range(8):
        g(f"buffer_load_dwordx4 {vr(XF+4*i,4)}, v113, s[{sVs}:{sVs+3}], s{sTmp} offen offset:{i*64}")
    for i in range(32):
        g(f"buffer_load_dwordx4 v112, s[{sKs}:{sKs+3}], s{sT} offen {WPOL} lds")
        if i < 31:
            g(f"s_add_u32 m0, m0, 1024")
            g(f"s_add_u32 s{sT}, s{sT}, {8*3584}")
    prejob_addrs()
    g.srd(sVs, P_WD, 1792 * 512 * 2)
    g.srd(sWSs, P_WS, WS_SIZE)
    for i in range(4):
        g(f"s_mov_b32 s{sSEL+i}, {0x07060500 | i:#x}")
    prejob_mm(8, XF, 80, 0)
    g.stamp(5)
    g(f"s_lshl_b32 s{sT}, s{sG}, 16")
    g(f"s_lshl_b32 s{sTmp}, s{sSW}, 8")
    g(f"s_add_u32 s{sT}, s{sT}, s{sTmp}")
    g(f"s_mov_b32 m0, s{sRK}")
    for i in range(16):
        g(f"s_add_u32 s{sTmp}, s{sT}, {(i & 7)*8192 + (i >> 3)*128}")
        g(f"buffer_load_dwordx4 v119, s[{sVs}:{sVs+3}], s{sTmp} offen {WPOL} lds")
        if i < 15:
            g(f"s_add_u32 m0, m0, 1024")
    prejob_pub(80)
    g("v_and_b32 v116, 3, v0")
    g("v_lshlrev_b32 v116, 2, v116")
    g(f"v_add_u32 v116, {L_FLAG}, v116")
    g("v_and_b32 v115, 7, v0")
    g("v_lshlrev_b32 v115, 8, v115")
    g("v_lshl_add_u32 v115, v45, 5, v115")
    g(f"v_add_u32 v115, {L_ST}, v115")
    g(f"s_add_u32 s{sTag}, s{sTag}, 1")
    g(f"v_mov_b32 v{vTag}, s{sTag}")
    g("s_mov_b32 s70, 0x40000")
    g.label("L_ff")
    g("ds_read_b32 v117, v116")
    g("s_sub_u32 s70, s70, 1")
    g("s_waitcnt lgkmcnt(0)")
    g("v_cmp_ne_u32 vcc, 1, v117")
    g("s_cbranch_vccz L_ffok")
    g("s_sleep 1")
    g("s_cmp_lg_u32 s70, 0")
    g("s_cbranch_scc1 L_ff")
    g.label("L_ffok")
    GA, UA, T = 4, 20, 80
    for w in range(4):
        dst = (GA, 48, UA, 64)[w]
        for q4 in range(4):
            g(f"ds_read_b128 {vr(dst+4*q4,4)}, v115 offset:{w*2048 + (q4>>1)*128 + (q4&1)*16}")
    g("s_waitcnt lgkmcnt(0)")
    for i in range(16):
        g(f"v_add_f32 v{GA+i}, v{GA+i}, v{48+i}")
        g(f"v_add_f32 v{UA+i}, v{UA+i}, v{64+i}")
    for i in range(8):
        g(f"v_cvt_pk_bf16_f32 v{48+i}, v{GA+2*i}, v{GA+2*i+1}")
        g(f"v_cvt_pk_bf16_f32 v{56+i}, v{UA+2*i}, v{UA+2*i+1}")
    for i in range(8):
        g(f"v_lshlrev_b32 v{GA+2*i}, 16, v{48+i}")
        g(f"v_and_b32 v{GA+2*i+1}, 0xffff0000, v{48+i}")
        g(f"v_lshlrev_b32 v{UA+2*i}, 16, v{56+i}")
        g(f"v_and_b32 v{UA+2*i+1}, 0xffff0000, v{56+i}")
    g("s_mov_b32 s61, 0x3d372713")
    g("s_mov_b32 s63, 0x40135761")
    for i in range(16):
        x = GA + i
        g(f"v_mul_f32 v{T+i}, v{x}, v{x}")
        g(f"v_mul_f32 v{T+i}, v{T+i}, v{x}")
        g(f"v_fma_f32 v{T+i}, v{T+i}, s61, v{x}")
        g(f"v_mul_f32 v{T+i}, s63, v{T+i}")
    for i in range(16):
        g(f"v_exp_f32 v{T+i}, v{T+i}")
    g("s_nop 0")
    for i in range(16):
        g(f"v_add_f32 v{T+i}, 1.0, v{T+i}")
    for i in range(16):
        g(f"v_rcp_f32 v{T+i}, v{T+i}")
    g("s_nop 0")
    for i in range(16):
        g(f"v_sub_f32 v{T+i}, 1.0, v{T+i}")
        g(f"v_mul_f32 v{T+i}, v{GA+i}, v{T+i}")
    for i in range(8):
        g(f"v_cvt_pk_bf16_f32 v{48+i}, v{T+2*i}, v{T+2*i+1}")
    for i in range(8):
        g(f"v_lshlrev_b32 v{T+2*i}, 16, v{48+i}")
        g(f"v_and_b32 v{T+2*i+1}, 0xffff0000, v{48+i}")
    for i in range(16):
        g(f"v_mul_f32 v{T+i}, v{T+i}, v{UA+i}")
    for i in range(8):
        g(f"v_cvt_pk_bf16_f32 v{4+i}, v{T+2*i}, v{T+2*i+1}")
    for t in range(4):
        cb2, kb = t >> 1, t & 1
        fr = vF + 16 * (t & 1)
        acc = 80 + 16 * cb2
        g(f"s_waitcnt vmcnt({4*(3-t)})")
        for ct in range(4):
            g(f"ds_read_b64_tr_b16 {vr(fr+4*ct,2)}, v114 offset:{t*4096 + ct*32}")
            g(f"ds_read_b64_tr_b16 {vr(fr+4*ct+2,2)}, v114 offset:{t*4096 + ct*32 + 512}")
        g("s_waitcnt lgkmcnt(0)")
        for ct in range(4):
            srcc = "0" if kb == 0 else vr(acc+4*ct, 4)
            g(f"v_mfma_f32_16x16x32_bf16 {vr(acc+4*ct,4)}, {vr(fr+4*ct,4)}, {vr(4+4*kb,4)}, {srcc}")
    g("v_lshlrev_b32 v112, 17, v44")
    g("v_lshl_add_u32 v112, v45, 4, v112")
    g(f"s_lshl_b32 s{sT}, s{sG}, 6")
    g(f"s_lshl_b32 s{sTmp}, s{sSW}, 13")
    g(f"s_add_u32 s{sT}, s{sT}, s{sTmp}")
    g(f"s_add_u32 s{sT}, s{sT}, {WS_PAB + 2048}")
    g("s_nop 7")
    g("s_nop 3")
    g("s_mov_b64 exec, s[66:67]")
    for cb2 in range(2):
        for ct in range(4):
            d = 80 + 16*cb2 + 4*ct
            for i in range(4):
                tagit(d+i, d+i, i)
            g(f"s_add_u32 s{sTmp}, s{sT}, {cb2*4096 + ct*32768}")
            g(f"buffer_store_dwordx4 {vr(d,4)}, v112, s[{sWSs}:{sWSs+3}], s{sTmp} offen sc1")
    g("s_mov_b64 exec, -1")
    g("s_waitcnt vmcnt(0)")
    g.stamp(6)
    g("s_branch L_Sgo")
    g.label("L_Snof")
    if SDELAY:
        g(f"s_sleep {SDELAY}")
    g.label("L_Sgo")
    for i in range(4):
        g(f"v_add_u32 v46, {4*i}, v45")
        g("v_xor_b32 v46, v44, v46")
        g("v_lshlrev_b32 v46, 4, v46")
        g(f"v_lshl_add_u32 v{vKoff+i}, v45, 8, v46")
    g(f"s_mov_b32 s{sRK0}, s{sRK}")
    g(f"s_add_u32 s{sRV}, s{sRK}, 16384")
    g(f"s_add_u32 s{sRK2}, s{sRK}, 8192")
    g(f"s_add_u32 s{sRV2}, s{sRV}, 8192")
    g(f"s_lshl_b32 s{sBase}, s{sGRP}, 22")
    g(f"s_add_u32 s{sBaseB}, s{sBase}, 0x200000")
    g(f"s_lshl_b32 s{sTmp}, s{sX}, 2")
    g(f"s_add_u32 s{sTmp}, s{sTmp}, s{sSW}")
    g(f"s_lshl_b32 s{sTmp}, s{sTmp}, 13")
    g(f"s_add_u32 s{sT}, s{sBase}, s{sTmp}")
    USTR = 32 * 8192
    g(f"s_add_u32 s{sNext}, s{sT}, {USTR}")
    g("s_waitcnt lgkmcnt(0)")
    g.srd(sKs, P_K, 0x8000000)
    g.srd(sVs, P_V, 0x8000000)

    def dmaB(i, sbase, nxt):
        j = i & 1
        if i < 2:
            g(f"s_add_u32 m0, s{sRK2 if nxt else sRK}, {j*4096}")
            g(f"s_add_u32 s{sTmp}, s{sbase}, {j*4096}")
            for k in range(4):
                g(f"buffer_load_dwordx4 v{vKoff+k}, s[{sKs}:{sKs+3}], s{sTmp} offen offset:{k*1024} {KPOL} lds")
        else:
            g(f"s_add_u32 m0, s{sRV2 if nxt else sRV}, {j*4096}")
            g(f"s_add_u32 s{sTmp}, s{sbase}, {j*4096}")
            for k in range(4):
                g(f"buffer_load_dwordx4 v{vVoff+(k&1)}, s[{sVs}:{sVs+3}], s{sTmp} offen offset:{k*1024} {VPOL} lds")
    def headB(i):
        dmaB(i & 3, sT if i < 4 else sNext, i >= 4)
    for i in range(min(HPD, 2)):
        headB(i)
    g(f"s_load_dword s{sTag}, s[{P_WS}:{P_WS+1}], {WS_EPOCH}")
    for i in range(2):
        g(f"v_add_u32 v46, {4*i}, v45")
        g("v_lshlrev_b32 v46, 1, v46")
        g("v_xor_b32 v46, v44, v46")
        g("v_lshlrev_b32 v46, 4, v46")
        g(f"v_lshl_add_u32 v{vVoff+i}, v45, 8, v46")
    for i in range(2, HPD):
        headB(i)
    g.srd(sWSs, P_WS, WS_SIZE)
    for c in range(4):
        g(f"v_add_u32 v46, {4*c}, v45")
        g("v_xor_b32 v46, v44, v46")
        g("v_lshlrev_b32 v46, 4, v46")
        g("v_lshl_add_u32 v46, v44, 8, v46")
        g(f"v_add_u32 v{vKrd+c}, s{sRK}, v46")
    g("v_lshrrev_b32 v46, 2, v0")
    g("v_and_b32 v47, 7, v46")
    g("v_lshlrev_b32 v46, 8, v46")
    g("v_and_b32 v43, 3, v0")
    g("v_lshl_add_u32 v46, v43, 3, v46")
    g(f"v_add_u32 v46, s{sRV}, v46")
    for db in range(8):
        g(f"v_xor_b32 v43, {db}, v47")
        g(f"v_lshl_add_u32 v{vVrd+db}, v43, 5, v46")
    g("v_and_b32 v43, 3, v0")
    g("v_lshlrev_b32 v43, 8, v43")
    g("v_lshl_add_u32 v43, v45, 4, v43")
    g(f"v_add_u32 v43, {L_QBUF}, v43")
    g(f"v_add_u32 v40, 1024, v43")
    g("v_bfe_u32 v42, v0, 2, 1")
    g(f"v_mov_b32 v41, {L_ZERO}")
    for j in range(2):
        g(f"v_cmp_eq_u32 vcc, {j}, v42")
        g("s_nop 1")
        g(f"v_cndmask_b32 v{vT+j}, v41, v43, vcc")
        g(f"v_cndmask_b32 v{vQB+j}, v41, v40, vcc")
    g(f"v_mov_b32 v{vM}, {MINIT:#x}")
    g(f"v_mov_b32 v{vL}, 0")
    g(f"v_mov_b32 v{vHeadA}, {L_HEAD}")
    g(f"v_mov_b32 v{vOne}, 1")
    for i in range(32):
        g(f"v_mov_b32 v{vAcc+i}, 0")
    g(f"s_mov_b32 s{sLog2e}, 0x3fb8aa3b")
    g(f"s_mov_b32 s{sScale}, 0x3db504f3")
    g(f"s_mov_b32 s{sThr}, 0x41000000")
    g(f"s_mov_b32 s{sCnt}, 0")
    g(f"s_mov_b32 s{sSwd}, 0")
    for i in range(4):
        g(f"s_mov_b32 s{sSEL+i}, {0x07060500 | i:#x}")
    g("s_mov_b32 s64, 0x0c0c0400")
    g("s_mov_b32 s65, 0x04000c0c")
    for i in range(HPD, 8):
        g(f"s_waitcnt vmcnt({4*(HPD-1)})")
        headB(i)
    g("s_waitcnt lgkmcnt(0)")
    g(f"s_add_u32 s{sTag}, s{sTag}, 1")
    g(f"v_mov_b32 v{vTag}, s{sTag}")
    g.stamp(1)
    g.c("barrier 1: q in LDS")
    g("s_barrier")
    g.stamp(2)
    for j in range(2):
        for c in range(4):
            g(f"ds_read_b128 {ar(16*j+4*c,4)}, v{vT+j} offset:{c*64}")
    g("s_waitcnt lgkmcnt(0)")

    g.label("L_unit")
    g("s_waitcnt vmcnt(8)")
    for c in range(4):
        g(f"ds_read_b128 {vr(vF+4*c,4)}, v{vKrd+c}")
    g(f"s_cmp_lt_u32 s{sCnt}, 2")
    g("s_cbranch_scc1 L_skip0")
    if not STATIC:
        g(f"ds_read_b32 v{vEnt}, v{vQa}")
    dmaB(3, sT, False)
    g.label("L_skip0")
    g("s_waitcnt lgkmcnt(0)")
    for c in range(4):
        srcc = "0" if c == 0 else vr(vD, 4)
        g(f"v_mfma_f32_16x16x32_bf16 {vr(vD,4)}, {vr(vF+4*c,4)}, {ar(4*c,4)}, {srcc}")
    g("s_waitcnt vmcnt(8)")
    for c in range(4):
        g(f"ds_read_b128 {vr(vF+16+4*c,4)}, v{vKrd+c} offset:4096")
    g(f"s_cmp_eq_u32 s{sCnt}, 0")
    g("s_cbranch_scc1 L_skip1")
    g(f"s_add_u32 s{sNext}, s{sT}, {USTR}")
    if STATIC:
        g(f"s_cmp_lt_u32 s{sCnt}, 15")
        g(f"s_cselect_b32 s{sNext}, s{sNext}, 0x80000000")
    else:
        g(f"s_cmp_eq_u32 s{sCnt}, 1")
        g("s_cbranch_scc1 L_static")
        g.label("L_qchk")
        g(f"v_readfirstlane_b32 s{sTmp}, v{vEnt}")
        g(f"s_lshr_b32 s{sTmp2}, s{sPop}, 2")
        g(f"s_add_u32 s{sTmp2}, s{sTmp2}, 1")
        g(f"s_lshr_b32 s{sNext}, s{sTmp}, 16")
        g(f"s_cmp_lg_u32 s{sNext}, s{sTmp2}")
        g("s_cbranch_scc1 L_qwait")
        g.label("L_qgo")
        g(f"s_and_b32 s{sTmp}, s{sTmp}, 0xffff")
        g(f"s_and_b32 s{sTmp2}, s{sPop}, 3")
        g(f"s_add_u32 s{sTmp}, s{sTmp}, s{sTmp2}")
        g(f"s_lshl_b32 s{sNext}, s{sTmp}, 13")
        g(f"s_add_u32 s{sNext}, s{sNext}, s{sBase}")
        g(f"s_cmp_lt_u32 s{sTmp}, {NU}")
        g(f"s_cselect_b32 s{sNext}, s{sNext}, 0x80000000")
        g.label("L_static")
    dmaB(0, sNext, True)
    g.label("L_skip1")
    g("s_waitcnt lgkmcnt(0)")
    for c in range(4):
        g(f"v_mfma_f32_16x16x32_bf16 {vr(vD,4)}, {vr(vF+16+4*c,4)}, {ar(16+4*c,4)}, {vr(vD,4)}")
    g("s_waitcnt vmcnt(8)")
    for db in range(8):
        g(f"ds_read_b64_tr_b16 {vr(vF+4*db,2)}, v{vVrd+db}")
    g(f"s_cmp_eq_u32 s{sCnt}, 0")
    g("s_cbranch_scc1 L_skip2")
    dmaB(1, sNext, True)
    g.label("L_skip2")
    g("s_nop 3")
    e = vT
    g(f"v_cvt_pk_bf16_f32 v{vT+4}, v{vD}, v{vD+1}")
    g(f"v_cvt_pk_bf16_f32 v{vT+5}, v{vD+2}, v{vD+3}")
    g(f"v_lshlrev_b32 v{e}, 16, v{vT+4}")
    g(f"v_and_b32 v{e+1}, 0xffff0000, v{vT+4}")
    g(f"v_lshlrev_b32 v{e+2}, 16, v{vT+5}")
    g(f"v_and_b32 v{e+3}, 0xffff0000, v{vT+5}")
    for i in range(4):
        g(f"v_mul_f32 v{e+i}, s{sScale}, v{e+i}")
    g(f"v_cvt_pk_bf16_f32 v{vT+4}, v{e}, v{e+1}")
    g(f"v_cvt_pk_bf16_f32 v{vT+5}, v{e+2}, v{e+3}")
    g(f"v_lshlrev_b32 v{e}, 16, v{vT+4}")
    g(f"v_and_b32 v{e+1}, 0xffff0000, v{vT+4}")
    g(f"v_lshlrev_b32 v{e+2}, 16, v{vT+5}")
    g(f"v_and_b32 v{e+3}, 0xffff0000, v{vT+5}")
    g(f"v_max3_f32 v{vT+6}, v{e}, v{e+1}, v{e+2}")
    g(f"v_max_f32 v{vT+6}, v{vT+6}, v{e+3}")
    g(f"v_fma_f32 v{vT+7}, v{vT+6}, s{sLog2e}, -v{vM}")
    g(f"v_cmp_lt_f32 vcc, s{sThr}, v{vT+7}")
    g("s_cbranch_vccnz L_rescale")
    g.label("L_back")
    for i in range(4):
        g(f"v_fma_f32 v{e+i}, v{e+i}, s{sLog2e}, -v{vM}")
    for i in range(4):
        g(f"v_exp_f32 v{e+i}, v{e+i}")
    g("s_nop 0")
    g(f"v_cvt_pk_bf16_f32 v{vP01}, v{e}, v{e+1}")
    g(f"v_cvt_pk_bf16_f32 v{vP01+1}, v{e+2}, v{e+3}")
    g(f"v_add_f32 v{vT+4}, v{e}, v{e+1}")
    g(f"v_add_f32 v{vT+5}, v{e+2}, v{e+3}")
    g(f"v_mov_b32_dpp v{vP01+2}, v{vP01} row_ror:12 row_mask:0xf bank_mask:0xf")
    g(f"v_mov_b32_dpp v{vP01+3}, v{vP01+1} row_ror:12 row_mask:0xf bank_mask:0xf")
    g(f"v_add_f32 v{vT+4}, v{vT+4}, v{vT+5}")
    g(f"v_add_f32 v{vL}, v{vL}, v{vT+4}")
    g("s_waitcnt vmcnt(8)")
    for db in range(8):
        g(f"ds_read_b64_tr_b16 {vr(vF+4*db+2,2)}, v{vVrd+db} offset:4096")
    g(f"s_cmp_eq_u32 s{sCnt}, 0")
    g("s_cbranch_scc1 L_skip3")
    if not STATIC:
        g("s_mov_b64 exec, 1")
        g(f"ds_add_rtn_u32 v{vPop}, v{vHeadA}, v{vOne}")
        g("s_mov_b64 exec, -1")
    dmaB(2, sNext, True)
    g.label("L_skip3")
    for i in range(12):
        g(f"v_xor_b32 v{vKrd+i}, 0x2000, v{vKrd+i}")
    for r_ in (sRK, sRV, sRK2, sRV2):
        g(f"s_xor_b32 s{r_}, s{r_}, 0x2000")
    g("s_waitcnt lgkmcnt(0)")
    for db in range(8):
        g(f"v_mfma_f32_16x16x32_bf16 {vr(vAcc+4*db,4)}, {vr(vF+4*db,4)}, {vr(vP01,4)}, {vr(vAcc+4*db,4)}")
    if not STATIC:
        g(f"v_readfirstlane_b32 s{sPop}, v{vPop}")
        g(f"s_mov_b32 s{sT}, s{sNext}")
        g(f"s_and_b32 s{sTmp}, s{sPop}, 60")
        g(f"s_add_u32 s{sTmp}, s{sTmp}, {L_Q}")
        g(f"v_mov_b32 v{vQa}, s{sTmp}")
    else:
        g(f"s_mov_b32 s{sT}, s{sNext}")
    g(f"s_add_u32 s{sCnt}, s{sCnt}, 1")
    g(f"s_cmp_lt_u32 s{sT}, s{sBaseB}")
    g("s_cbranch_scc1 L_unit")
    g(f"s_cmp_eq_u32 s{sSwd}, 0")
    g("s_cbranch_scc1 L_switch")
    g.label("L_after_switch")
    g(f"s_cmp_lt_u32 s{sT}, 0x80000000")
    g("s_cbranch_scc1 L_unit")
    g("s_branch L_Sdone")

    if not STATIC:
        g.label("L_qwait")
        g("s_mov_b32 s70, 0x40000")
        g.label("L_qw1")
        g("s_sleep 1")
        g(f"ds_read_b32 v{vEnt}, v{vQa}")
        g("s_waitcnt lgkmcnt(0)")
        g(f"v_readfirstlane_b32 s{sTmp}, v{vEnt}")
        g("s_sub_u32 s70, s70, 1")
        g(f"s_lshr_b32 s{sNext}, s{sTmp}, 16")
        g(f"s_cmp_eq_u32 s{sNext}, s{sTmp2}")
        g("s_cbranch_scc1 L_qgo")
        g("s_cmp_lg_u32 s70, 0")
        g("s_cbranch_scc1 L_qw1")
        g(f"s_mov_b32 s{sTmp}, {NU}")
        g("s_branch L_qgo")

    g.label("L_rescale")
    g(f"v_mul_f32 v{vT+6}, s{sLog2e}, v{vT+6}")
    g("s_nop 1")
    g(f"v_max_f32_dpp v{vT+7}, v{vT+6}, v{vT+6} row_ror:4 row_mask:0xf bank_mask:0xf")
    g(f"v_mov_b32 v{vT+6}, v{vT+7}")
    g("s_nop 1")
    g(f"v_permlane16_swap_b32 v{vT+6}, v{vT+7}")
    g(f"v_max_f32 v{vT+6}, v{vT+6}, v{vT+7}")
    g(f"v_mov_b32 v{vT+7}, v{vT+6}")
    g("s_nop 1")
    g(f"v_permlane32_swap_b32 v{vT+6}, v{vT+7}")
    g(f"v_max3_f32 v{vT+6}, v{vT+6}, v{vT+7}, v{vM}")
    g(f"v_sub_f32 v{vT+7}, v{vM}, v{vT+6}")
    g(f"v_exp_f32 v{vT+7}, v{vT+7}")
    g(f"v_mov_b32 v{vM}, v{vT+6}")
    g(f"v_mul_f32 v{vL}, v{vL}, v{vT+7}")
    for i in range(32):
        g(f"v_mul_f32 v{vAcc+i}, v{vAcc+i}, v{vT+7}")
    g("s_branch L_back")

    def reduce_l():
        g(f"v_add_f32_dpp v{vT}, v{vL}, v{vL} row_ror:4 row_mask:0xf bank_mask:0xf")
        g(f"v_mov_b32 v{vL}, v{vT}")
        g("s_nop 1")
        g(f"v_permlane16_swap_b32 v{vL}, v{vT}")
        g(f"v_add_f32 v{vL}, v{vL}, v{vT}")
        g(f"v_mov_b32 v{vT}, v{vL}")
        g("s_nop 1")
        g(f"v_permlane32_swap_b32 v{vL}, v{vT}")
        g(f"v_add_f32 v{vL}, v{vL}, v{vT}")

    g.label("L_switch")
    for j in range(2):
        for c in range(4):
            g(f"ds_read_b128 {ar(16*j+4*c,4)}, v{vQB+j} offset:{c*64}")
    reduce_l()
    g("s_nop 7")
    g(f"v_accvgpr_write_b32 a64, v{vM}")
    g(f"v_accvgpr_write_b32 a65, v{vL}")
    for i in range(32):
        g(f"v_accvgpr_write_b32 a{32+i}, v{vAcc+i}")
    for i in range(32):
        g(f"v_mov_b32 v{vAcc+i}, 0")
    g(f"v_mov_b32 v{vM}, {MINIT:#x}")
    g(f"v_mov_b32 v{vL}, 0")
    g(f"s_mov_b32 s{sSwd}, 1")
    if dbg:
        g(f"s_mov_b32 s86, s{sCnt}")
    g("s_waitcnt lgkmcnt(0)")
    g("s_branch L_after_switch")

    g.label("L_Sdone")
    g.stamp(3)
    if dbg:
        g(f"s_mov_b32 s85, s{sCnt}")
    reduce_l()
    g(f"v_and_b32 v{vT+1}, 15, v0")
    g(f"v_lshrrev_b32 v{vT+2}, 4, v0")
    g(f"v_lshlrev_b32 v{vT+3}, 9, v{vT+1}")
    g(f"v_lshl_add_u32 v{vT+3}, v{vT+2}, 4, v{vT+3}")
    g(f"v_add_u32 v{vT+3}, s{sRK0}, v{vT+3}")
    g(f"s_lshl_b32 s{sTmp}, s{sSW}, 5")
    g(f"s_add_u32 s{sTmp}, s{sTmp}, {L_ML}")
    g(f"v_lshl_add_u32 v{vT+4}, v{vT+1}, 3, s{sTmp}")
    g(f"v_cmp_gt_u32 vcc, 4, v{vT+1}")
    g("s_waitcnt vmcnt(0)")
    g("s_and_saveexec_b64 s[68:69], vcc")
    for db in range(8):
        g(f"ds_write_b128 v{vT+3}, {ar(32+4*db,4)} offset:{db*64}")
    g(f"ds_write_b64 v{vT+4}, a[64:65]")
    for db in range(8):
        g(f"ds_write_b128 v{vT+3}, {vr(vAcc+4*db,4)} offset:{2048+db*64}")
    g(f"ds_write_b64 v{vT+4}, {vr(vM,2)} offset:128")
    g("s_mov_b64 exec, s[68:69]")
    g(f"s_lshl_b32 s{sTmp}, s{sSW}, 10")
    g(f"v_lshl_add_u32 v4, v0, 4, s{sTmp}")
    g(f"v_add_u32 v6, 65536, v4")
    g(f"s_lshr_b32 s{sTmp2}, s{sSW}, 1")
    g(f"s_and_b32 s{sTmp}, s{sSW}, 1")
    g(f"s_lshl_b32 s{sTmp}, s{sTmp}, 1")
    g(f"v_lshrrev_b32 v2, 5, v0")
    g(f"v_add_u32 v2, s{sTmp}, v2")
    g(f"s_lshl_b32 s{sTmp}, s{sTmp2}, 7")
    g(f"s_add_u32 s{sTmp}, s{sTmp}, {L_ML}")
    g(f"v_lshl_add_u32 v5, v2, 3, s{sTmp}")
    g(f"s_lshl_b32 s{sT}, s{sGRP}, 1")
    g(f"s_add_u32 s{sT}, s{sT}, s{sTmp2}")
    g(f"s_lshl_b32 s{sNext}, s{sT}, 14")
    g(f"s_lshl_b32 s{sTmp}, s{sX}, 11")
    g(f"s_add_u32 s{sNext}, s{sNext}, s{sTmp}")
    g(f"s_and_b32 s{sTmp}, s{sSW}, 1")
    g(f"s_lshl_b32 s{sTmp}, s{sTmp}, 10")
    g(f"s_add_u32 s{sNext}, s{sNext}, s{sTmp}")
    g(f"s_add_u32 s{sNext}, s{sNext}, {WS_RO}")
    g("v_lshlrev_b32 v8, 4, v0")
    g(f"s_lshl_b32 s{sT}, s{sT}, 9")
    g(f"s_lshl_b32 s{sTmp}, s{sX}, 4")
    g(f"s_add_u32 s{sT}, s{sT}, s{sTmp}")
    g(f"s_add_u32 s{sT}, s{sT}, {WS_ML}")
    g("v_lshlrev_b32 v7, 7, v2")
    g("v_and_b32 v3, 31, v0")
    g("v_cmp_eq_u32 s[66:67], 0, v3")
    g("s_waitcnt lgkmcnt(0)")
    g.c("barrier 2")
    g("s_barrier")
    g.stamp(4)
    for w in range(4):
        g(f"ds_read_b64 v[{64+2*w}:{65+2*w}], v5 offset:{w*32}")
    g(f"ds_read_b128 v[48:51], v4")
    g(f"ds_read_b128 v[52:55], v4 offset:32768")
    g(f"ds_read_b128 v[56:59], v6")
    g(f"ds_read_b128 v[60:63], v6 offset:32768")
    g("s_waitcnt lgkmcnt(4)")
    g("v_max3_f32 v72, v64, v66, v68")
    g("v_max_f32 v72, v72, v70")
    g("v_and_b32 v72, 0xffffff00, v72")
    for w in range(4):
        g(f"v_sub_f32 v{74+w}, v{64+2*w}, v72")
    for w in range(4):
        g(f"v_exp_f32 v{74+w}, v{74+w}")
    g("s_waitcnt lgkmcnt(0)")
    for i in range(4):
        g(f"v_mul_f32 v{80+i}, v74, v{48+i}")
    for w in range(1, 4):
        for i in range(4):
            g(f"v_fmac_f32 v{80+i}, v{74+w}, v{48+4*w+i}")
    for i in range(4):
        tagit(80+i, 80+i, i)
    g(f"buffer_store_dwordx4 v[80:83], v8, s[{sWSs}:{sWSs+3}], s{sNext} offen sc1")
    g("v_mul_f32 v73, v74, v65")
    for w in range(1, 4):
        g(f"v_fmac_f32 v73, v{74+w}, v{65+2*w}")
    tagit(84, 72, 0)
    tagit(85, 73, 1)
    tagit(86, 72, 2)
    tagit(87, 72, 3)
    g("s_mov_b64 exec, s[66:67]")
    g(f"buffer_store_dwordx4 v[84:87], v7, s[{sWSs}:{sWSs+3}], s{sT} offen sc1")
    g("s_mov_b64 exec, -1")
    g("s_branch L_gather")

    g.label("L_H")
    sHW = sWAVE
    sA, sBs = 24, 28
    sU, sU2, sU3 = 58, 59, 60
    g("v_mov_b32 v24, 0")
    g("v_lshlrev_b32 v25, 2, v0")
    g(f"v_add_u32 v25, {L_ZERO}, v25")
    g("ds_write_b32 v25, v24")
    g("v_and_b32 v25, 12, v25")
    g(f"ds_write_b32 v25, v24 offset:{L_FLAG - 65536*2 + 0}" if False else f"v_add_u32 v25, {L_FLAG}, v25")
    g("ds_write_b32 v25, v24")
    g("v_and_b32 v2, 15, v0")
    g("v_lshrrev_b32 v3, 4, v0")
    for i in range(4):
        g(f"s_mov_b32 s{sSEL+i}, {0x07060500 | i:#x}")
    g("s_mov_b32 s64, 0x0c0c0400")
    g("s_mov_b32 s65, 0x04000c0c")
    g("s_waitcnt lgkmcnt(0)")
    g(f"s_cmp_lt_u32 s{sA_}, 8")
    g("s_cbranch_scc1 L_Hb0")
    g("s_sub_u32 s20, s2, 128")
    g(f"s_cmp_ge_u32 s20, {0 if NOFFN else 28}")
    g("s_cbranch_scc1 L_Hnb0")
    g.label("L_Hb0")
    g("s_barrier")
    g.label("L_Hnb0")
    g(f"s_load_dword s{sTag}, s[{P_WS}:{P_WS+1}], {WS_EPOCH}")
    g.srd(sWSs, P_WS, WS_SIZE)
    g("v_lshrrev_b32 v4, 3, v0")
    g("v_and_b32 v5, 7, v0")
    g("v_lshlrev_b32 v5, 4, v5")
    g("v_lshrrev_b32 v6, 2, v2")
    g("v_lshl_add_u32 v6, v3, 3, v6")
    g("v_lshlrev_b32 v6, 7, v6")
    g("v_and_b32 v7, 3, v0")
    g("v_lshl_add_u32 v6, v7, 3, v6")
    g(f"s_cmp_lg_u32 s{sHW}, 0")
    g("s_cbranch_scc1 L_H123")
    g(f"s_cmp_ge_u32 s{sA_}, 8")
    g("s_cbranch_scc1 L_H0np")
    g(f"s_bitcmp1_b32 s{sX}, 0")
    g("s_cbranch_scc1 L_nocnt")
    g(f"s_lshl_b32 s{sU2}, s{sA_}, 3")
    g(f"s_add_u32 s{sU2}, s{sU2}, s{sX}")
    g(f"s_lshl_b32 s{sU2}, s{sU2}, 11")
    g(f"s_add_u32 s{sU2}, s{sU2}, {WS_CNT}")
    g("v_mov_b32 v8, 96")
    g("s_mov_b64 exec, 1")
    g(f"buffer_store_dword v8, v24, s[{sWSs}:{sWSs+3}], s{sU2} offen sc1")
    g("s_mov_b64 exec, -1")
    g.label("L_nocnt")
    g("v_lshlrev_b32 v8, 2, v7")
    g(f"v_add_u32 v8, {L_FLAG}, v8")
    g("v_lshlrev_b32 v9, 4, v0")
    g(f"v_add_u32 v9, {L_ST}, v9")
    g("v_lshlrev_b32 v10, 14, v3")
    g("v_lshl_add_u32 v10, v2, 4, v10")
    g(f"s_lshl_b32 s{sU}, s{sX}, 11")
    g(f"s_lshl_b32 s{sU2}, s{sA_}, 8")
    g(f"s_add_u32 s{sU}, s{sU}, s{sU2}")
    g(f"s_add_u32 s{sU}, s{sU}, {WS_QG}")
    g(f"s_add_u32 s{sU2}, s{sU}, 65536")
    g("s_mov_b32 s20, 0x05040c00")
    g("s_mov_b32 s21, 0x07060c01")
    g("s_mov_b32 s22, 0x05040c02")
    g("s_mov_b32 s23, 0x07060c03")
    g("s_waitcnt lgkmcnt(0)")
    g(f"s_add_u32 s{sTag}, s{sTag}, 1")
    g(f"v_mov_b32 v{vTag}, s{sTag}")
    g("s_mov_b32 s70, 0x40000")
    g.label("L_pf")
    g("ds_read_b32 v11, v8")
    g("s_sub_u32 s70, s70, 1")
    g("s_waitcnt lgkmcnt(0)")
    g(f"v_cmp_ne_u32 vcc, 1, v11")
    g("s_cbranch_vccz L_pfok")
    g("s_cmp_lg_u32 s70, 0")
    g("s_cbranch_scc1 L_pf")
    g.label("L_pfok")
    g.stamp(1)
    for hb in range(2):
        for w in range(4):
            g(f"ds_read_b128 {vr(32+16*hb+4*w,4)}, v9 offset:{w*2048 + hb*1024}")
    g("s_waitcnt lgkmcnt(0)")
    for hb in range(2):
        b0 = 32 + 16*hb
        for i in range(4):
            g(f"v_add_f32 v{b0+i}, v{b0+i}, v{b0+4+i}")
            g(f"v_add_f32 v{b0+8+i}, v{b0+8+i}, v{b0+12+i}")
        for i in range(4):
            g(f"v_add_f32 v{b0+i}, v{b0+i}, v{b0+8+i}")
        g(f"v_cvt_pk_bf16_f32 v{b0+4}, v{b0}, v{b0+1}")
        g(f"v_cvt_pk_bf16_f32 v{b0+5}, v{b0+2}, v{b0+3}")
        g(f"v_perm_b32 v{b0+8}, v{b0+4}, v{vTag}, s20")
        g(f"v_perm_b32 v{b0+9}, v{b0+4}, v{vTag}, s21")
        g(f"v_perm_b32 v{b0+10}, v{b0+5}, v{vTag}, s22")
        g(f"v_perm_b32 v{b0+11}, v{b0+5}, v{vTag}, s23")
    g("s_waitcnt vmcnt(0)")
    g(f"buffer_store_dwordx4 v[40:43], v10, s[{sWSs}:{sWSs+3}], s{sU} offen sc1")
    g(f"buffer_store_dwordx4 v[56:59], v10, s[{sWSs}:{sWSs+3}], s{sU2} offen sc1")
    g.stamp(2)
    g("s_branch L_H0q")
    g.label("L_H0np")
    if QSLEEP0:
        g(f"s_sleep {QSLEEP0}")
    g("s_waitcnt lgkmcnt(0)")
    g(f"s_add_u32 s{sTag}, s{sTag}, 1")
    g(f"v_mov_b32 v{vTag}, s{sTag}")
    g.label("L_H0q")
    g(f"s_lshl_b32 s{sU2}, s{sGRP}, 12")
    g(f"s_add_u32 s{sU2}, s{sU2}, {WS_QG}")
    g("v_lshlrev_b32 v26, 4, v0")
    g("v_lshlrev_b32 v25, 3, v0")
    g(f"v_add_u32 v25, {L_QBUF}, v25")
    g("s_mov_b32 s20, 0x07060302")
    g("s_mov_b32 s71, 15")
    g("s_mov_b32 s70, 0x40000")
    g.label("L_pollq")
    for u in range(4):
        g(f"s_bitcmp1_b32 s71, {u}")
        g(f"s_cbranch_scc0 L_qa{u}")
        g(f"buffer_load_dwordx4 {vr(32+4*u,4)}, v26, s[{sWSs}:{sWSs+3}], s{sU2} offen offset:{u*1024} sc1")
        g.label(f"L_qa{u}")
    g("s_waitcnt vmcnt(0)")
    for u in range(4):
        tagchk(27, 32+4*u, True, 28, 29)
        g("v_cmp_ne_u32 vcc, 0, v27")
        g(f"s_cbranch_vccnz L_qb{u}")
        g(f"s_bitset0_b32 s71, {u}")
        g.label(f"L_qb{u}")
    g("s_cmp_eq_u32 s71, 0")
    g("s_cbranch_scc1 L_qok")
    g("s_sub_u32 s70, s70, 1")
    g("s_cmp_lg_u32 s70, 0")
    g("s_cbranch_scc1 L_pollq")
    g.label("L_qok")
    g.stamp(3)
    for u in range(4):
        g(f"v_perm_b32 v{48+2*u}, v{33+4*u}, v{32+4*u}, s20")
        g(f"v_perm_b32 v{49+2*u}, v{35+4*u}, v{34+4*u}, s20")
        g(f"ds_write_b64 v25, {vr(48+2*u,2)} offset:{u*512}")
    g("s_waitcnt lgkmcnt(0)")
    g("s_barrier")
    g.stamp(4)
    g.srd(sA, P_X, 8192)
    g.srd(sBs, P_GW, 1024)
    g("v_lshlrev_b32 v8, 4, v0")
    g(f"s_lshl_b32 s{sU2}, s{sB}, 10")
    g(f"buffer_load_dwordx4 v[16:19], v8, s[{sA}:{sA+3}], s{sU2} offen")
    g(f"buffer_load_dwordx4 v[20:23], v8, s[{sBs}:{sBs+3}], 0 offen")
    g("s_waitcnt vmcnt(0)")
    for i in range(4):
        g(f"v_lshlrev_b32 v{24+2*i}, 16, v{16+i}")
        g(f"v_and_b32 v{25+2*i}, 0xffff0000, v{16+i}")
        g(f"v_lshlrev_b32 v{32+2*i}, 16, v{20+i}")
        g(f"v_and_b32 v{33+2*i}, 0xffff0000, v{20+i}")
    for i in range(8):
        g(f"v_mul_f32 v{24+i}, v{24+i}, v{32+i}")
    for i in range(4):
        g(f"v_cvt_pk_bf16_f32 v{32+i}, v{24+2*i}, v{25+2*i}")
    for i in range(4):
        g(f"v_lshlrev_b32 v{24+2*i}, 16, v{32+i}")
        g(f"v_and_b32 v{25+2*i}, 0xffff0000, v{32+i}")
    g("v_add_f32 v24, v24, v25")
    g("v_add_f32 v26, v26, v27")
    g("v_add_f32 v28, v28, v29")
    g("v_add_f32 v30, v30, v31")
    g("v_add_f32 v24, v24, v26")
    g("v_add_f32 v28, v28, v30")
    g("v_add_f32 v24, v24, v28")
    for rot in (1, 2, 4, 8):
        g("s_nop 1")
        g(f"v_add_f32_dpp v25, v24, v24 row_ror:{rot} row_mask:0xf bank_mask:0xf")
        g("v_mov_b32 v24, v25")
    g("s_nop 1")
    g("v_permlane16_swap_b32 v24, v25")
    g("v_add_f32 v24, v24, v25")
    g("v_mov_b32 v25, v24")
    g("s_nop 1")
    g("v_permlane32_swap_b32 v24, v25")
    g("v_add_f32 v24, v24, v25")
    g("v_cvt_pk_bf16_f32 v24, v24, v24")
    g("v_and_b32 v24, 0xffff0000, v24")
    g("v_mul_f32 v24, 0xbfb8aa3b, v24")
    g("v_exp_f32 v24, v24")
    g("s_nop 0")
    g("v_add_f32 v24, 1.0, v24")
    g("v_rcp_f32 v24, v24")
    g("s_nop 0")
    g("v_cvt_pk_bf16_f32 v24, v24, v24")
    g("v_and_b32 v10, 0xffff0000, v24")
    g("v_sub_f32 v11, 1.0, v10")
    g("v_cvt_pk_bf16_f32 v11, v11, v11")
    g("v_and_b32 v11, 0xffff0000, v11")

    def inbox_reduce(tag, off, nchunk2, sleep, dst, presleep=0):
        g(f"s_lshl_b32 s{sU2}, s2, 12")
        g(f"s_add_u32 s{sU2}, s{sU2}, {WS_PAB + off}")
        g("v_lshlrev_b32 v8, 4, v0")
        if nchunk2 < 64:
            g(f"v_cmp_gt_u32 s[66:67], {nchunk2}, v0")
            g(f"v_min_u32 v9, {nchunk2-1}, v0")
            g("v_lshlrev_b32 v9, 4, v9")
        g("s_mov_b32 s70, 0x40000")
        for _ in range(presleep):
            g("s_sleep 127")
        g.label(f"L_polli{tag}")
        g(f"buffer_load_dwordx4 v[16:19], v8, s[{sWSs}:{sWSs+3}], s{sU2} offen sc1")
        g(f"buffer_load_dwordx4 v[20:23], {'v9' if nchunk2 < 64 else 'v8'}, s[{sWSs}:{sWSs+3}], s{sU2} offen offset:1024 sc1")
        g("s_waitcnt vmcnt(0)")
        tagchk(24, 16, True, 25, 26)
        tagchk(24, 20, False, 25, 26)
        g("v_cmp_ne_u32 vcc, 0, v24")
        g(f"s_cbranch_vccz L_iok{tag}")
        g(f"s_sleep {sleep}")
        g("s_sub_u32 s70, s70, 1")
        g("s_cmp_lg_u32 s70, 0")
        g(f"s_cbranch_scc1 L_polli{tag}")
        g.label(f"L_iok{tag}")
        if tag == "a": g.stamp(13)
        if nchunk2 < 64:
            for i in range(4):
                g(f"v_cndmask_b32 v{20+i}, 0, v{20+i}, s[66:67]")
        for i in range(4):
            g(f"v_add_f32 v{16+i}, v{16+i}, v{20+i}")
        g("s_nop 0")
        for i in range(4):
            g(f"v_add_f32_dpp v{20+i}, v{16+i}, v{16+i} row_ror:4 row_mask:0xf bank_mask:0xf")
        g("s_nop 0")
        for i in range(4):
            g(f"v_add_f32_dpp v{16+i}, v{20+i}, v{20+i} row_ror:8 row_mask:0xf bank_mask:0xf")
        for i in range(4):
            g(f"v_mov_b32 v{20+i}, v{16+i}")
        g("s_nop 0")
        for i in range(4):
            g(f"v_permlane16_swap_b32 v{16+i}, v{20+i}")
        for i in range(4):
            g(f"v_add_f32 v{16+i}, v{16+i}, v{20+i}")
        for i in range(4):
            g(f"v_mov_b32 v{20+i}, v{16+i}")
        g("s_nop 0")
        for i in range(4):
            g(f"v_permlane32_swap_b32 v{16+i}, v{20+i}")
        for i in range(4):
            g(f"v_add_f32 v{dst+i}, v{16+i}, v{20+i}")
    g.stamp(5)
    if not NOFFN:
        inbox_reduce("b", 2048, 48, 32, 12, presleep=3)
    g.stamp(6)
    g("s_branch L_Hbar2")

    g.label("L_H123")
    g(f"s_cmp_lg_u32 s{sHW}, 2")
    g("s_cbranch_scc1 L_H13")
    g("v_mov_b32 v8, 0")
    g("v_lshlrev_b32 v9, 2, v0")
    g(f"v_min_u32 v9, {L_Q + 60 - L_HEAD}, v9")
    g(f"v_add_u32 v9, {L_HEAD}, v9")
    g("ds_write_b32 v9, v8")
    g(f"v_mov_b32 v9, {L_HEAD}")
    g(f"s_lshl_b32 s{sU}, s{sGRP}, 12")
    g(f"s_add_u32 s{sU}, s{sU}, {WS_CNT}")
    g("s_mov_b32 s20, 0")
    g("s_mov_b32 s70, 0x100000")
    g("s_waitcnt lgkmcnt(0)")
    g(f"s_add_u32 s{sTag}, s{sTag}, 1")
    g(f"v_mov_b32 v{vTag}, s{sTag}")
    g("s_barrier")
    g.stamp(4)
    if not STATIC:
        g("s_mov_b64 exec, 1")
        g("s_branch L_Dclaim")
        g.label("L_Dloop")
        g("ds_read_b32 v10, v9")
        g("s_sub_u32 s70, s70, 1")
        g("s_waitcnt lgkmcnt(0)")
        g("v_readfirstlane_b32 s21, v10")
        g("s_cmp_eq_u32 s70, 0")
        g("s_cbranch_scc1 L_Ddone")
        g("s_sub_u32 s21, s20, s21")
        g(f"s_cmp_lt_i32 s21, {TH}")
        g("s_cbranch_scc1 L_Dclaim")
        g("s_sleep 1")
        g("s_branch L_Dloop")
        g.label("L_Dclaim")
        g("v_mov_b32 v11, 4")
        g(f"buffer_atomic_add v11, v8, s[{sWSs}:{sWSs+3}], s{sU} offen sc0 sc1")
        g("s_and_b32 s22, s20, 60")
        g(f"s_add_u32 s22, s22, {L_Q}")
        g("v_mov_b32 v12, s22")
        g("s_add_u32 s20, s20, 4")
        g("s_lshl_b32 s23, s20, 14")
        g("s_waitcnt vmcnt(0)")
        g(f"v_min_u32 v11, {NU}, v11")
        g("v_or_b32 v13, s23, v11")
        g("ds_write_b32 v12, v13")
        g(f"v_cmp_gt_u32 vcc, {NU}, v11")
        g("s_cbranch_vccnz L_Dloop")
        g("s_and_b32 s22, s20, 60")
        g(f"s_add_u32 s22, s22, {L_Q}")
        g("v_mov_b32 v12, s22")
        g("v_add_u32 v13, 0x10000, v13")
        g("ds_write_b32 v12, v13")
        g.label("L_Ddone")
        g("s_mov_b64 exec, -1")
        g("s_waitcnt lgkmcnt(0)")
    g.stamp(5)
    g("s_branch L_Hbar2")

    g.label("L_H13")
    g("s_waitcnt lgkmcnt(0)")
    g(f"s_add_u32 s{sTag}, s{sTag}, 1")
    g(f"v_mov_b32 v{vTag}, s{sTag}")
    g("s_barrier")
    g.stamp(4)
    g(f"s_cmp_eq_u32 s{sHW}, 3")
    g("s_cbranch_scc1 L_Hbar2")
    g.label("L_H1wo")
    g.srd(sA, P_WO, 4096 * 512 * 2)
    g("v_lshl_add_u32 v8, v4, 10, v5")
    g(f"s_lshl_b32 s{sU}, s{sX}, 2")
    g(f"s_add_u32 s{sU}, s{sU}, s{sSPLIT}")
    g(f"s_lshl_b32 s{sU}, s{sU}, 17")
    g(f"s_lshl_b32 s{sU2}, s{sB}, 7")
    g(f"s_add_u32 s{sU}, s{sU}, s{sU2}")
    for i in range(16):
        g(f"s_mov_b32 m0, {L_ST + i*1024}")
        g(f"s_add_u32 s{sU2}, s{sU}, {i*8192}")
        g(f"buffer_load_dwordx4 v8, s[{sA}:{sA+3}], s{sU2} offen {WPOL} lds")
    g("s_waitcnt vmcnt(0)")
    g.stamp(5)

    g.label("L_Hbar2")
    g(f"s_lshl_b32 s{sU}, s{sHW}, 5")
    g(f"s_add_u32 s{sU}, s{sU}, {L_ST}")
    g(f"v_add_u32 v9, s{sU}, v6")
    g.stamp(7)
    g.c("barrier 2")
    g("s_barrier")
    for kb in range(4):
        g(f"ds_read_b64_tr_b16 {vr(32+4*kb,2)}, v9 offset:{kb*4096}")
        g(f"ds_read_b64_tr_b16 {vr(34+4*kb,2)}, v9 offset:{kb*4096+512}")

    g.label("L_gather")
    g.stamp(8)
    g(f"s_lshl_b32 s58, s{sWAVE}, 3")
    g(f"s_add_u32 s58, s58, s{sX}")
    g(f"s_lshl_b32 s59, s58, 2")
    g(f"s_add_u32 s59, s59, s{sSPLIT}")
    g(f"s_lshl_b32 s59, s59, 7")
    g(f"s_add_u32 s59, s59, {WS_ML}")
    g(f"s_lshl_b32 s58, s58, 14")
    g(f"s_lshl_b32 s60, s{sSPLIT}, 9")
    g(f"s_add_u32 s58, s58, s60")
    g(f"s_add_u32 s60, s58, {WS_RO}")
    g(f"s_add_u32 s61, s58, {WS_RO + 4096}")
    g(f"s_add_u32 s62, s58, {WS_RO + 8192}")
    g(f"s_add_u32 s63, s58, {WS_RO + 12288}")
    g("v_lshrrev_b32 v50, 5, v0")
    g("v_and_b32 v51, 31, v0")
    g("v_lshlrev_b32 v48, 11, v50")
    g("v_lshl_add_u32 v48, v51, 4, v48")
    g("v_and_b32 v49, 3, v0")
    g("v_lshl_add_u32 v49, v49, 1, v50")
    g("v_lshlrev_b32 v49, 4, v49")
    g("s_mov_b32 s71, 15")
    g("s_mov_b32 s68, 0")
    g("s_mov_b32 s70, 0x40000")
    if dbg: g("s_mov_b32 s87, 0")
    g.label("L_pollr")
    if dbg: g("s_add_u32 s87, s87, 1")
    g("s_andn2_b32 s69, s71, s68")
    g("s_bcnt1_i32_b32 s69, s69")
    g(f"s_cmp_le_u32 s69, {GEAGER}")
    g("s_cselect_b32 s69, 15, s68")
    g("s_and_b32 s69, s69, s71")
    g("s_cmp_eq_u32 s68, 15")
    g("s_cbranch_scc1 L_pr4")
    g(f"buffer_load_dwordx4 {vr(72,4)}, v49, s[{sWSs}:{sWSs+3}], s59 offen sc1")
    g.label("L_pr4")
    for s_ in range(4):
        g(f"s_bitcmp1_b32 s69, {s_}")
        g(f"s_cbranch_scc0 L_pr{s_}")
        g(f"buffer_load_dwordx4 {vr(56+4*s_,4)}, v48, s[{sWSs}:{sWSs+3}], s{60+s_} offen sc1")
        g.label(f"L_pr{s_}")
    g("s_waitcnt vmcnt(0)")
    tagchk(52, 72, True, 53, 54)
    g("v_cmp_eq_u32 vcc, 0, v52")
    g("s_and_b32 s68, vcc_lo, vcc_hi")
    g("s_and_b32 s68, s68, 15")
    for s_ in range(4):
        g(f"s_bitcmp1_b32 s69, {s_}")
        g(f"s_cbranch_scc0 L_pq{s_}")
        tagchk(52, 56+4*s_, True, 53, 54)
        g("v_cmp_ne_u32 vcc, 0, v52")
        g(f"s_cbranch_vccnz L_pq{s_}")
        g(f"s_bitset0_b32 s71, {s_}")
        g.label(f"L_pq{s_}")
    g("s_xor_b32 s69, s68, 15")
    g("s_or_b32 s69, s69, s71")
    g("s_cmp_eq_u32 s69, 0")
    g("s_cbranch_scc1 L_rok")
    if RSLEEP:
        g(f"s_sleep {RSLEEP}")
    g("s_sub_u32 s70, s70, 1")
    g("s_cmp_lg_u32 s70, 0")
    g("s_cbranch_scc1 L_pollr")
    g.label("L_rok")
    g.stamp(9)
    g("v_and_b32 v72, 0xffffff00, v72")
    g("s_nop 1")
    g("v_max_f32_dpp v52, v72, v72 quad_perm:[1,0,3,2] row_mask:0xf bank_mask:0xf")
    g("s_nop 1")
    g("v_max_f32_dpp v53, v52, v52 quad_perm:[2,3,0,1] row_mask:0xf bank_mask:0xf")
    g("v_mov_b32 v52, v53")
    g("s_nop 1")
    g("v_permlane32_swap_b32 v52, v53")
    g("v_max_f32 v52, v52, v53")
    g("v_sub_f32 v52, v72, v52")
    g("v_exp_f32 v52, v52")
    g("s_nop 0")
    g("v_mul_f32 v53, v52, v73")
    g("s_nop 0")
    for i in range(4):
        g(f"v_mul_f32_dpp v{76+i}, v52, v{56+i} quad_perm:[0,0,0,0] row_mask:0xf bank_mask:0xf")
    g("v_add_f32_dpp v54, v53, v53 quad_perm:[1,0,3,2] row_mask:0xf bank_mask:0xf")
    for s_ in range(1, 4):
        for i in range(4):
            g(f"v_fmac_f32_dpp v{76+i}, v52, v{56+4*s_+i} quad_perm:[{s_},{s_},{s_},{s_}] row_mask:0xf bank_mask:0xf")
        if s_ == 1:
            g("v_add_f32_dpp v53, v54, v54 quad_perm:[2,3,0,1] row_mask:0xf bank_mask:0xf")
    g("v_mov_b32 v54, v53")
    for i in range(4):
        g(f"v_mov_b32 v{56+i}, v{76+i}")
    g("s_nop 0")
    g("v_permlane32_swap_b32 v53, v54")
    for i in range(4):
        g(f"v_permlane32_swap_b32 v{76+i}, v{56+i}")
    g("v_add_f32 v53, v53, v54")
    g("v_rcp_f32 v53, v53")
    for i in range(4):
        g(f"v_add_f32 v{76+i}, v{76+i}, v{56+i}")
    for i in range(4):
        g(f"v_mul_f32 v{76+i}, v53, v{76+i}")
    g("v_cvt_pk_bf16_f32 v52, v76, v77")
    g("v_cvt_pk_bf16_f32 v53, v78, v79")
    g(f"s_lshl_b32 s58, s{sWAVE}, 8")
    g(f"s_add_u32 s58, s58, {L_OBUF}")
    g(f"v_lshl_add_u32 v50, v51, 3, s58")
    g("ds_write_b64 v50, v[52:53]")
    g("s_waitcnt lgkmcnt(0)")
    g.c("barrier 3")
    g("s_barrier")
    g.stamp(10)
    g(f"s_cmp_ge_u32 s{sWAVE}, 4")
    g("s_cbranch_scc1 L_fin")
    g("v_and_b32 v9, 7, v0")
    g("v_lshlrev_b32 v9, 8, v9")
    g("v_lshl_add_u32 v9, v3, 4, v9")
    for kb in range(4):
        g(f"ds_read_b128 {vr(48+4*kb,4)}, v9 offset:{L_OBUF + kb*64}")
    g("v_lshlrev_b32 v8, 17, v2")
    g("v_lshl_add_u32 v8, v3, 4, v8")
    g(f"s_lshl_b32 s{sU}, s{sHW}, 3")
    g(f"s_add_u32 s{sU}, s{sU}, s{sB}")
    g(f"s_lshl_b32 s{sU}, s{sU}, 12")
    g(f"s_lshl_b32 s{sU2}, s{sX}, 2")
    g(f"s_add_u32 s{sU2}, s{sU2}, s{sSPLIT}")
    g(f"s_lshl_b32 s{sU2}, s{sU2}, 6")
    g(f"s_add_u32 s{sU}, s{sU}, s{sU2}")
    g(f"s_add_u32 s{sU}, s{sU}, {WS_PAB}")
    g("v_cmp_gt_u32 s[66:67], 8, v2")
    g("s_waitcnt lgkmcnt(0)")
    for kb in range(4):
        srcc = "0" if kb == 0 else "v[64:67]"
        g(f"v_mfma_f32_16x16x32_bf16 v[64:67], {vr(32+4*kb,4)}, {vr(48+4*kb,4)}, {srcc}")
    g("s_nop 7")
    g("s_nop 3")
    for i in range(4):
        tagit(64+i, 64+i, i)
    g("s_mov_b64 exec, s[66:67]")
    g(f"buffer_store_dwordx4 v[64:67], v8, s[{sWSs}:{sWSs+3}], s{sU} offen sc1")
    g("s_mov_b64 exec, -1")
    g.stamp(11)
    g(f"s_cmp_lg_u32 s{sHW}, 0")
    g("s_cbranch_scc1 L_fin")
    g.srd(sA, P_OUT, 8192)
    inbox_reduce("a", 0, 64, ASLEEP, 24)
    g(f"s_lshl_b32 s{sU}, s{sB}, 10")
    g(f"s_lshl_b32 s{sU2}, s{sX}, 7")
    g(f"s_add_u32 s{sU}, s{sU}, s{sU2}")
    g(f"s_lshl_b32 s{sU2}, s{sSPLIT}, 5")
    g(f"s_add_u32 s{sU}, s{sU}, s{sU2}")
    g("v_lshlrev_b32 v8, 3, v0")
    for i in range(4):
        g(f"v_cvt_pk_bf16_f32 v{16+i}, v{24+i}, v{12+i}")
    for i in range(4):
        g(f"v_lshlrev_b32 v{20+i}, 16, v{16+i}")
        g(f"v_and_b32 v{24+i}, 0xffff0000, v{16+i}")
    for i in range(4):
        g(f"v_mul_f32 v{20+i}, v10, v{20+i}")
        g(f"v_mul_f32 v{24+i}, v11, v{24+i}")
    for i in range(4):
        g(f"v_cvt_pk_bf16_f32 v{16+i}, v{20+i}, v{24+i}")
    for i in range(4):
        g(f"v_lshlrev_b32 v{20+i}, 16, v{16+i}")
        g(f"v_and_b32 v{24+i}, 0xffff0000, v{16+i}")
    for i in range(4):
        g(f"v_add_f32 v{20+i}, v{20+i}, v{24+i}")
    g("v_cvt_pk_bf16_f32 v16, v20, v21")
    g("v_cvt_pk_bf16_f32 v17, v22, v23")
    g("s_mov_b64 exec, 15")
    g(f"buffer_store_dwordx2 v[16:17], v8, s[{sA}:{sA+3}], s{sU} offen")
    g("s_cmp_lg_u32 s2, 0")
    g("s_cbranch_scc1 L_noep")
    g("s_mov_b64 exec, 1")
    g(f"buffer_store_dword v{vTag}, v8, s[{sWSs}:{sWSs+3}], 0 offen offset:{WS_EPOCH} sc1")
    g.label("L_noep")
    if dbg:
        g("s_waitcnt vmcnt(0)")
    g.stamp(12)
    g.label("L_fin")
    g.stamp_out(sWSs)
    g.label("L_end")
    g("s_endpgm")
    g.o.append('.section .rodata,"a"')
    g.o.append(".p2align 6")
    g.o.append(f".amdhsa_kernel {KN}")
    for l in ("next_free_vgpr 256", "next_free_sgpr 96", "accum_offset 128", "group_segment_fixed_size 0",
              "kernarg_size 104", "user_sgpr_count 2", "user_sgpr_kernarg_segment_ptr 1",
              "system_sgpr_workgroup_id_x 1"):
        g.o.append("  .amdhsa_" + l)
    g.o.append(".end_amdhsa_kernel")
    return "\n".join(g.o) + "\n"


if __name__ == "__main__":
    out = sys.argv[1] if len(sys.argv) > 1 else "k4.s"
    open(out, "w").write(gen(dbg=int(sys.argv[2]) if len(sys.argv) > 2 else 0))
```

```python
import sys, os

KN = "gated_mix__gqa_block_cached__geglu_ffn__decode_kernel"

WS_EPOCH = 0
WS_CNT = 0x20000
WS_QG = 0x40000
WS_ML = 0x60000
WS_RO = 0x80000
WS_PAB = 0x200000
WS_SIZE = 0x300000

L_H = 131072
L_QBUF = L_H
L_ZERO = L_H + 2048
L_CTL = L_H + 2304
L_FLAG = L_CTL
L_HEAD = L_CTL + 16
L_FLAG2 = L_CTL + 20
L_FLAG3 = L_CTL + 24
L_Q = L_CTL + 64
L_ML = L_H + 2560
L_ST = L_H + 4096
L_AST = L_H + 20480
L_OBUF = 16384
LDS_TOTAL = 163840

HPD = int(os.environ.get("HPD", "2"))
RSLEEP = int(os.environ.get("RSLEEP", "2"))
ASLEEP = int(os.environ.get("ASLEEP", "1"))
QSLEEP0 = int(os.environ.get("QSLEEP0", "40"))
TH = int(os.environ.get("TH", "4"))
PDF = int(os.environ.get("PDF", "5"))
NOFFN = int(os.environ.get("NOFFN", "0"))
STATIC = int(os.environ.get("STATIC", "0"))
SDELAY = int(os.environ.get("SDELAY", "16"))
FDELAY = int(os.environ.get("FDELAY", "48"))
GEAGER = int(os.environ.get("GEAGER", "1"))
KPOL = os.environ.get("KPOL", "nt").replace("+", " ").replace("def", "")
VPOL = os.environ.get("VPOL", "nt").replace("+", " ").replace("def", "")
WPOL = os.environ.get("WPOL", "nt").replace("+", " ").replace("def", "")
QPIPE = int(os.environ.get("QPIPE", "4"))
QGAP = int(os.environ.get("QGAP", "8"))
PWAIT = int(os.environ.get("PWAIT", "1"))
HSW = int(os.environ.get("HSW", "12"))
HPD2 = int(os.environ.get("HPD2", "1"))
NS = 7
U0 = int(os.environ.get("U0", "448"))
NU = U0 + 2 * (512 - U0)
WDELAY = int(os.environ.get("WDELAY", "32"))
MINIT = 0xf149f2ca


class G:
    def __init__(self):
        self.o = []
    def __call__(self, s):
        self.o.append("    " + s)
    def label(self, s):
        self.o.append(s + ":")
    def c(self, s):
        self.o.append("    ; " + s)
    def stamp(self, i):
        if not self.stamps: return
        self("s_memrealtime s[90:91]")
        self("s_waitcnt lgkmcnt(0)")
        self(f"s_mov_b32 s{72+i}, s90")
    def stamp_out(self, sWSs):
        if not self.stamps: return
        self("s_lshl_b32 s90, s2, 9")
        self("s_lshl_b32 s91, s3, 6")
        self("s_add_u32 s90, s90, s91")
        self("s_add_u32 s90, s90, 0x180000")
        self("s_mov_b64 exec, 1")
        self("v_mov_b32 v1, 0")
        for i in range(16):
            self(f"v_mov_b32 v2, s{72+i}")
            self(f"buffer_store_dword v2, v1, s[{sWSs}:{sWSs+3}], s90 offen offset:{4*i}")
            self("s_nop 1")
    def srd(self, d, p, nbytes):
        self(f"s_mov_b32 s{d}, s{p}")
        self(f"s_and_b32 s{d+1}, s{p+1}, 0xffff")
        self(f"s_mov_b32 s{d+2}, {nbytes:#x}")
        self(f"s_mov_b32 s{d+3}, 0x20000")


def vr(a, n=1):
    return f"v{a}" if n == 1 else f"v[{a}:{a+n-1}]"
def ar(a, n=1):
    return f"a{a}" if n == 1 else f"a[{a}:{a+n-1}]"


def gen(dbg=0):
    g = G()
    g.stamps = dbg
    g.o.append(f"; @launch grid=(256,1,1) block=(512,1,1) lds={LDS_TOTAL}")
    g.o.append('.amdgcn_target "amdgcn-amd-amdhsa--gfx950"')
    g.o.append(".text")
    g.o.append(f".globl {KN}")
    g.o.append(".p2align 8")
    g.o.append(f".type {KN},@function")
    g.label(KN)
    P_X, P_K, P_V, P_WQ, P_WO, P_WG, P_WU, P_WD, P_GW, P_OUT, P_DBG, P_WS = 32, 34, 36, 38, 40, 44, 46, 48, 50, 52, 54, 56
    sWAVE, sX, sA_, sB, sSPLIT = 3, 4, 5, 6, 7
    sKs, sVs, sWSs = 8, 12, 16
    sTag, sGRP = 88, 89
    sSEL = 92
    vTag = 126

    def tagit(dst, src, i):
        g(f"v_perm_b32 v{dst}, v{src}, v{vTag}, s{sSEL+i}")

    def tagchk(acc, r, first, t0, t1):
        g(f"v_perm_b32 v{t0}, v{r+1}, v{r}, s64")
        g(f"v_perm_b32 v{t1}, v{r+3}, v{r+2}, s65")
        if first:
            g(f"v_or_b32 v{acc}, v{t0}, v{t1}")
            g(f"v_xor_b32 v{acc}, v{vTag}, v{acc}")
        else:
            g(f"v_or_b32 v{t0}, v{t0}, v{t1}")
            g(f"v_xor_b32 v{t0}, v{vTag}, v{t0}")
            g(f"v_or_b32 v{acc}, v{acc}, v{t0}")

    g("s_cmp_ge_u32 s2, 256")
    g("s_cbranch_scc1 L_end")
    g("s_load_dwordx16 s[32:47], s[0:1], 0")
    g("s_load_dwordx2 s[56:57], s[0:1], 96")
    g("s_load_dwordx8 s[48:55], s[0:1], 64")
    g("v_lshrrev_b32 v1, 6, v0")
    g("v_and_b32 v0, 63, v0")
    g(f"v_readfirstlane_b32 s{sWAVE}, v1")
    g(f"s_and_b32 s{sX}, s2, 7")
    g(f"s_lshr_b32 s{sA_}, s2, 3")
    g(f"s_lshr_b32 s{sB}, s{sA_}, 2")
    g(f"s_and_b32 s{sSPLIT}, s{sA_}, 3")
    g(f"s_lshl_b32 s{sGRP}, s{sX}, 2")
    g(f"s_add_u32 s{sGRP}, s{sGRP}, s{sA_}")
    g(f"s_and_b32 s{sGRP}, s{sGRP}, 31")
    if dbg:
        for i in range(16): g(f"s_mov_b32 s{72+i}, 0")
    g.stamp(0)
    g(f"s_cmp_lt_u32 s{sWAVE}, 4")
    g("s_cbranch_scc1 L_H")
    sSW = 29
    g(f"s_sub_u32 s{sSW}, s{sWAVE}, 4")

    vKoff, vVoff, vKrd, vVrd = 2, 6, 8, 12
    vM, vL = 20, 21
    vPop, vEnt = 22, 23
    vD = 24
    vP01 = 28
    vHeadA, vOne, vQa = 32, 33, 34
    vT = 36
    vF = 48
    vAcc = 80
    vQB = 112
    sT, sNext, sRK, sRV, sTmp, sCnt, sLog2e, sScale, sThr = 20, 21, 22, 23, 24, 25, 26, 27, 28
    sBase, sBaseB, sRK2, sRV2, sRK0, sPop, sSwd, sTmp2 = 58, 59, 60, 61, 62, 63, 30, 31
    g.c("---- S wave setup ----")
    g(f"s_lshl_b32 s{sRK}, s{sSW}, 15")
    g("v_and_b32 v44, 15, v0")
    g("v_lshrrev_b32 v45, 4, v0")
    g("v_lshrrev_b32 v118, 3, v0")
    g("v_and_b32 v113, 7, v0")
    g(f"s_cmp_ge_u32 s{sA_}, 8")
    g("s_cbranch_scc1 L_Snoq")
    g("v_lshlrev_b32 v112, 13, v118")
    g("v_lshl_add_u32 v112, v113, 4, v112")
    g(f"s_lshl_b32 s{sT}, s{sX}, 10")
    g(f"s_lshl_b32 s{sTmp}, s{sA_}, 7")
    g(f"s_add_u32 s{sT}, s{sT}, s{sTmp}")
    g(f"s_lshl_b32 s{sTmp}, s{sSW}, 20")
    g(f"s_add_u32 s{sT}, s{sT}, s{sTmp}")
    g(f"s_mov_b32 m0, s{sRK}")
    g("v_lshlrev_b32 v113, 10, v113")
    g("v_lshl_add_u32 v113, v45, 4, v113")
    g(f"s_lshl_b32 s{sTmp}, s{sSW}, 8")
    g("s_waitcnt lgkmcnt(0)")
    g.srd(sVs, P_X, 8192)
    g.srd(sKs, P_WQ, 512 * 4096 * 2)
    for i in range(4):
        g(f"buffer_load_dwordx4 {vr(96+4*i,4)}, v113, s[{sVs}:{sVs+3}], s{sTmp} offen offset:{i*64}")
    for i in range(16):
        g(f"buffer_load_dwordx4 v112, s[{sKs}:{sKs+3}], s{sT} offen {WPOL} lds")
        if i < 15:
            g(f"s_add_u32 m0, m0, 1024")
            g(f"s_add_u32 s{sT}, s{sT}, 65536")
    def prejob_addrs():
        g("v_lshrrev_b32 v114, 2, v44")
        g("v_lshl_add_u32 v114, v45, 3, v114")
        g("v_lshlrev_b32 v114, 7, v114")
        g("v_and_b32 v115, 3, v0")
        g("v_lshl_add_u32 v114, v115, 3, v114")
        g(f"v_add_u32 v114, s{sRK}, v114")
        g(f"s_lshl_b32 s{sTmp}, s{sSW}, 11")
        g(f"s_add_u32 s{sTmp}, s{sTmp}, {L_AST}")
        g("v_lshlrev_b32 v115, 8, v44")
        g("v_lshl_add_u32 v115, v45, 4, v115")
        g(f"v_add_u32 v115, s{sTmp}, v115")
        g(f"s_lshl_b32 s{sTmp}, s{sSW}, 2")
        g(f"s_add_u32 s{sTmp}, s{sTmp}, {L_FLAG}")
        g(f"v_mov_b32 v116, s{sTmp}")
        g("v_mov_b32 v117, 1")
        g("v_cmp_gt_u32 s[66:67], 8, v44")
        g.c("barrier 0: flags zeroed")
        g("s_barrier")
    def prejob_mm(nkb, xf, acc, after):
        for kb in range(nkb):
            fr = vF + 16 * (kb & 1)
            g(f"s_waitcnt vmcnt({4*(nkb-1-kb) + after})")
            for ct in range(4):
                g(f"ds_read_b64_tr_b16 {vr(fr+4*ct,2)}, v114 offset:{kb*4096 + ct*32}")
                g(f"ds_read_b64_tr_b16 {vr(fr+4*ct+2,2)}, v114 offset:{kb*4096 + ct*32 + 512}")
            g("s_waitcnt lgkmcnt(0)")
            for ct in range(4):
                srcc = "0" if kb == 0 else vr(acc+4*ct, 4)
                g(f"v_mfma_f32_16x16x32_bf16 {vr(acc+4*ct,4)}, {vr(fr+4*ct,4)}, {vr(xf+4*kb,4)}, {srcc}")
    def prejob_pub(acc):
        g("s_mov_b64 exec, s[66:67]")
        for ct in range(4):
            g(f"ds_write_b128 v115, {vr(acc+4*ct,4)} offset:{ct*64}")
        g("s_mov_b64 exec, 1")
        g("s_waitcnt lgkmcnt(0)")
        g("ds_write_b32 v116, v117")
        g("s_mov_b64 exec, -1")
    prejob_addrs()
    prejob_mm(4, 96, 80, 0)
    g.stamp(5)
    g("s_nop 7")
    g("s_nop 3")
    prejob_pub(80)
    g.stamp(6)
    if PWAIT:
        g(f"v_mov_b32 v116, {L_FLAG2}")
        g("s_mov_b32 s70, 0x4000")
        g.label("L_pw")
        g("ds_read_b32 v117, v116")
        g("s_sub_u32 s70, s70, 1")
        g("s_waitcnt lgkmcnt(0)")
        g("v_cmp_ne_u32 vcc, 1, v117")
        g("s_cbranch_vccz L_Sgo")
        g("s_cmp_lg_u32 s70, 0")
        g("s_cbranch_scc1 L_pw")
    g("s_branch L_Sgo")

    g.label("L_Snoq")
    sG = 21
    g(f"s_sub_u32 s{sG}, s2, 128")
    g(f"s_cmp_ge_u32 s{sG}, {0 if NOFFN else 28}")
    g("s_cbranch_scc1 L_Snof")
    g("s_movk_i32 s61, 3584")
    g("v_mul_u32_u24 v112, s61, v118")
    g("v_lshl_add_u32 v112, v113, 4, v112")
    g("v_lshlrev_b32 v119, 10, v118")
    g("v_lshl_add_u32 v119, v113, 4, v119")
    g("v_lshlrev_b32 v113, 10, v113")
    g("v_lshl_add_u32 v113, v45, 4, v113")
    g(f"s_and_b32 s{sTmp2}, s{sSW}, 1")
    g(f"s_mul_i32 s{sT}, s{sTmp2}, {256*3584}")
    g(f"s_lshl_b32 s{sTmp}, s{sG}, 7")
    g(f"s_add_u32 s{sT}, s{sT}, s{sTmp}")
    g(f"s_lshl_b32 s{sTmp}, s{sTmp2}, 9")
    g(f"s_mov_b32 m0, s{sRK}")
    if FDELAY:
        g(f"s_sleep {FDELAY}")
    g("s_waitcnt lgkmcnt(0)")
    g(f"s_load_dword s{sTag}, s[{P_WS}:{P_WS+1}], {WS_EPOCH}")
    g.srd(sVs, P_X, 8192)
    g(f"s_cmp_ge_u32 s{sSW}, 2")
    g(f"s_cselect_b32 s{sKs}, s{P_WU}, s{P_WG}")
    g(f"s_cselect_b32 s{sKs+1}, s{P_WU+1}, s{P_WG+1}")
    g(f"s_and_b32 s{sKs+1}, s{sKs+1}, 0xffff")
    g(f"s_mov_b32 s{sKs+2}, {512*1792*2:#x}")
    g(f"s_mov_b32 s{sKs+3}, 0x20000")
    XF = 4
    for i in range(8):
        g(f"buffer_load_dwordx4 {vr(XF+4*i,4)}, v113, s[{sVs}:{sVs+3}], s{sTmp} offen offset:{i*64}")
    for i in range(32):
        g(f"buffer_load_dwordx4 v112, s[{sKs}:{sKs+3}], s{sT} offen {WPOL} lds")
        if i < 31:
            g(f"s_add_u32 m0, m0, 1024")
            g(f"s_add_u32 s{sT}, s{sT}, {8*3584}")
    prejob_addrs()
    g.srd(sVs, P_WD, 1792 * 512 * 2)
    g.srd(sWSs, P_WS, WS_SIZE)
    for i in range(4):
        g(f"s_mov_b32 s{sSEL+i}, {0x07060500 | i:#x}")
    prejob_mm(8, XF, 80, 0)
    g.stamp(5)
    g(f"s_lshl_b32 s{sT}, s{sG}, 16")
    g(f"s_lshl_b32 s{sTmp}, s{sSW}, 8")
    g(f"s_add_u32 s{sT}, s{sT}, s{sTmp}")
    g(f"s_mov_b32 m0, s{sRK}")
    for i in range(16):
        g(f"s_add_u32 s{sTmp}, s{sT}, {(i & 7)*8192 + (i >> 3)*128}")
        g(f"buffer_load_dwordx4 v119, s[{sVs}:{sVs+3}], s{sTmp} offen {WPOL} lds")
        if i < 15:
            g(f"s_add_u32 m0, m0, 1024")
    prejob_pub(80)
    g("v_and_b32 v116, 3, v0")
    g("v_lshlrev_b32 v116, 2, v116")
    g(f"v_add_u32 v116, {L_FLAG}, v116")
    g("v_and_b32 v115, 7, v0")
    g("v_lshlrev_b32 v115, 8, v115")
    g("v_lshl_add_u32 v115, v45, 5, v115")
    g(f"v_add_u32 v115, {L_AST}, v115")
    g(f"s_add_u32 s{sTag}, s{sTag}, 1")
    g(f"v_mov_b32 v{vTag}, s{sTag}")
    g("s_mov_b32 s70, 0x40000")
    g.label("L_ff")
    g("ds_read_b32 v117, v116")
    g("s_sub_u32 s70, s70, 1")
    g("s_waitcnt lgkmcnt(0)")
    g("v_cmp_ne_u32 vcc, 1, v117")
    g("s_cbranch_vccz L_ffok")
    g("s_sleep 1")
    g("s_cmp_lg_u32 s70, 0")
    g("s_cbranch_scc1 L_ff")
    g.label("L_ffok")
    GA, UA, T = 4, 20, 80
    for w in range(4):
        dst = (GA, 48, UA, 64)[w]
        for q4 in range(4):
            g(f"ds_read_b128 {vr(dst+4*q4,4)}, v115 offset:{w*2048 + (q4>>1)*128 + (q4&1)*16}")
    g("s_waitcnt lgkmcnt(0)")
    for i in range(16):
        g(f"v_add_f32 v{GA+i}, v{GA+i}, v{48+i}")
        g(f"v_add_f32 v{UA+i}, v{UA+i}, v{64+i}")
    for i in range(8):
        g(f"v_cvt_pk_bf16_f32 v{48+i}, v{GA+2*i}, v{GA+2*i+1}")
        g(f"v_cvt_pk_bf16_f32 v{56+i}, v{UA+2*i}, v{UA+2*i+1}")
    for i in range(8):
        g(f"v_lshlrev_b32 v{GA+2*i}, 16, v{48+i}")
        g(f"v_and_b32 v{GA+2*i+1}, 0xffff0000, v{48+i}")
        g(f"v_lshlrev_b32 v{UA+2*i}, 16, v{56+i}")
        g(f"v_and_b32 v{UA+2*i+1}, 0xffff0000, v{56+i}")
    g("s_mov_b32 s61, 0x3d372713")
    g("s_mov_b32 s63, 0x40135761")
    for i in range(16):
        x = GA + i
        g(f"v_mul_f32 v{T+i}, v{x}, v{x}")
        g(f"v_mul_f32 v{T+i}, v{T+i}, v{x}")
        g(f"v_fma_f32 v{T+i}, v{T+i}, s61, v{x}")
        g(f"v_mul_f32 v{T+i}, s63, v{T+i}")
    for i in range(16):
        g(f"v_exp_f32 v{T+i}, v{T+i}")
    g("s_nop 0")
    for i in range(16):
        g(f"v_add_f32 v{T+i}, 1.0, v{T+i}")
    for i in range(16):
        g(f"v_rcp_f32 v{T+i}, v{T+i}")
    g("s_nop 0")
    for i in range(16):
        g(f"v_sub_f32 v{T+i}, 1.0, v{T+i}")
        g(f"v_mul_f32 v{T+i}, v{GA+i}, v{T+i}")
    for i in range(8):
        g(f"v_cvt_pk_bf16_f32 v{48+i}, v{T+2*i}, v{T+2*i+1}")
    for i in range(8):
        g(f"v_lshlrev_b32 v{T+2*i}, 16, v{48+i}")
        g(f"v_and_b32 v{T+2*i+1}, 0xffff0000, v{48+i}")
    for i in range(16):
        g(f"v_mul_f32 v{T+i}, v{T+i}, v{UA+i}")
    for i in range(8):
        g(f"v_cvt_pk_bf16_f32 v{4+i}, v{T+2*i}, v{T+2*i+1}")
    for t in range(4):
        cb2, kb = t >> 1, t & 1
        fr = vF + 16 * (t & 1)
        acc = 80 + 16 * cb2
        g(f"s_waitcnt vmcnt({4*(3-t)})")
        for ct in range(4):
            g(f"ds_read_b64_tr_b16 {vr(fr+4*ct,2)}, v114 offset:{t*4096 + ct*32}")
            g(f"ds_read_b64_tr_b16 {vr(fr+4*ct+2,2)}, v114 offset:{t*4096 + ct*32 + 512}")
        g("s_waitcnt lgkmcnt(0)")
        for ct in range(4):
            srcc = "0" if kb == 0 else vr(acc+4*ct, 4)
            g(f"v_mfma_f32_16x16x32_bf16 {vr(acc+4*ct,4)}, {vr(fr+4*ct,4)}, {vr(4+4*kb,4)}, {srcc}")
    g("v_lshlrev_b32 v112, 17, v44")
    g("v_lshl_add_u32 v112, v45, 4, v112")
    g(f"s_lshl_b32 s{sT}, s{sG}, 6")
    g(f"s_lshl_b32 s{sTmp}, s{sSW}, 13")
    g(f"s_add_u32 s{sT}, s{sT}, s{sTmp}")
    g(f"s_add_u32 s{sT}, s{sT}, {WS_PAB + 2048}")
    g("s_nop 7")
    g("s_nop 3")
    g("s_mov_b64 exec, s[66:67]")
    for cb2 in range(2):
        for ct in range(4):
            d = 80 + 16*cb2 + 4*ct
            for i in range(4):
                tagit(d+i, d+i, i)
            g(f"s_add_u32 s{sTmp}, s{sT}, {cb2*4096 + ct*32768}")
            g(f"buffer_store_dwordx4 {vr(d,4)}, v112, s[{sWSs}:{sWSs+3}], s{sTmp} offen sc1")
    g("s_mov_b64 exec, -1")
    g("s_waitcnt vmcnt(0)")
    g.stamp(6)
    g("s_branch L_Sgo")
    g.label("L_Snof")
    g(f"s_mov_b32 s{sSwd}, 0")
    if SDELAY:
        g(f"s_sleep {SDELAY}")
    g("s_branch L_Sgo2")
    g.label("L_Sgo")
    g(f"s_mov_b32 s{sSwd}, 1")
    g.label("L_Sgo2")
    for i in range(4):
        g(f"v_add_u32 v46, {4*i}, v45")
        g("v_xor_b32 v46, v44, v46")
        g("v_lshlrev_b32 v46, 4, v46")
        g(f"v_lshl_add_u32 v{vKoff+i}, v45, 8, v46")
    g(f"s_mov_b32 s{sRK0}, s{sRK}")
    g(f"s_add_u32 s{sRV}, s{sRK}, 16384")
    g(f"s_add_u32 s{sRK2}, s{sRK}, 8192")
    g(f"s_add_u32 s{sRV2}, s{sRV}, 8192")
    g(f"s_lshl_b32 s{sBase}, s{sGRP}, 22")
    g(f"s_add_u32 s{sBaseB}, s{sBase}, 0x200000")
    g(f"s_lshl_b32 s{sTmp}, s{sX}, 2")
    g(f"s_add_u32 s{sTmp}, s{sTmp}, s{sSW}")
    g(f"s_lshl_b32 s{sTmp}, s{sTmp}, 13")
    g(f"s_add_u32 s{sT}, s{sBase}, s{sTmp}")
    USTR = 32 * 8192
    g("s_waitcnt lgkmcnt(0)")
    g.srd(sKs, P_K, 0x8000000)
    g.srd(sVs, P_V, 0x8000000)
    sT1, sNext1, sHalf, sNHalf = 32, 33, 34, 35
    vBlk1, vBias, vOA, vOB, vMLa, vDump = 114, 115, 116, 117, 118, 119

    def dma(i, sreg, imm, half_other, agpr=None):
        j = i & 1
        if agpr is None:
            base = (sRK2 if half_other else sRK) if i < 2 else (sRV2 if half_other else sRV)
            g(f"s_add_u32 m0, s{base}, {j*4096}")
        g(f"s_add_u32 s{sTmp}, s{sreg}, {imm}")
        for k in range(4):
            vo = vKoff + k if i < 2 else vVoff + (k & 1)
            srd = sKs if i < 2 else sVs
            pol = KPOL if i < 2 else VPOL
            if agpr is None:
                g(f"buffer_load_dwordx4 v{vo}, s[{srd}:{srd+3}], s{sTmp} offen offset:{k*1024} {pol} lds")
            else:
                g(f"buffer_load_dwordx4 {ar(agpr+4*k,4)}, v{vo}, s[{srd}:{srd+3}], s{sTmp} offen offset:{k*1024} {pol}")
    def headB(n):
        u, i = n >> 2, n & 3
        dma(i, sT, u*USTR + (i & 1)*4096, u == 1, agpr=(64 + 16*i) if u == 2 else None)
    for i in range(2):
        headB(i)
    g(f"s_load_dword s{sTag}, s[{P_WS}:{P_WS+1}], {WS_EPOCH}")
    g(f"s_cmp_eq_u32 s{sSwd}, 1")
    g("s_cbranch_scc1 L_Snb0")
    g.c("barrier 0")
    g("s_barrier")
    g.label("L_Snb0")
    for i in range(2):
        g(f"v_add_u32 v46, {4*i}, v45")
        g("v_lshlrev_b32 v46, 1, v46")
        g("v_xor_b32 v46, v44, v46")
        g("v_lshlrev_b32 v46, 4, v46")
        g(f"v_lshl_add_u32 v{vVoff+i}, v45, 8, v46")
    for i in range(2, HPD):
        headB(i)
    g.srd(sWSs, P_WS, WS_SIZE)
    for c in range(4):
        g(f"v_add_u32 v46, {4*c}, v45")
        g("v_xor_b32 v46, v44, v46")
        g("v_lshlrev_b32 v46, 4, v46")
        g("v_lshl_add_u32 v46, v44, 8, v46")
        g(f"v_add_u32 v{vKrd+c}, s{sRK}, v46")
    g("v_lshrrev_b32 v46, 2, v0")
    g("v_and_b32 v47, 7, v46")
    g("v_lshlrev_b32 v46, 8, v46")
    g("v_and_b32 v43, 3, v0")
    g("v_lshl_add_u32 v46, v43, 3, v46")
    g(f"v_add_u32 v46, s{sRV}, v46")
    for db in range(8):
        g(f"v_xor_b32 v43, {db}, v47")
        g(f"v_lshl_add_u32 v{vVrd+db}, v43, 5, v46")
    g("v_and_b32 v43, 3, v0")
    g("v_lshlrev_b32 v43, 8, v43")
    g("v_lshl_add_u32 v43, v45, 4, v43")
    g(f"v_add_u32 v43, {L_QBUF}, v43")
    g(f"v_add_u32 v40, 1024, v43")
    g("v_bfe_u32 v42, v0, 2, 1")
    g(f"v_mov_b32 v41, {L_ZERO}")
    g(f"v_mov_b32 v{vM}, {MINIT:#x}")
    for j in range(2):
        g(f"v_cmp_eq_u32 vcc, {j}, v42")
        g("s_nop 1")
        g(f"v_cndmask_b32 v{vT+j}, v41, v43, vcc")
        g(f"v_cndmask_b32 v{vQB+j}, v41, v40, vcc")
        if j == 1:
            g(f"v_cndmask_b32 v{vBlk1}, 0, v{vM}, vcc")
    g(f"v_mov_b32 v{vL}, 0")
    g(f"v_mov_b32 v{vBias}, 0")
    g(f"v_mov_b32 v{vHeadA}, {L_HEAD}")
    g(f"v_mov_b32 v{vOne}, 1")
    for i in range(32):
        g(f"v_mov_b32 v{vAcc+i}, 0")
    g("v_lshlrev_b32 v46, 9, v44")
    g("v_lshl_add_u32 v46, v45, 4, v46")
    g(f"v_add_u32 v{vOB}, s{sRK0}, v46")
    g(f"s_lshl_b32 s{sTmp}, s{sSW}, 11")
    g(f"s_add_u32 s{sTmp}, s{sTmp}, {L_AST}")
    g(f"v_add_u32 v{vOA}, s{sTmp}, v46")
    g(f"s_lshl_b32 s{sTmp}, s{sSW}, 5")
    g(f"s_add_u32 s{sTmp}, s{sTmp}, {L_ML}")
    g(f"v_lshl_add_u32 v{vMLa}, v44, 3, s{sTmp}")
    g("v_cmp_gt_u32 s[36:37], 4, v44")
    g(f"v_lshl_add_u32 v{vDump}, v0, 4, s{sRK0}")
    g(f"s_mov_b32 s{sLog2e}, 0x3fb8aa3b")
    g(f"s_mov_b32 s{sScale}, 0x3db504f3")
    g(f"s_mov_b32 s{sThr}, 0x41000000")
    g(f"s_mov_b32 s{sCnt}, 3")
    g(f"s_mov_b32 s{sSwd}, 0")
    g(f"s_mov_b32 s{sHalf}, 0")
    for i in range(4):
        g(f"s_mov_b32 s{sSEL+i}, {0x07060500 | i:#x}")
    g("s_mov_b32 s64, 0x0c0c0400")
    g("s_mov_b32 s65, 0x04000c0c")
    g(f"v_mov_b32 v47, {L_FLAG3}")
    for i in range(max(HPD, 2), 12):
        g(f"s_waitcnt vmcnt({4*((HPD if i < HSW else HPD2)-1)})")
        headB(i)
    g("s_waitcnt lgkmcnt(0)")
    g(f"s_add_u32 s{sTag}, s{sTag}, 1")
    g(f"v_mov_b32 v{vTag}, s{sTag}")
    g.stamp(1)
    g("s_mov_b32 s70, 0x100000")
    g.label("L_wq")
    g("ds_read_b32 v46, v47")
    g("s_sub_u32 s70, s70, 1")
    g("s_waitcnt lgkmcnt(0)")
    g("v_cmp_ne_u32 vcc, 1, v46")
    g("s_cbranch_vccz L_wqok")
    g("s_sleep 1")
    g("s_cmp_lg_u32 s70, 0")
    g("s_cbranch_scc1 L_wq")
    g.label("L_wqok")
    g.stamp(2)
    for j in range(2):
        for c in range(4):
            g(f"ds_read_b128 {ar(16*j+4*c,4)}, v{vT+j} offset:{c*64}")
    g(f"s_add_u32 s{sNext}, s{sT}, {3*USTR}")
    g("s_waitcnt lgkmcnt(0)")

    def rescale_code():
        g(f"v_mul_f32 v{vT+6}, s{sLog2e}, v{vT+6}")
        g("s_nop 1")
        g(f"v_max_f32_dpp v{vT+7}, v{vT+6}, v{vT+6} row_ror:4 row_mask:0xf bank_mask:0xf")
        g(f"v_mov_b32 v{vT+6}, v{vT+7}")
        g("s_nop 1")
        g(f"v_permlane16_swap_b32 v{vT+6}, v{vT+7}")
        g(f"v_max_f32 v{vT+6}, v{vT+6}, v{vT+7}")
        g(f"v_mov_b32 v{vT+7}, v{vT+6}")
        g("s_nop 1")
        g(f"v_permlane32_swap_b32 v{vT+6}, v{vT+7}")
        g(f"v_max3_f32 v{vT+6}, v{vT+6}, v{vT+7}, v{vM}")
        g(f"v_sub_f32 v{vT+7}, v{vM}, v{vT+6}")
        g(f"v_exp_f32 v{vT+7}, v{vT+7}")
        g(f"v_mov_b32 v{vM}, v{vT+6}")
        g(f"v_mul_f32 v{vL}, v{vL}, v{vT+7}")
        for i in range(32):
            g(f"v_mul_f32 v{vAcc+i}, v{vAcc+i}, v{vT+7}")

    def body(it):
        W = {0: (44, 40, 36, 32), 1: (28, 24, 20, 20), 2: (None,)*4, 3: (8, 8, 8, 8)}[it]
        def wait(s_):
            if W[s_] is not None: g(f"s_waitcnt vmcnt({W[s_]})")
        wait(0)
        for c in range(4):
            g(f"ds_read_b128 {vr(vF+4*c,4)}, v{vKrd+c}")
        if it == 3:
            g(f"ds_read_b32 v{vEnt}, v{vQa}")
            g(f"s_cmp_eq_u32 s{sCnt}, 3")
            g("s_cbranch_scc1 L_skip0")
            dma(3, sT1, 0, False)
            g.label("L_skip0")
        elif it == 2:
            dma(2, sNext, 0, True)
        g("s_waitcnt lgkmcnt(0)")
        for c in range(4):
            srcc = "0" if c == 0 else vr(vD, 4)
            g(f"v_mfma_f32_16x16x32_bf16 {vr(vD,4)}, {vr(vF+4*c,4)}, {ar(4*c,4)}, {srcc}")
        wait(1)
        for c in range(4):
            g(f"ds_read_b128 {vr(vF+16+4*c,4)}, v{vKrd+c} offset:4096")
        if it == 3:
            g(f"v_readfirstlane_b32 s{sTmp}, v{vEnt}")
            g(f"s_lshr_b32 s{sTmp2}, s{sPop}, 2")
            g(f"s_add_u32 s{sTmp2}, s{sTmp2}, 1")
            g(f"s_lshr_b32 s{sNext}, s{sTmp}, 16")
            g(f"s_cmp_lg_u32 s{sNext}, s{sTmp2}")
            g("s_cbranch_scc1 L_qwait")
            g.label("L_qgo")
            g(f"s_and_b32 s{sTmp}, s{sTmp}, 0xffff")
            g(f"s_and_b32 s{sTmp2}, s{sPop}, 3")
            g(f"s_add_u32 s{sTmp}, s{sTmp}, s{sTmp2}")
            g(f"s_min_u32 s{sTmp2}, s{sTmp}, {U0}")
            g(f"s_add_u32 s{sTmp2}, s{sTmp2}, s{sTmp}")
            g(f"s_lshl_b32 s{sNext}, s{sTmp2}, 12")
            g(f"s_add_u32 s{sNext}, s{sNext}, s{sBase}")
            g(f"s_add_u32 s{sNext1}, s{sNext}, 4096")
            g(f"s_cmp_lt_u32 s{sTmp}, {U0}")
            g(f"s_cselect_b32 s{sNext1}, s{sNext1}, 0x80000000")
            g(f"s_cselect_b32 s{sNHalf}, 0, -1")
            g(f"s_cmp_lt_u32 s{sTmp}, {NU}")
            g(f"s_cselect_b32 s{sNext}, s{sNext}, 0x80000000")
            dma(0, sNext, 0, True)
        elif it == 2:
            dma(3, sNext, 4096, True)
        g("s_waitcnt lgkmcnt(0)")
        for c in range(4):
            g(f"v_mfma_f32_16x16x32_bf16 {vr(vD,4)}, {vr(vF+16+4*c,4)}, {ar(16+4*c,4)}, {vr(vD,4)}")
        wait(2)
        for db in range(8):
            g(f"ds_read_b64_tr_b16 {vr(vF+4*db,2)}, v{vVrd+db}")
        if it == 3:
            dma(1, sNext1, 0, True)
        elif it == 1:
            dma(0, sNext, 0, False)
        else:
            g("s_nop 7")
        e = vT
        g(f"v_cvt_pk_bf16_f32 v{vT+4}, v{vD}, v{vD+1}")
        g(f"v_cvt_pk_bf16_f32 v{vT+5}, v{vD+2}, v{vD+3}")
        g(f"v_lshlrev_b32 v{e}, 16, v{vT+4}")
        g(f"v_and_b32 v{e+1}, 0xffff0000, v{vT+4}")
        g(f"v_lshlrev_b32 v{e+2}, 16, v{vT+5}")
        g(f"v_and_b32 v{e+3}, 0xffff0000, v{vT+5}")
        for i in range(4):
            if it == 3 and U0 < 512:
                g(f"v_fma_f32 v{e+i}, s{sScale}, v{e+i}, v{vBias}")
            else:
                g(f"v_mul_f32 v{e+i}, s{sScale}, v{e+i}")
        g(f"v_cvt_pk_bf16_f32 v{vT+4}, v{e}, v{e+1}")
        g(f"v_cvt_pk_bf16_f32 v{vT+5}, v{e+2}, v{e+3}")
        g(f"v_lshlrev_b32 v{e}, 16, v{vT+4}")
        g(f"v_and_b32 v{e+1}, 0xffff0000, v{vT+4}")
        g(f"v_lshlrev_b32 v{e+2}, 16, v{vT+5}")
        g(f"v_and_b32 v{e+3}, 0xffff0000, v{vT+5}")
        g(f"v_max3_f32 v{vT+6}, v{e}, v{e+1}, v{e+2}")
        g(f"v_max_f32 v{vT+6}, v{vT+6}, v{e+3}")
        if it == 3:
            g(f"v_fma_f32 v{vT+7}, v{vT+6}, s{sLog2e}, -v{vM}")
            g(f"v_cmp_lt_f32 vcc, s{sThr}, v{vT+7}")
            g("s_cbranch_vccnz L_rescale")
            g.label("L_back")
        else:
            rescale_code()
        for i in range(4):
            g(f"v_fma_f32 v{e+i}, v{e+i}, s{sLog2e}, -v{vM}")
        for i in range(4):
            g(f"v_exp_f32 v{e+i}, v{e+i}")
        g("s_nop 0")
        g(f"v_cvt_pk_bf16_f32 v{vP01}, v{e}, v{e+1}")
        g(f"v_cvt_pk_bf16_f32 v{vP01+1}, v{e+2}, v{e+3}")
        g(f"v_add_f32 v{vT+4}, v{e}, v{e+1}")
        g(f"v_add_f32 v{vT+5}, v{e+2}, v{e+3}")
        g(f"v_mov_b32_dpp v{vP01+2}, v{vP01} row_ror:12 row_mask:0xf bank_mask:0xf")
        g(f"v_mov_b32_dpp v{vP01+3}, v{vP01+1} row_ror:12 row_mask:0xf bank_mask:0xf")
        g(f"v_add_f32 v{vT+4}, v{vT+4}, v{vT+5}")
        g(f"v_add_f32 v{vL}, v{vL}, v{vT+4}")
        wait(3)
        for db in range(8):
            g(f"ds_read_b64_tr_b16 {vr(vF+4*db+2,2)}, v{vVrd+db} offset:4096")
        if it >= 2:
            g("s_mov_b64 exec, 1")
            g(f"ds_add_rtn_u32 v{vPop}, v{vHeadA}, v{vOne}")
            g("s_mov_b64 exec, -1")
        if it == 3:
            dma(2, sNext, 0, True)
        elif it == 1:
            dma(1, sNext, 4096, False)
        for i in range(12):
            g(f"v_xor_b32 v{vKrd+i}, 0x2000, v{vKrd+i}")
        for r_ in (sRK, sRV, sRK2, sRV2):
            g(f"s_xor_b32 s{r_}, s{r_}, 0x2000")
        g("s_waitcnt lgkmcnt(0)")
        for db in range(8):
            g(f"v_mfma_f32_16x16x32_bf16 {vr(vAcc+4*db,4)}, {vr(vF+4*db,4)}, {vr(vP01,4)}, {vr(vAcc+4*db,4)}")
        if it == 1:
            g("s_waitcnt vmcnt(8)")
            for i in range(4):
                for k in range(4):
                    off = (0 if i < 2 else 16384) + (i & 1)*4096 + k*1024
                    g(f"ds_write_b128 v{vDump}, {ar(64+16*i+4*k,4)} offset:{off}")
            g("s_waitcnt lgkmcnt(0)")
        if it >= 2:
            g(f"v_readfirstlane_b32 s{sPop}, v{vPop}")
            g(f"s_mov_b32 s{sT}, s{sNext}")
            g(f"s_and_b32 s{sTmp}, s{sPop}, 60")
            g(f"s_add_u32 s{sTmp}, s{sTmp}, {L_Q}")
            g(f"v_mov_b32 v{vQa}, s{sTmp}")
        if it == 3:
            g(f"s_mov_b32 s{sT1}, s{sNext1}")
            g(f"v_and_b32 v{vBias}, s{sNHalf}, v{vBlk1}")

    body(0)
    body(1)
    body(2)
    g.label("L_unit")
    body(3)
    g(f"s_add_u32 s{sCnt}, s{sCnt}, 1")
    g(f"s_cmp_lt_u32 s{sT}, s{sBaseB}")
    g("s_cbranch_scc1 L_unit")
    g(f"s_cmp_eq_u32 s{sSwd}, 0")
    g("s_cbranch_scc1 L_switch")
    g.label("L_after_switch")
    g(f"s_cmp_lt_u32 s{sT}, 0x80000000")
    g("s_cbranch_scc1 L_unit")
    g("s_branch L_Sdone")

    g.label("L_qwait")
    g("s_mov_b32 s70, 0x40000")
    g.label("L_qw1")
    if dbg: g("s_add_u32 s84, s84, 1")
    g("s_sleep 1")
    g(f"ds_read_b32 v{vEnt}, v{vQa}")
    g("s_waitcnt lgkmcnt(0)")
    g(f"v_readfirstlane_b32 s{sTmp}, v{vEnt}")
    g("s_sub_u32 s70, s70, 1")
    g(f"s_lshr_b32 s{sNext}, s{sTmp}, 16")
    g(f"s_cmp_eq_u32 s{sNext}, s{sTmp2}")
    g("s_cbranch_scc1 L_qgo")
    g("s_cmp_lg_u32 s70, 0")
    g("s_cbranch_scc1 L_qw1")
    g(f"s_mov_b32 s{sTmp}, {NU}")
    g("s_branch L_qgo")

    g.label("L_rescale")
    rescale_code()
    g("s_branch L_back")

    def reduce_l():
        g(f"v_add_f32_dpp v{vT}, v{vL}, v{vL} row_ror:4 row_mask:0xf bank_mask:0xf")
        g(f"v_mov_b32 v{vL}, v{vT}")
        g("s_nop 1")
        g(f"v_permlane16_swap_b32 v{vL}, v{vT}")
        g(f"v_add_f32 v{vL}, v{vL}, v{vT}")
        g(f"v_mov_b32 v{vT}, v{vL}")
        g("s_nop 1")
        g(f"v_permlane32_swap_b32 v{vL}, v{vT}")
        g(f"v_add_f32 v{vL}, v{vL}, v{vT}")

    g.label("L_switch")
    for j in range(2):
        for c in range(4):
            g(f"ds_read_b128 {ar(16*j+4*c,4)}, v{vQB+j} offset:{c*64}")
    reduce_l()
    g("s_nop 7")
    g("s_mov_b64 exec, s[36:37]")
    g(f"ds_write_b64 v{vMLa}, {vr(vM,2)}")
    for db in range(8):
        g(f"ds_write_b128 v{vOA}, {vr(vAcc+4*db,4)} offset:{db*64}")
    g("s_mov_b64 exec, -1")
    g(f"s_mov_b32 s{sSwd}, 1")
    if dbg:
        g(f"s_mov_b32 s86, s{sCnt}")
    g("s_waitcnt lgkmcnt(0)")
    for i in range(32):
        g(f"v_mov_b32 v{vAcc+i}, 0")
    g(f"v_mov_b32 v{vM}, {MINIT:#x}")
    g(f"v_mov_b32 v{vL}, 0")
    g("s_branch L_after_switch")

    g.label("L_Sdone")
    g.stamp(3)
    if dbg:
        g(f"s_mov_b32 s85, s{sCnt}")
    reduce_l()
    g("s_waitcnt vmcnt(0)")
    g("s_mov_b64 exec, s[36:37]")
    g(f"ds_write_b64 v{vMLa}, {vr(vM,2)} offset:128")
    for db in range(8):
        g(f"ds_write_b128 v{vOB}, {vr(vAcc+4*db,4)} offset:{db*64}")
    g("s_mov_b64 exec, -1")
    g(f"s_lshr_b32 s{sTmp2}, s{sSW}, 1")
    g(f"s_and_b32 s{sTmp}, s{sSW}, 1")
    g(f"s_lshl_b32 s38, s{sTmp}, 10")
    g(f"s_cmp_eq_u32 s{sTmp2}, 0")
    g(f"s_cselect_b32 s39, {L_AST}, 0")
    g(f"s_movk_i32 s40, 0x800")
    g(f"s_cselect_b32 s40, s40, 0x8000")
    g(f"s_add_u32 s39, s39, s38")
    g(f"v_lshl_add_u32 v4, v0, 4, s39")
    g(f"v_add_u32 v9, s40, v4")
    g(f"v_add_u32 v10, s40, v9")
    g(f"v_add_u32 v11, s40, v10")
    g(f"s_lshl_b32 s{sTmp}, s{sTmp}, 1")
    g(f"v_lshrrev_b32 v2, 5, v0")
    g(f"v_add_u32 v2, s{sTmp}, v2")
    g(f"s_lshl_b32 s{sTmp}, s{sTmp2}, 7")
    g(f"s_add_u32 s{sTmp}, s{sTmp}, {L_ML}")
    g(f"v_lshl_add_u32 v5, v2, 3, s{sTmp}")
    g(f"s_lshl_b32 s{sT}, s{sGRP}, 1")
    g(f"s_add_u32 s{sT}, s{sT}, s{sTmp2}")
    g(f"s_lshl_b32 s{sNext}, s{sT}, 14")
    g(f"s_lshl_b32 s{sTmp}, s{sX}, 11")
    g(f"s_add_u32 s{sNext}, s{sNext}, s{sTmp}")
    g(f"s_add_u32 s{sNext}, s{sNext}, s38")
    g(f"s_add_u32 s{sNext}, s{sNext}, {WS_RO}")
    g("v_lshlrev_b32 v8, 4, v0")
    g(f"s_lshl_b32 s{sT}, s{sT}, 9")
    g(f"s_lshl_b32 s{sTmp}, s{sX}, 4")
    g(f"s_add_u32 s{sT}, s{sT}, s{sTmp}")
    g(f"s_add_u32 s{sT}, s{sT}, {WS_ML}")
    g("v_lshlrev_b32 v7, 7, v2")
    g("v_and_b32 v3, 31, v0")
    g("v_cmp_eq_u32 s[66:67], 0, v3")
    g("s_waitcnt lgkmcnt(0)")
    g.c("barrier 2")
    g("s_barrier")
    g.stamp(4)
    for w in range(4):
        g(f"ds_read_b64 v[{64+2*w}:{65+2*w}], v5 offset:{w*32}")
    g(f"ds_read_b128 v[48:51], v4")
    g(f"ds_read_b128 v[52:55], v9")
    g(f"ds_read_b128 v[56:59], v10")
    g(f"ds_read_b128 v[60:63], v11")
    g("s_waitcnt lgkmcnt(4)")
    g("v_max3_f32 v72, v64, v66, v68")
    g("v_max_f32 v72, v72, v70")
    g("v_and_b32 v72, 0xffffff00, v72")
    for w in range(4):
        g(f"v_sub_f32 v{74+w}, v{64+2*w}, v72")
    for w in range(4):
        g(f"v_exp_f32 v{74+w}, v{74+w}")
    g("s_waitcnt lgkmcnt(0)")
    for i in range(4):
        g(f"v_mul_f32 v{80+i}, v74, v{48+i}")
    for w in range(1, 4):
        for i in range(4):
            g(f"v_fmac_f32 v{80+i}, v{74+w}, v{48+4*w+i}")
    for i in range(4):
        tagit(80+i, 80+i, i)
    g(f"buffer_store_dwordx4 v[80:83], v8, s[{sWSs}:{sWSs+3}], s{sNext} offen sc1")
    g("v_mul_f32 v73, v74, v65")
    for w in range(1, 4):
        g(f"v_fmac_f32 v73, v{74+w}, v{65+2*w}")
    tagit(84, 72, 0)
    tagit(85, 73, 1)
    tagit(86, 72, 2)
    tagit(87, 72, 3)
    g("s_mov_b64 exec, s[66:67]")
    g(f"buffer_store_dwordx4 v[84:87], v7, s[{sWSs}:{sWSs+3}], s{sT} offen sc1")
    g("s_mov_b64 exec, -1")
    g("s_branch L_gather")

    g.label("L_H")
    sHW = sWAVE
    sA, sBs = 24, 28
    sU, sU2, sU3 = 58, 59, 60
    g("v_mov_b32 v24, 0")
    g("v_mov_b32 v25, 0")
    g("v_lshlrev_b32 v26, 3, v0")
    g(f"v_add_u32 v26, {L_ZERO}, v26")
    g("ds_write_b64 v26, v[24:25]")
    g("v_and_b32 v2, 15, v0")
    g("v_lshrrev_b32 v3, 4, v0")
    for i in range(4):
        g(f"s_mov_b32 s{sSEL+i}, {0x07060500 | i:#x}")
    g("s_mov_b32 s64, 0x0c0c0400")
    g("s_mov_b32 s65, 0x04000c0c")
    g("s_waitcnt lgkmcnt(0)")
    g.c("barrier 0")
    g("s_barrier")
    g(f"s_load_dword s{sTag}, s[{P_WS}:{P_WS+1}], {WS_EPOCH}")
    g.srd(sWSs, P_WS, WS_SIZE)
    g("v_lshrrev_b32 v4, 3, v0")
    g("v_and_b32 v5, 7, v0")
    g("v_lshlrev_b32 v5, 4, v5")
    g("v_lshrrev_b32 v6, 2, v2")
    g("v_lshl_add_u32 v6, v3, 3, v6")
    g("v_lshlrev_b32 v6, 7, v6")
    g("v_and_b32 v7, 3, v0")
    g("v_lshl_add_u32 v6, v7, 3, v6")
    g(f"s_cmp_lg_u32 s{sHW}, 0")
    g("s_cbranch_scc1 L_H123")
    g(f"s_cmp_ge_u32 s{sA_}, 8")
    g("s_cbranch_scc1 L_H0np")
    g(f"s_bitcmp1_b32 s{sX}, 0")
    g("s_cbranch_scc1 L_nocnt")
    g(f"s_lshl_b32 s{sU2}, s{sA_}, 3")
    g(f"s_add_u32 s{sU2}, s{sU2}, s{sX}")
    g(f"s_lshl_b32 s{sU2}, s{sU2}, 11")
    g(f"s_add_u32 s{sU2}, s{sU2}, {WS_CNT}")
    g("v_mov_b32 v8, 128")
    g("s_mov_b64 exec, 1")
    g(f"buffer_store_dword v8, v24, s[{sWSs}:{sWSs+3}], s{sU2} offen sc1")
    g("s_mov_b64 exec, -1")
    g.label("L_nocnt")
    g("v_lshlrev_b32 v8, 2, v7")
    g(f"v_add_u32 v8, {L_FLAG}, v8")
    g("v_lshlrev_b32 v9, 4, v0")
    g(f"v_add_u32 v9, {L_AST}, v9")
    g("v_lshlrev_b32 v10, 14, v3")
    g("v_lshl_add_u32 v10, v2, 4, v10")
    g(f"s_lshl_b32 s{sU}, s{sX}, 11")
    g(f"s_lshl_b32 s{sU2}, s{sA_}, 8")
    g(f"s_add_u32 s{sU}, s{sU}, s{sU2}")
    g(f"s_add_u32 s{sU}, s{sU}, {WS_QG}")
    g(f"s_add_u32 s{sU2}, s{sU}, 65536")
    g("s_mov_b32 s20, 0x05040c00")
    g("s_mov_b32 s21, 0x07060c01")
    g("s_mov_b32 s22, 0x05040c02")
    g("s_mov_b32 s23, 0x07060c03")
    g("s_waitcnt lgkmcnt(0)")
    g(f"s_add_u32 s{sTag}, s{sTag}, 1")
    g(f"v_mov_b32 v{vTag}, s{sTag}")
    g("s_mov_b32 s70, 0x40000")
    g.label("L_pf")
    g("ds_read_b32 v11, v8")
    g("s_sub_u32 s70, s70, 1")
    g("s_waitcnt lgkmcnt(0)")
    g(f"v_cmp_ne_u32 vcc, 1, v11")
    g("s_cbranch_vccz L_pfok")
    g("s_cmp_lg_u32 s70, 0")
    g("s_cbranch_scc1 L_pf")
    g.label("L_pfok")
    g.stamp(1)
    for hb in range(2):
        for w in range(4):
            g(f"ds_read_b128 {vr(32+16*hb+4*w,4)}, v9 offset:{w*2048 + hb*1024}")
    g("s_waitcnt lgkmcnt(0)")
    for hb in range(2):
        b0 = 32 + 16*hb
        for i in range(4):
            g(f"v_add_f32 v{b0+i}, v{b0+i}, v{b0+4+i}")
            g(f"v_add_f32 v{b0+8+i}, v{b0+8+i}, v{b0+12+i}")
        for i in range(4):
            g(f"v_add_f32 v{b0+i}, v{b0+i}, v{b0+8+i}")
        g(f"v_cvt_pk_bf16_f32 v{b0+4}, v{b0}, v{b0+1}")
        g(f"v_cvt_pk_bf16_f32 v{b0+5}, v{b0+2}, v{b0+3}")
        g(f"v_perm_b32 v{b0+8}, v{b0+4}, v{vTag}, s20")
        g(f"v_perm_b32 v{b0+9}, v{b0+4}, v{vTag}, s21")
        g(f"v_perm_b32 v{b0+10}, v{b0+5}, v{vTag}, s22")
        g(f"v_perm_b32 v{b0+11}, v{b0+5}, v{vTag}, s23")
    g("s_waitcnt vmcnt(0)")
    g(f"buffer_store_dwordx4 v[40:43], v10, s[{sWSs}:{sWSs+3}], s{sU} offen sc1")
    g(f"buffer_store_dwordx4 v[56:59], v10, s[{sWSs}:{sWSs+3}], s{sU2} offen sc1")
    g(f"v_mov_b32 v8, {L_FLAG2}")
    g("v_mov_b32 v9, 1")
    g("ds_write_b32 v8, v9")
    g.stamp(2)
    g("s_branch L_H0q")
    g.label("L_H0np")
    if QSLEEP0:
        g(f"s_sleep {QSLEEP0}")
    g("s_waitcnt lgkmcnt(0)")
    g(f"s_add_u32 s{sTag}, s{sTag}, 1")
    g(f"v_mov_b32 v{vTag}, s{sTag}")
    g.label("L_H0q")
    g(f"s_lshl_b32 s{sU2}, s{sGRP}, 12")
    g(f"s_add_u32 s{sU2}, s{sU2}, {WS_QG}")
    g("v_lshlrev_b32 v26, 4, v0")
    g("v_lshlrev_b32 v25, 3, v0")
    g(f"v_add_u32 v25, {L_QBUF}, v25")
    g("s_mov_b32 s20, 0x07060302")
    g("s_mov_b32 s70, 0x40000")
    if QPIPE <= 1:
        g("s_mov_b32 s71, 15")
        g.label("L_pollq")
        for u in range(4):
            g(f"s_bitcmp1_b32 s71, {u}")
            g(f"s_cbranch_scc0 L_qa{u}")
            g(f"buffer_load_dwordx4 {vr(32+4*u,4)}, v26, s[{sWSs}:{sWSs+3}], s{sU2} offen offset:{u*1024} sc1")
            g.label(f"L_qa{u}")
        g("s_waitcnt vmcnt(0)")
        for u in range(4):
            tagchk(27, 32+4*u, True, 28, 29)
            g("v_cmp_ne_u32 vcc, 0, v27")
            g(f"s_cbranch_vccnz L_qb{u}")
            g(f"s_bitset0_b32 s71, {u}")
            g.label(f"L_qb{u}")
        g("s_cmp_eq_u32 s71, 0")
        g("s_cbranch_scc1 L_qok")
        g("s_sub_u32 s70, s70, 1")
        g("s_cmp_lg_u32 s70, 0")
        g("s_cbranch_scc1 L_pollq")
    else:
        def qiss(k):
            for u in range(4):
                g(f"buffer_load_dwordx4 {vr(32+16*k+4*u,4)}, v26, s[{sWSs}:{sWSs+3}], s{sU2} offen offset:{u*1024} sc1")
        g("s_waitcnt vmcnt(0)")
        for k in range(QPIPE - 1):
            qiss(k)
            g(f"s_sleep {QGAP}")
        g.label("L_pollq")
        for k in range(QPIPE):
            qiss((k + QPIPE - 1) % QPIPE)
            g(f"s_waitcnt vmcnt({4*(QPIPE-1)})")
            for u in range(4):
                tagchk(27, 32+16*k+4*u, u == 0, 28, 29)
            g("v_cmp_ne_u32 vcc, 0, v27")
            g(f"s_cbranch_vccz L_qok{k}")
            g(f"s_sleep {QGAP}")
        g("s_sub_u32 s70, s70, 1")
        g("s_cmp_lg_u32 s70, 0")
        g("s_cbranch_scc1 L_pollq")
        for k in range(QPIPE - 1, -1, -1):
            g.label(f"L_qok{k}")
            for u in range(4):
                g(f"v_perm_b32 v{112+2*u}, v{33+16*k+4*u}, v{32+16*k+4*u}, s20")
                g(f"v_perm_b32 v{113+2*u}, v{35+16*k+4*u}, v{34+16*k+4*u}, s20")
            if k: g("s_branch L_qok")
    g.label("L_qok")
    g.stamp(3)
    for u in range(4):
        if QPIPE <= 1:
            g(f"v_perm_b32 v{112+2*u}, v{33+4*u}, v{32+4*u}, s20")
            g(f"v_perm_b32 v{113+2*u}, v{35+4*u}, v{34+4*u}, s20")
        g(f"ds_write_b64 v25, {vr(112+2*u,2)} offset:{u*512}")
    g(f"v_mov_b32 v8, {L_FLAG3}")
    g("v_mov_b32 v9, 1")
    g("s_waitcnt lgkmcnt(0)")
    g("ds_write_b32 v8, v9")
    g("s_waitcnt vmcnt(0)")
    g.stamp(4)
    g.srd(sA, P_X, 8192)
    g.srd(sBs, P_GW, 1024)
    g("v_lshlrev_b32 v8, 4, v0")
    g(f"s_lshl_b32 s{sU2}, s{sB}, 10")
    g(f"buffer_load_dwordx4 v[16:19], v8, s[{sA}:{sA+3}], s{sU2} offen")
    g(f"buffer_load_dwordx4 v[20:23], v8, s[{sBs}:{sBs+3}], 0 offen")
    g("s_waitcnt vmcnt(0)")
    for i in range(4):
        g(f"v_lshlrev_b32 v{24+2*i}, 16, v{16+i}")
        g(f"v_and_b32 v{25+2*i}, 0xffff0000, v{16+i}")
        g(f"v_lshlrev_b32 v{32+2*i}, 16, v{20+i}")
        g(f"v_and_b32 v{33+2*i}, 0xffff0000, v{20+i}")
    for i in range(8):
        g(f"v_mul_f32 v{24+i}, v{24+i}, v{32+i}")
    for i in range(4):
        g(f"v_cvt_pk_bf16_f32 v{32+i}, v{24+2*i}, v{25+2*i}")
    for i in range(4):
        g(f"v_lshlrev_b32 v{24+2*i}, 16, v{32+i}")
        g(f"v_and_b32 v{25+2*i}, 0xffff0000, v{32+i}")
    g("v_add_f32 v24, v24, v25")
    g("v_add_f32 v26, v26, v27")
    g("v_add_f32 v28, v28, v29")
    g("v_add_f32 v30, v30, v31")
    g("v_add_f32 v24, v24, v26")
    g("v_add_f32 v28, v28, v30")
    g("v_add_f32 v24, v24, v28")
    for rot in (1, 2, 4, 8):
        g("s_nop 1")
        g(f"v_add_f32_dpp v25, v24, v24 row_ror:{rot} row_mask:0xf bank_mask:0xf")
        g("v_mov_b32 v24, v25")
    g("s_nop 1")
    g("v_permlane16_swap_b32 v24, v25")
    g("v_add_f32 v24, v24, v25")
    g("v_mov_b32 v25, v24")
    g("s_nop 1")
    g("v_permlane32_swap_b32 v24, v25")
    g("v_add_f32 v24, v24, v25")
    g("v_cvt_pk_bf16_f32 v24, v24, v24")
    g("v_and_b32 v24, 0xffff0000, v24")
    g("v_mul_f32 v24, 0xbfb8aa3b, v24")
    g("v_exp_f32 v24, v24")
    g("s_nop 0")
    g("v_add_f32 v24, 1.0, v24")
    g("v_rcp_f32 v24, v24")
    g("s_nop 0")
    g("v_cvt_pk_bf16_f32 v24, v24, v24")
    g("v_and_b32 v10, 0xffff0000, v24")
    g("v_sub_f32 v11, 1.0, v10")
    g("v_cvt_pk_bf16_f32 v11, v11, v11")
    g("v_and_b32 v11, 0xffff0000, v11")

    def inbox_reduce(tag, off, nchunk2, sleep, dst, presleep=0):
        g(f"s_lshl_b32 s{sU2}, s2, 12")
        g(f"s_add_u32 s{sU2}, s{sU2}, {WS_PAB + off}")
        g("v_lshlrev_b32 v8, 4, v0")
        if nchunk2 < 64:
            g(f"v_cmp_gt_u32 s[66:67], {nchunk2}, v0")
            g(f"v_min_u32 v9, {nchunk2-1}, v0")
            g("v_lshlrev_b32 v9, 4, v9")
        g("s_mov_b32 s70, 0x40000")
        for _ in range(presleep):
            g("s_sleep 127")
        g.label(f"L_polli{tag}")
        g(f"buffer_load_dwordx4 v[16:19], v8, s[{sWSs}:{sWSs+3}], s{sU2} offen sc1")
        g(f"buffer_load_dwordx4 v[20:23], {'v9' if nchunk2 < 64 else 'v8'}, s[{sWSs}:{sWSs+3}], s{sU2} offen offset:1024 sc1")
        g("s_waitcnt vmcnt(0)")
        tagchk(24, 16, True, 25, 26)
        tagchk(24, 20, False, 25, 26)
        g("v_cmp_ne_u32 vcc, 0, v24")
        g(f"s_cbranch_vccz L_iok{tag}")
        g(f"s_sleep {sleep}")
        g("s_sub_u32 s70, s70, 1")
        g("s_cmp_lg_u32 s70, 0")
        g(f"s_cbranch_scc1 L_polli{tag}")
        g.label(f"L_iok{tag}")
        if tag == "a": g.stamp(13)
        if nchunk2 < 64:
            for i in range(4):
                g(f"v_cndmask_b32 v{20+i}, 0, v{20+i}, s[66:67]")
        for i in range(4):
            g(f"v_add_f32 v{16+i}, v{16+i}, v{20+i}")
        g("s_nop 0")
        for i in range(4):
            g(f"v_add_f32_dpp v{20+i}, v{16+i}, v{16+i} row_ror:4 row_mask:0xf bank_mask:0xf")
        g("s_nop 0")
        for i in range(4):
            g(f"v_add_f32_dpp v{16+i}, v{20+i}, v{20+i} row_ror:8 row_mask:0xf bank_mask:0xf")
        for i in range(4):
            g(f"v_mov_b32 v{20+i}, v{16+i}")
        g("s_nop 0")
        for i in range(4):
            g(f"v_permlane16_swap_b32 v{16+i}, v{20+i}")
        for i in range(4):
            g(f"v_add_f32 v{16+i}, v{16+i}, v{20+i}")
        for i in range(4):
            g(f"v_mov_b32 v{20+i}, v{16+i}")
        g("s_nop 0")
        for i in range(4):
            g(f"v_permlane32_swap_b32 v{16+i}, v{20+i}")
        for i in range(4):
            g(f"v_add_f32 v{dst+i}, v{16+i}, v{20+i}")
    g.stamp(5)
    if not NOFFN:
        inbox_reduce("b", 2048, 48, 32, 12, presleep=3)
    g.stamp(6)
    g("s_branch L_Hbar2")

    g.label("L_H123")
    g(f"s_cmp_lg_u32 s{sHW}, 2")
    g("s_cbranch_scc1 L_H13")
    g("v_mov_b32 v8, 0")
    g(f"v_mov_b32 v9, {L_HEAD}")
    g(f"s_lshl_b32 s{sU}, s{sGRP}, 12")
    g(f"s_add_u32 s{sU}, s{sU}, {WS_CNT}")
    g("s_mov_b32 s20, 0")
    g("s_mov_b32 s70, 0x100000")
    g("s_waitcnt lgkmcnt(0)")
    g(f"s_add_u32 s{sTag}, s{sTag}, 1")
    g(f"v_mov_b32 v{vTag}, s{sTag}")
    g("s_mov_b64 exec, 1")
    g.label("L_Dwq")
    g(f"ds_read_b32 v10, v9 offset:{L_FLAG3 - L_HEAD}")
    g("s_sub_u32 s70, s70, 1")
    g("s_waitcnt lgkmcnt(0)")
    g("v_cmp_ne_u32 vcc, 1, v10")
    g("s_cbranch_vccz L_Dclaim")
    g("s_sleep 2")
    g("s_cmp_lg_u32 s70, 0")
    g("s_cbranch_scc1 L_Dwq")
    g("s_branch L_Ddone")
    if True:
        g.label("L_Dloop")
        g("ds_read_b32 v10, v9")
        g("s_sub_u32 s70, s70, 1")
        g("s_waitcnt lgkmcnt(0)")
        g("v_readfirstlane_b32 s21, v10")
        g("s_cmp_eq_u32 s70, 0")
        g("s_cbranch_scc1 L_Ddone")
        g("s_sub_u32 s21, s20, s21")
        g(f"s_cmp_lt_i32 s21, {TH}")
        g("s_cbranch_scc1 L_Dclaim")
        g("s_sleep 1")
        g("s_branch L_Dloop")
        g.label("L_Dclaim")
        g("v_mov_b32 v11, 4")
        g(f"buffer_atomic_add v11, v8, s[{sWSs}:{sWSs+3}], s{sU} offen sc0 sc1")
        g("s_and_b32 s22, s20, 60")
        g(f"s_add_u32 s22, s22, {L_Q}")
        g("v_mov_b32 v12, s22")
        g("s_add_u32 s20, s20, 4")
        g("s_lshl_b32 s23, s20, 14")
        g("s_waitcnt vmcnt(0)")
        g(f"v_min_u32 v11, {NU}, v11")
        g("v_or_b32 v13, s23, v11")
        g("ds_write_b32 v12, v13")
        g(f"v_cmp_gt_u32 vcc, {NU}, v11")
        g("s_cbranch_vccnz L_Dloop")
        g("s_and_b32 s22, s20, 60")
        g(f"s_add_u32 s22, s22, {L_Q}")
        g("v_mov_b32 v12, s22")
        g("v_add_u32 v13, 0x10000, v13")
        g("ds_write_b32 v12, v13")
        g.label("L_Ddone")
        g("s_mov_b64 exec, -1")
        g("s_waitcnt lgkmcnt(0)")
    g.stamp(5)
    g("s_branch L_Hbar2")

    g.label("L_H13")
    g("s_waitcnt lgkmcnt(0)")
    g(f"s_add_u32 s{sTag}, s{sTag}, 1")
    g(f"v_mov_b32 v{vTag}, s{sTag}")
    g(f"s_cmp_eq_u32 s{sHW}, 3")
    g("s_cbranch_scc1 L_Hbar2")
    if WDELAY:
        g(f"s_sleep {WDELAY}")
    g(f"s_cmp_ge_u32 s{sA_}, 8")
    g("s_cbranch_scc1 L_H1wo")
    g(f"v_mov_b32 v8, {L_FLAG2}")
    g("s_mov_b32 s70, 0x4000")
    g.label("L_H1w")
    g("ds_read_b32 v9, v8")
    g("s_sub_u32 s70, s70, 1")
    g("s_waitcnt lgkmcnt(0)")
    g("v_cmp_ne_u32 vcc, 1, v9")
    g("s_cbranch_vccz L_H1wo")
    g("s_sleep 2")
    g("s_cmp_lg_u32 s70, 0")
    g("s_cbranch_scc1 L_H1w")
    g.label("L_H1wo")
    g.srd(sA, P_WO, 4096 * 512 * 2)
    g("v_lshl_add_u32 v8, v4, 10, v5")
    g(f"s_lshl_b32 s{sU}, s{sX}, 2")
    g(f"s_add_u32 s{sU}, s{sU}, s{sSPLIT}")
    g(f"s_lshl_b32 s{sU}, s{sU}, 17")
    g(f"s_lshl_b32 s{sU2}, s{sB}, 7")
    g(f"s_add_u32 s{sU}, s{sU}, s{sU2}")
    for i in range(16):
        g(f"s_mov_b32 m0, {L_ST + i*1024}")
        g(f"s_add_u32 s{sU2}, s{sU}, {i*8192}")
        g(f"buffer_load_dwordx4 v8, s[{sA}:{sA+3}], s{sU2} offen {WPOL} lds")
    g("s_waitcnt vmcnt(0)")
    g.stamp(5)

    g.label("L_Hbar2")
    g(f"s_lshl_b32 s{sU}, s{sHW}, 5")
    g(f"s_add_u32 s{sU}, s{sU}, {L_ST}")
    g(f"v_add_u32 v9, s{sU}, v6")
    g.stamp(7)
    g.c("barrier 2")
    g("s_barrier")
    for kb in range(4):
        g(f"ds_read_b64_tr_b16 {vr(32+4*kb,2)}, v9 offset:{kb*4096}")
        g(f"ds_read_b64_tr_b16 {vr(34+4*kb,2)}, v9 offset:{kb*4096+512}")

    g.label("L_gather")
    g.stamp(8)
    g(f"s_lshl_b32 s58, s{sWAVE}, 3")
    g(f"s_add_u32 s58, s58, s{sX}")
    g(f"s_lshl_b32 s59, s58, 2")
    g(f"s_add_u32 s59, s59, s{sSPLIT}")
    g(f"s_lshl_b32 s59, s59, 7")
    g(f"s_add_u32 s59, s59, {WS_ML}")
    g(f"s_lshl_b32 s58, s58, 14")
    g(f"s_lshl_b32 s60, s{sSPLIT}, 9")
    g(f"s_add_u32 s58, s58, s60")
    g(f"s_add_u32 s60, s58, {WS_RO}")
    g(f"s_add_u32 s61, s58, {WS_RO + 4096}")
    g(f"s_add_u32 s62, s58, {WS_RO + 8192}")
    g(f"s_add_u32 s63, s58, {WS_RO + 12288}")
    g("v_lshrrev_b32 v50, 5, v0")
    g("v_and_b32 v51, 31, v0")
    g("v_lshlrev_b32 v48, 11, v50")
    g("v_lshl_add_u32 v48, v51, 4, v48")
    g("v_and_b32 v49, 3, v0")
    g("v_lshl_add_u32 v49, v49, 1, v50")
    g("v_lshlrev_b32 v49, 4, v49")
    g("s_mov_b32 s71, 15")
    g("s_mov_b32 s68, 0")
    g("s_mov_b32 s70, 0x40000")
    if dbg: g("s_mov_b32 s87, 0")
    g.label("L_pollr")
    if dbg: g("s_add_u32 s87, s87, 1")
    g("s_andn2_b32 s69, s71, s68")
    g("s_bcnt1_i32_b32 s69, s69")
    g(f"s_cmp_le_u32 s69, {GEAGER}")
    g("s_cselect_b32 s69, 15, s68")
    g("s_and_b32 s69, s69, s71")
    g("s_cmp_eq_u32 s68, 15")
    g("s_cbranch_scc1 L_pr4")
    g(f"buffer_load_dwordx4 {vr(72,4)}, v49, s[{sWSs}:{sWSs+3}], s59 offen sc1")
    g.label("L_pr4")
    for s_ in range(4):
        g(f"s_bitcmp1_b32 s69, {s_}")
        g(f"s_cbranch_scc0 L_pr{s_}")
        g(f"buffer_load_dwordx4 {vr(56+4*s_,4)}, v48, s[{sWSs}:{sWSs+3}], s{60+s_} offen sc1")
        g.label(f"L_pr{s_}")
    g("s_waitcnt vmcnt(0)")
    tagchk(52, 72, True, 53, 54)
    g("v_cmp_eq_u32 vcc, 0, v52")
    g("s_and_b32 s68, vcc_lo, vcc_hi")
    g("s_and_b32 s68, s68, 15")
    for s_ in range(4):
        g(f"s_bitcmp1_b32 s69, {s_}")
        g(f"s_cbranch_scc0 L_pq{s_}")
        tagchk(52, 56+4*s_, True, 53, 54)
        g("v_cmp_ne_u32 vcc, 0, v52")
        g(f"s_cbranch_vccnz L_pq{s_}")
        g(f"s_bitset0_b32 s71, {s_}")
        g.label(f"L_pq{s_}")
    g("s_xor_b32 s69, s68, 15")
    g("s_or_b32 s69, s69, s71")
    g("s_cmp_eq_u32 s69, 0")
    g("s_cbranch_scc1 L_rok")
    if RSLEEP:
        g(f"s_sleep {RSLEEP}")
    g("s_sub_u32 s70, s70, 1")
    g("s_cmp_lg_u32 s70, 0")
    g("s_cbranch_scc1 L_pollr")
    g.label("L_rok")
    g.stamp(9)
    g("v_and_b32 v72, 0xffffff00, v72")
    g("s_nop 1")
    g("v_max_f32_dpp v52, v72, v72 quad_perm:[1,0,3,2] row_mask:0xf bank_mask:0xf")
    g("s_nop 1")
    g("v_max_f32_dpp v53, v52, v52 quad_perm:[2,3,0,1] row_mask:0xf bank_mask:0xf")
    g("v_mov_b32 v52, v53")
    g("s_nop 1")
    g("v_permlane32_swap_b32 v52, v53")
    g("v_max_f32 v52, v52, v53")
    g("v_sub_f32 v52, v72, v52")
    g("v_exp_f32 v52, v52")
    g("s_nop 0")
    g("v_mul_f32 v53, v52, v73")
    g("s_nop 0")
    for i in range(4):
        g(f"v_mul_f32_dpp v{76+i}, v52, v{56+i} quad_perm:[0,0,0,0] row_mask:0xf bank_mask:0xf")
    g("v_add_f32_dpp v54, v53, v53 quad_perm:[1,0,3,2] row_mask:0xf bank_mask:0xf")
    for s_ in range(1, 4):
        for i in range(4):
            g(f"v_fmac_f32_dpp v{76+i}, v52, v{56+4*s_+i} quad_perm:[{s_},{s_},{s_},{s_}] row_mask:0xf bank_mask:0xf")
        if s_ == 1:
            g("v_add_f32_dpp v53, v54, v54 quad_perm:[2,3,0,1] row_mask:0xf bank_mask:0xf")
    g("v_mov_b32 v54, v53")
    for i in range(4):
        g(f"v_mov_b32 v{56+i}, v{76+i}")
    g("s_nop 0")
    g("v_permlane32_swap_b32 v53, v54")
    for i in range(4):
        g(f"v_permlane32_swap_b32 v{76+i}, v{56+i}")
    g("v_add_f32 v53, v53, v54")
    g("v_rcp_f32 v53, v53")
    for i in range(4):
        g(f"v_add_f32 v{76+i}, v{76+i}, v{56+i}")
    for i in range(4):
        g(f"v_mul_f32 v{76+i}, v53, v{76+i}")
    g("v_cvt_pk_bf16_f32 v52, v76, v77")
    g("v_cvt_pk_bf16_f32 v53, v78, v79")
    g(f"s_lshl_b32 s58, s{sWAVE}, 8")
    g(f"s_add_u32 s58, s58, {L_OBUF}")
    g(f"v_lshl_add_u32 v50, v51, 3, s58")
    g("ds_write_b64 v50, v[52:53]")
    g("s_waitcnt lgkmcnt(0)")
    g.c("barrier 3")
    g("s_barrier")
    g.stamp(10)
    g(f"s_cmp_ge_u32 s{sWAVE}, 4")
    g("s_cbranch_scc1 L_fin")
    g("v_and_b32 v9, 7, v0")
    g("v_lshlrev_b32 v9, 8, v9")
    g("v_lshl_add_u32 v9, v3, 4, v9")
    for kb in range(4):
        g(f"ds_read_b128 {vr(48+4*kb,4)}, v9 offset:{L_OBUF + kb*64}")
    g("v_lshlrev_b32 v8, 17, v2")
    g("v_lshl_add_u32 v8, v3, 4, v8")
    g(f"s_lshl_b32 s{sU}, s{sHW}, 3")
    g(f"s_add_u32 s{sU}, s{sU}, s{sB}")
    g(f"s_lshl_b32 s{sU}, s{sU}, 12")
    g(f"s_lshl_b32 s{sU2}, s{sX}, 2")
    g(f"s_add_u32 s{sU2}, s{sU2}, s{sSPLIT}")
    g(f"s_lshl_b32 s{sU2}, s{sU2}, 6")
    g(f"s_add_u32 s{sU}, s{sU}, s{sU2}")
    g(f"s_add_u32 s{sU}, s{sU}, {WS_PAB}")
    g("v_cmp_gt_u32 s[66:67], 8, v2")
    g("s_waitcnt lgkmcnt(0)")
    for kb in range(4):
        srcc = "0" if kb == 0 else "v[64:67]"
        g(f"v_mfma_f32_16x16x32_bf16 v[64:67], {vr(32+4*kb,4)}, {vr(48+4*kb,4)}, {srcc}")
    g("s_nop 7")
    g("s_nop 3")
    for i in range(4):
        tagit(64+i, 64+i, i)
    g("s_mov_b64 exec, s[66:67]")
    g(f"buffer_store_dwordx4 v[64:67], v8, s[{sWSs}:{sWSs+3}], s{sU} offen sc1")
    g("s_mov_b64 exec, -1")
    g.stamp(11)
    g(f"s_cmp_lg_u32 s{sHW}, 0")
    g("s_cbranch_scc1 L_fin")
    g.srd(sA, P_OUT, 8192)
    inbox_reduce("a", 0, 64, ASLEEP, 24)
    g(f"s_lshl_b32 s{sU}, s{sB}, 10")
    g(f"s_lshl_b32 s{sU2}, s{sX}, 7")
    g(f"s_add_u32 s{sU}, s{sU}, s{sU2}")
    g(f"s_lshl_b32 s{sU2}, s{sSPLIT}, 5")
    g(f"s_add_u32 s{sU}, s{sU}, s{sU2}")
    g("v_lshlrev_b32 v8, 3, v0")
    for i in range(4):
        g(f"v_cvt_pk_bf16_f32 v{16+i}, v{24+i}, v{12+i}")
    for i in range(4):
        g(f"v_lshlrev_b32 v{20+i}, 16, v{16+i}")
        g(f"v_and_b32 v{24+i}, 0xffff0000, v{16+i}")
    for i in range(4):
        g(f"v_mul_f32 v{20+i}, v10, v{20+i}")
        g(f"v_mul_f32 v{24+i}, v11, v{24+i}")
    for i in range(4):
        g(f"v_cvt_pk_bf16_f32 v{16+i}, v{20+i}, v{24+i}")
    for i in range(4):
        g(f"v_lshlrev_b32 v{20+i}, 16, v{16+i}")
        g(f"v_and_b32 v{24+i}, 0xffff0000, v{16+i}")
    for i in range(4):
        g(f"v_add_f32 v{20+i}, v{20+i}, v{24+i}")
    g("v_cvt_pk_bf16_f32 v16, v20, v21")
    g("v_cvt_pk_bf16_f32 v17, v22, v23")
    g("s_mov_b64 exec, 15")
    g(f"buffer_store_dwordx2 v[16:17], v8, s[{sA}:{sA+3}], s{sU} offen")
    g("s_cmp_lg_u32 s2, 0")
    g("s_cbranch_scc1 L_noep")
    g("s_mov_b64 exec, 1")
    g(f"buffer_store_dword v{vTag}, v8, s[{sWSs}:{sWSs+3}], 0 offen offset:{WS_EPOCH} sc1")
    g.label("L_noep")
    if dbg:
        g("s_waitcnt vmcnt(0)")
    g.stamp(12)
    g.label("L_fin")
    g.stamp_out(sWSs)
    g.label("L_end")
    g("s_endpgm")
    g.o.append('.section .rodata,"a"')
    g.o.append(".p2align 6")
    g.o.append(f".amdhsa_kernel {KN}")
    for l in ("next_free_vgpr 256", "next_free_sgpr 96", "accum_offset 128", "group_segment_fixed_size 0",
              "kernarg_size 104", "user_sgpr_count 2", "user_sgpr_kernarg_segment_ptr 1",
              "system_sgpr_workgroup_id_x 1"):
        g.o.append("  .amdhsa_" + l)
    g.o.append(".end_amdhsa_kernel")
    return "\n".join(g.o) + "\n"


if __name__ == "__main__":
    out = sys.argv[1] if len(sys.argv) > 1 else "k4.s"
    open(out, "w").write(gen(dbg=int(sys.argv[2]) if len(sys.argv) > 2 else 0))
```

```python
import sys, os

KN = "gated_mix__gqa_block_cached__geglu_ffn__decode_kernel"

WS_EPOCH = 0
WS_CNT = 0x20000
WS_QG = 0x40000
WS_ML = 0x60000
WS_RO = 0x80000
WS_PAB = 0x200000
WS_SIZE = 0x400000

L_H = 131072
L_QBUF = L_H
L_ZERO = L_H + 2048
L_CTL = L_H + 2304
L_FLAG = L_CTL
L_HEAD = L_CTL + 16
L_FLAG2 = L_CTL + 20
L_FLAG3 = L_CTL + 24
L_Q = L_CTL + 64
L_ML = L_H + 2560
L_ST = L_H + 4096
L_AST = L_H + 20480
L_OBUF = 16384
LDS_TOTAL = 163840

HPD = int(os.environ.get("HPD", "2"))
RSLEEP = int(os.environ.get("RSLEEP", "2"))
ASLEEP = int(os.environ.get("ASLEEP", "1"))
QSLEEP0 = int(os.environ.get("QSLEEP0", "40"))
TH = int(os.environ.get("TH", "2"))
PDF = int(os.environ.get("PDF", "5"))
NOFFN = int(os.environ.get("NOFFN", "0"))
STATIC = int(os.environ.get("STATIC", "0"))
SDELAY = int(os.environ.get("SDELAY", "16"))
FDELAY = int(os.environ.get("FDELAY", "48"))
GEAGER = int(os.environ.get("GEAGER", "1"))
KPOL = os.environ.get("KPOL", "nt").replace("+", " ").replace("def", "")
VPOL = os.environ.get("VPOL", "nt").replace("+", " ").replace("def", "")
WPOL = os.environ.get("WPOL", "nt").replace("+", " ").replace("def", "")
QPIPE = int(os.environ.get("QPIPE", "4"))
QGAP = int(os.environ.get("QGAP", "8"))
PWAIT = int(os.environ.get("PWAIT", "1"))
HSW = int(os.environ.get("HSW", "12"))
HPD2 = int(os.environ.get("HPD2", "1"))
NS = 7
U0 = int(os.environ.get("U0", "512"))
NU = U0 + 2 * (512 - U0)
WDELAY = int(os.environ.get("WDELAY", "32"))
APIPE = int(os.environ.get("APIPE", "1"))
AGAP = int(os.environ.get("AGAP", "3"))
PRET = int(os.environ.get("PRET", "0"))
LOCAL = int(os.environ.get("LOCAL", "1"))
MLC = int(os.environ.get("MLC", "1"))
EARLYA = int(os.environ.get("EARLYA", "0"))
PD4 = int(os.environ.get("PD4", "2"))
BURST = int(os.environ.get("BURST", "9999"))
W2 = int(os.environ.get("W2", "4"))
BF = int(os.environ.get("BF", "4"))
THS = int(os.environ.get("THS", os.environ.get("TH", "2")))
BS = int(os.environ.get("BS", "4"))
SLOWQ = int(os.environ.get("SLOWQ", "10"))
EPH = int(os.environ.get("EPH", "0"))
THE = int(os.environ.get("THE", "2"))
BE = int(os.environ.get("BE", "2"))
SLOWFROM = int(os.environ.get("SLOWFROM", "0"))
POPS = int(os.environ.get("POPS", "2"))
L_SWC = L_CTL + 32
L_OBUF2 = L_H + 28672
WS_ML8 = 0x300000
WS_XT = 0x70000
L_LOC = L_CTL + 28
MINIT = 0xf149f2ca


class G:
    def __init__(self):
        self.o = []
    def __call__(self, s):
        self.o.append("    " + s)
    def label(self, s):
        self.o.append(s + ":")
    def c(self, s):
        self.o.append("    ; " + s)
    def stamp(self, i):
        if not self.stamps: return
        self("s_memrealtime s[90:91]")
        self("s_waitcnt lgkmcnt(0)")
        self(f"s_mov_b32 s{72+i}, s90")
    def stamp_out(self, sWSs):
        if not self.stamps: return
        self("s_lshl_b32 s90, s2, 9")
        self("s_lshl_b32 s91, s3, 6")
        self("s_add_u32 s90, s90, s91")
        self("s_add_u32 s90, s90, 0x180000")
        self("s_mov_b64 exec, 1")
        self("v_mov_b32 v1, 0")
        for i in range(16):
            self(f"v_mov_b32 v2, s{72+i}")
            self(f"buffer_store_dword v2, v1, s[{sWSs}:{sWSs+3}], s90 offen offset:{4*i}")
            self("s_nop 1")
    def srd(self, d, p, nbytes):
        self(f"s_mov_b32 s{d}, s{p}")
        self(f"s_and_b32 s{d+1}, s{p+1}, 0xffff")
        self(f"s_mov_b32 s{d+2}, {nbytes:#x}")
        self(f"s_mov_b32 s{d+3}, 0x20000")


def vr(a, n=1):
    return f"v{a}" if n == 1 else f"v[{a}:{a+n-1}]"
def ar(a, n=1):
    return f"a{a}" if n == 1 else f"a[{a}:{a+n-1}]"


def gen(dbg=0):
    g = G()
    g.stamps = dbg
    g.o.append(f"; @launch grid=(256,1,1) block=(512,1,1) lds={LDS_TOTAL}")
    g.o.append('.amdgcn_target "amdgcn-amd-amdhsa--gfx950"')
    g.o.append(".text")
    g.o.append(f".globl {KN}")
    g.o.append(".p2align 8")
    g.o.append(f".type {KN},@function")
    g.label(KN)
    P_X, P_K, P_V, P_WQ, P_WO, P_WG, P_WU, P_WD, P_GW, P_OUT, P_DBG, P_WS = 32, 34, 36, 38, 40, 44, 46, 48, 50, 52, 54, 56
    sWAVE, sX, sA_, sB, sSPLIT = 3, 4, 5, 6, 7
    sKs, sVs, sWSs = 8, 12, 16
    sTag, sGRP = 88, 89
    sSEL = 92
    vTag = 126

    def tagit(dst, src, i):
        g(f"v_perm_b32 v{dst}, v{src}, v{vTag}, s{sSEL+i}")

    def tagchk(acc, r, first, t0, t1):
        g(f"v_perm_b32 v{t0}, v{r+1}, v{r}, s64")
        g(f"v_perm_b32 v{t1}, v{r+3}, v{r+2}, s65")
        if first:
            g(f"v_or_b32 v{acc}, v{t0}, v{t1}")
            g(f"v_xor_b32 v{acc}, v{vTag}, v{acc}")
        else:
            g(f"v_or_b32 v{t0}, v{t0}, v{t1}")
            g(f"v_xor_b32 v{t0}, v{vTag}, v{t0}")
            g(f"v_or_b32 v{acc}, v{acc}, v{t0}")

    def gmath(O, M, T, R):
        g(f"v_and_b32 v{M}, 0xffffff00, v{M}")
        g("s_nop 1")
        g(f"v_max_f32_dpp v{T}, v{M}, v{M} quad_perm:[1,0,3,2] row_mask:0xf bank_mask:0xf")
        g("s_nop 1")
        g(f"v_max_f32_dpp v{T+1}, v{T}, v{T} quad_perm:[2,3,0,1] row_mask:0xf bank_mask:0xf")
        g(f"v_mov_b32 v{T}, v{T+1}")
        g("s_nop 1")
        g(f"v_permlane32_swap_b32 v{T}, v{T+1}")
        g(f"v_max_f32 v{T}, v{T}, v{T+1}")
        g(f"v_sub_f32 v{T}, v{M}, v{T}")
        g(f"v_exp_f32 v{T}, v{T}")
        g("s_nop 0")
        g(f"v_mul_f32 v{T+1}, v{T}, v{M+1}")
        g("s_nop 0")
        for i in range(4):
            g(f"v_mul_f32_dpp v{R+i}, v{T}, v{O+i} quad_perm:[0,0,0,0] row_mask:0xf bank_mask:0xf")
        g(f"v_add_f32_dpp v{T+2}, v{T+1}, v{T+1} quad_perm:[1,0,3,2] row_mask:0xf bank_mask:0xf")
        for s_ in range(1, 4):
            for i in range(4):
                g(f"v_fmac_f32_dpp v{R+i}, v{T}, v{O+4*s_+i} quad_perm:[{s_},{s_},{s_},{s_}] row_mask:0xf bank_mask:0xf")
            if s_ == 1:
                g(f"v_add_f32_dpp v{T+1}, v{T+2}, v{T+2} quad_perm:[2,3,0,1] row_mask:0xf bank_mask:0xf")
        g(f"v_mov_b32 v{T+2}, v{T+1}")
        for i in range(4):
            g(f"v_mov_b32 v{O+i}, v{R+i}")
        g("s_nop 0")
        g(f"v_permlane32_swap_b32 v{T+1}, v{T+2}")
        for i in range(4):
            g(f"v_permlane32_swap_b32 v{R+i}, v{O+i}")
        g(f"v_add_f32 v{T+1}, v{T+1}, v{T+2}")
        g(f"v_rcp_f32 v{T+1}, v{T+1}")
        for i in range(4):
            g(f"v_add_f32 v{R+i}, v{R+i}, v{O+i}")
        for i in range(4):
            g(f"v_mul_f32 v{R+i}, v{T+1}, v{R+i}")
        g(f"v_cvt_pk_bf16_f32 v{T}, v{R}, v{R+1}")
        g(f"v_cvt_pk_bf16_f32 v{T+1}, v{R+2}, v{R+3}")

    g("s_cmp_ge_u32 s2, 256")
    g("s_cbranch_scc1 L_end")
    g("s_load_dwordx16 s[32:47], s[0:1], 0")
    g("s_load_dwordx2 s[56:57], s[0:1], 96")
    g("s_load_dwordx8 s[48:55], s[0:1], 64")
    g("v_lshrrev_b32 v1, 6, v0")
    g("v_and_b32 v0, 63, v0")
    g(f"v_readfirstlane_b32 s{sWAVE}, v1")
    g(f"s_and_b32 s{sX}, s2, 7")
    g(f"s_lshr_b32 s{sA_}, s2, 3")
    g(f"s_lshr_b32 s{sB}, s{sA_}, 2")
    g(f"s_and_b32 s{sSPLIT}, s{sA_}, 3")
    g(f"s_lshl_b32 s{sGRP}, s{sX}, 2")
    g(f"s_add_u32 s{sGRP}, s{sGRP}, s{sA_}")
    g(f"s_and_b32 s{sGRP}, s{sGRP}, 31")
    if dbg:
        for i in range(16): g(f"s_mov_b32 s{72+i}, 0")
    g.stamp(0)
    if dbg >= 2: g.stamp(14)
    g(f"s_cmp_lt_u32 s{sWAVE}, 4")
    g("s_cbranch_scc1 L_H")
    sSW = 29
    g(f"s_sub_u32 s{sSW}, s{sWAVE}, 4")

    vKoff, vVoff, vKrd, vVrd = 2, 6, 8, 12
    vM, vL = 20, 21
    vPop, vEnt = 22, 23
    vD = 24
    vP01 = 28
    vHeadA, vOne, vQa = 32, 33, 34
    vT = 36
    vF = 48
    vAcc = 80
    vQB = 112
    sT, sNext, sRK, sRV, sTmp, sCnt, sLog2e, sScale, sThr = 20, 21, 22, 23, 24, 25, 26, 27, 28
    sBase, sBaseB, sRK2, sRV2, sRK0, sPop, sSwd, sTmp2 = 58, 59, 60, 61, 62, 63, 30, 31
    g.c("---- S wave setup ----")
    g(f"s_lshl_b32 s{sRK}, s{sSW}, 15")
    g("v_and_b32 v44, 15, v0")
    g("v_lshrrev_b32 v45, 4, v0")
    g("v_lshrrev_b32 v118, 3, v0")
    g("v_and_b32 v113, 7, v0")
    g(f"s_cmp_ge_u32 s{sA_}, 8")
    g("s_cbranch_scc1 L_Snoq")
    g("v_lshlrev_b32 v112, 13, v118")
    g("v_lshl_add_u32 v112, v113, 4, v112")
    g(f"s_lshl_b32 s{sT}, s{sX}, 10")
    g(f"s_lshl_b32 s{sTmp}, s{sA_}, 7")
    g(f"s_add_u32 s{sT}, s{sT}, s{sTmp}")
    g(f"s_lshl_b32 s{sTmp}, s{sSW}, 20")
    g(f"s_add_u32 s{sT}, s{sT}, s{sTmp}")
    g(f"s_mov_b32 m0, s{sRK}")
    g("v_lshlrev_b32 v113, 10, v113")
    g("v_lshl_add_u32 v113, v45, 4, v113")
    g(f"s_lshl_b32 s{sTmp}, s{sSW}, 8")
    g("s_waitcnt lgkmcnt(0)")
    g.srd(sVs, P_X, 8192)
    g.srd(sKs, P_WQ, 512 * 4096 * 2)
    for i in range(4):
        g(f"buffer_load_dwordx4 {vr(96+4*i,4)}, v113, s[{sVs}:{sVs+3}], s{sTmp} offen offset:{i*64}")
    for i in range(16):
        g(f"buffer_load_dwordx4 v112, s[{sKs}:{sKs+3}], s{sT} offen {WPOL} lds")
        if i < 15:
            g(f"s_add_u32 m0, m0, 1024")
            g(f"s_add_u32 s{sT}, s{sT}, 65536")
    def prejob_addrs():
        g("v_lshrrev_b32 v114, 2, v44")
        g("v_lshl_add_u32 v114, v45, 3, v114")
        g("v_lshlrev_b32 v114, 7, v114")
        g("v_and_b32 v115, 3, v0")
        g("v_lshl_add_u32 v114, v115, 3, v114")
        g(f"v_add_u32 v114, s{sRK}, v114")
        g(f"s_lshl_b32 s{sTmp}, s{sSW}, 11")
        g(f"s_add_u32 s{sTmp}, s{sTmp}, {L_AST}")
        g("v_lshlrev_b32 v115, 8, v44")
        g("v_lshl_add_u32 v115, v45, 4, v115")
        g(f"v_add_u32 v115, s{sTmp}, v115")
        g(f"s_lshl_b32 s{sTmp}, s{sSW}, 2")
        g(f"s_add_u32 s{sTmp}, s{sTmp}, {L_FLAG}")
        g(f"v_mov_b32 v116, s{sTmp}")
        g("v_mov_b32 v117, 1")
        g("v_cmp_gt_u32 s[66:67], 8, v44")
        g.c("barrier 0: flags zeroed")
        g("s_barrier")
    def prejob_mm(nkb, xf, acc, after):
        for kb in range(nkb):
            fr = vF + 16 * (kb & 1)
            g(f"s_waitcnt vmcnt({4*(nkb-1-kb) + after})")
            for ct in range(4):
                g(f"ds_read_b64_tr_b16 {vr(fr+4*ct,2)}, v114 offset:{kb*4096 + ct*32}")
                g(f"ds_read_b64_tr_b16 {vr(fr+4*ct+2,2)}, v114 offset:{kb*4096 + ct*32 + 512}")
            g("s_waitcnt lgkmcnt(0)")
            for ct in range(4):
                srcc = "0" if kb == 0 else vr(acc+4*ct, 4)
                g(f"v_mfma_f32_16x16x32_bf16 {vr(acc+4*ct,4)}, {vr(fr+4*ct,4)}, {vr(xf+4*kb,4)}, {srcc}")
    def prejob_pub(acc):
        g("s_mov_b64 exec, s[66:67]")
        for ct in range(4):
            g(f"ds_write_b128 v115, {vr(acc+4*ct,4)} offset:{ct*64}")
        g("s_mov_b64 exec, 1")
        g("s_waitcnt lgkmcnt(0)")
        g("ds_write_b32 v116, v117")
        g("s_mov_b64 exec, -1")
    prejob_addrs()
    prejob_mm(4, 96, 80, 0)
    g.stamp(5)
    g("s_nop 7")
    g("s_nop 3")
    prejob_pub(80)
    g.stamp(6)
    if PWAIT:
        g(f"v_mov_b32 v116, {L_FLAG2}")
        g("s_mov_b32 s70, 0x4000")
        g.label("L_pw")
        g("ds_read_b32 v117, v116")
        g("s_sub_u32 s70, s70, 1")
        g("s_waitcnt lgkmcnt(0)")
        g("v_cmp_ne_u32 vcc, 1, v117")
        g("s_cbranch_vccz L_Sgo")
        g("s_cmp_lg_u32 s70, 0")
        g("s_cbranch_scc1 L_pw")
    g("s_branch L_Sgo")

    g.label("L_Snoq")
    sG = 21
    g(f"s_sub_u32 s{sG}, s2, 128")
    g(f"s_cmp_ge_u32 s{sG}, {0 if NOFFN else 28}")
    g("s_cbranch_scc1 L_Snof")
    g("s_movk_i32 s61, 3584")
    g("v_mul_u32_u24 v112, s61, v118")
    g("v_lshl_add_u32 v112, v113, 4, v112")
    g("v_lshlrev_b32 v119, 10, v118")
    g("v_lshl_add_u32 v119, v113, 4, v119")
    g("v_lshlrev_b32 v113, 10, v113")
    g("v_lshl_add_u32 v113, v45, 4, v113")
    g(f"s_and_b32 s{sTmp2}, s{sSW}, 1")
    g(f"s_mul_i32 s{sT}, s{sTmp2}, {256*3584}")
    g(f"s_lshl_b32 s{sTmp}, s{sG}, 7")
    g(f"s_add_u32 s{sT}, s{sT}, s{sTmp}")
    g(f"s_lshl_b32 s{sTmp}, s{sTmp2}, 9")
    g(f"s_mov_b32 m0, s{sRK}")
    if FDELAY:
        g(f"s_sleep {FDELAY}")
    g("s_waitcnt lgkmcnt(0)")
    g(f"s_load_dword s{sTag}, s[{P_WS}:{P_WS+1}], {WS_EPOCH}")
    g.srd(sVs, P_X, 8192)
    g(f"s_cmp_ge_u32 s{sSW}, 2")
    g(f"s_cselect_b32 s{sKs}, s{P_WU}, s{P_WG}")
    g(f"s_cselect_b32 s{sKs+1}, s{P_WU+1}, s{P_WG+1}")
    g(f"s_and_b32 s{sKs+1}, s{sKs+1}, 0xffff")
    g(f"s_mov_b32 s{sKs+2}, {512*1792*2:#x}")
    g(f"s_mov_b32 s{sKs+3}, 0x20000")
    XF = 4
    for i in range(8):
        g(f"buffer_load_dwordx4 {vr(XF+4*i,4)}, v113, s[{sVs}:{sVs+3}], s{sTmp} offen offset:{i*64}")
    for i in range(32):
        g(f"buffer_load_dwordx4 v112, s[{sKs}:{sKs+3}], s{sT} offen {WPOL} lds")
        if i < 31:
            g(f"s_add_u32 m0, m0, 1024")
            g(f"s_add_u32 s{sT}, s{sT}, {8*3584}")
    prejob_addrs()
    g.srd(sVs, P_WD, 1792 * 512 * 2)
    g.srd(sWSs, P_WS, WS_SIZE)
    for i in range(4):
        g(f"s_mov_b32 s{sSEL+i}, {0x07060500 | i:#x}")
    prejob_mm(8, XF, 80, 0)
    g.stamp(5)
    g(f"s_lshl_b32 s{sT}, s{sG}, 16")
    g(f"s_lshl_b32 s{sTmp}, s{sSW}, 8")
    g(f"s_add_u32 s{sT}, s{sT}, s{sTmp}")
    g(f"s_mov_b32 m0, s{sRK}")
    for i in range(16):
        g(f"s_add_u32 s{sTmp}, s{sT}, {(i & 7)*8192 + (i >> 3)*128}")
        g(f"buffer_load_dwordx4 v119, s[{sVs}:{sVs+3}], s{sTmp} offen {WPOL} lds")
        if i < 15:
            g(f"s_add_u32 m0, m0, 1024")
    prejob_pub(80)
    g("v_and_b32 v116, 3, v0")
    g("v_lshlrev_b32 v116, 2, v116")
    g(f"v_add_u32 v116, {L_FLAG}, v116")
    g("v_and_b32 v115, 7, v0")
    g("v_lshlrev_b32 v115, 8, v115")
    g("v_lshl_add_u32 v115, v45, 5, v115")
    g(f"v_add_u32 v115, {L_AST}, v115")
    g(f"s_add_u32 s{sTag}, s{sTag}, 1")
    g(f"v_mov_b32 v{vTag}, s{sTag}")
    g("s_mov_b32 s70, 0x40000")
    g.label("L_ff")
    g("ds_read_b32 v117, v116")
    g("s_sub_u32 s70, s70, 1")
    g("s_waitcnt lgkmcnt(0)")
    g("v_cmp_ne_u32 vcc, 1, v117")
    g("s_cbranch_vccz L_ffok")
    g("s_sleep 1")
    g("s_cmp_lg_u32 s70, 0")
    g("s_cbranch_scc1 L_ff")
    g.label("L_ffok")
    GA, UA, T = 4, 20, 80
    for w in range(4):
        dst = (GA, 48, UA, 64)[w]
        for q4 in range(4):
            g(f"ds_read_b128 {vr(dst+4*q4,4)}, v115 offset:{w*2048 + (q4>>1)*128 + (q4&1)*16}")
    g("s_waitcnt lgkmcnt(0)")
    for i in range(16):
        g(f"v_add_f32 v{GA+i}, v{GA+i}, v{48+i}")
        g(f"v_add_f32 v{UA+i}, v{UA+i}, v{64+i}")
    for i in range(8):
        g(f"v_cvt_pk_bf16_f32 v{48+i}, v{GA+2*i}, v{GA+2*i+1}")
        g(f"v_cvt_pk_bf16_f32 v{56+i}, v{UA+2*i}, v{UA+2*i+1}")
    for i in range(8):
        g(f"v_lshlrev_b32 v{GA+2*i}, 16, v{48+i}")
        g(f"v_and_b32 v{GA+2*i+1}, 0xffff0000, v{48+i}")
        g(f"v_lshlrev_b32 v{UA+2*i}, 16, v{56+i}")
        g(f"v_and_b32 v{UA+2*i+1}, 0xffff0000, v{56+i}")
    g("s_mov_b32 s61, 0x3d372713")
    g("s_mov_b32 s63, 0x40135761")
    for i in range(16):
        x = GA + i
        g(f"v_mul_f32 v{T+i}, v{x}, v{x}")
        g(f"v_mul_f32 v{T+i}, v{T+i}, v{x}")
        g(f"v_fma_f32 v{T+i}, v{T+i}, s61, v{x}")
        g(f"v_mul_f32 v{T+i}, s63, v{T+i}")
    for i in range(16):
        g(f"v_exp_f32 v{T+i}, v{T+i}")
    g("s_nop 0")
    for i in range(16):
        g(f"v_add_f32 v{T+i}, 1.0, v{T+i}")
    for i in range(16):
        g(f"v_rcp_f32 v{T+i}, v{T+i}")
    g("s_nop 0")
    for i in range(16):
        g(f"v_sub_f32 v{T+i}, 1.0, v{T+i}")
        g(f"v_mul_f32 v{T+i}, v{GA+i}, v{T+i}")
    for i in range(8):
        g(f"v_cvt_pk_bf16_f32 v{48+i}, v{T+2*i}, v{T+2*i+1}")
    for i in range(8):
        g(f"v_lshlrev_b32 v{T+2*i}, 16, v{48+i}")
        g(f"v_and_b32 v{T+2*i+1}, 0xffff0000, v{48+i}")
    for i in range(16):
        g(f"v_mul_f32 v{T+i}, v{T+i}, v{UA+i}")
    for i in range(8):
        g(f"v_cvt_pk_bf16_f32 v{4+i}, v{T+2*i}, v{T+2*i+1}")
    for t in range(4):
        cb2, kb = t >> 1, t & 1
        fr = vF + 16 * (t & 1)
        acc = 80 + 16 * cb2
        g(f"s_waitcnt vmcnt({4*(3-t)})")
        for ct in range(4):
            g(f"ds_read_b64_tr_b16 {vr(fr+4*ct,2)}, v114 offset:{t*4096 + ct*32}")
            g(f"ds_read_b64_tr_b16 {vr(fr+4*ct+2,2)}, v114 offset:{t*4096 + ct*32 + 512}")
        g("s_waitcnt lgkmcnt(0)")
        for ct in range(4):
            srcc = "0" if kb == 0 else vr(acc+4*ct, 4)
            g(f"v_mfma_f32_16x16x32_bf16 {vr(acc+4*ct,4)}, {vr(fr+4*ct,4)}, {vr(4+4*kb,4)}, {srcc}")
    g("v_lshlrev_b32 v112, 17, v44")
    g("v_lshl_add_u32 v112, v45, 4, v112")
    g(f"s_lshl_b32 s{sT}, s{sG}, 6")
    g(f"s_lshl_b32 s{sTmp}, s{sSW}, 13")
    g(f"s_add_u32 s{sT}, s{sT}, s{sTmp}")
    g(f"s_add_u32 s{sT}, s{sT}, {WS_PAB + 2048}")
    g("s_nop 7")
    g("s_nop 3")
    g("s_mov_b64 exec, s[66:67]")
    for cb2 in range(2):
        for ct in range(4):
            d = 80 + 16*cb2 + 4*ct
            for i in range(4):
                tagit(d+i, d+i, i)
            g(f"s_add_u32 s{sTmp}, s{sT}, {cb2*4096 + ct*32768}")
            g(f"buffer_store_dwordx4 {vr(d,4)}, v112, s[{sWSs}:{sWSs+3}], s{sTmp} offen sc1")
    g("s_mov_b64 exec, -1")
    g("s_waitcnt vmcnt(0)")
    g.stamp(6)
    g("s_branch L_Sgo")
    g.label("L_Snof")
    g(f"s_mov_b32 s{sSwd}, 0")
    if SDELAY:
        g(f"s_sleep {SDELAY}")
    g("s_branch L_Sgo2")
    g.label("L_Sgo")
    g(f"s_mov_b32 s{sSwd}, 1")
    g.label("L_Sgo2")
    if dbg >= 2: g.stamp(11)
    for i in range(4):
        g(f"v_add_u32 v46, {4*i}, v45")
        g("v_xor_b32 v46, v44, v46")
        g("v_lshlrev_b32 v46, 4, v46")
        g(f"v_lshl_add_u32 v{vKoff+i}, v45, 8, v46")
    g(f"s_mov_b32 s{sRK0}, s{sRK}")
    g(f"s_add_u32 s{sRV}, s{sRK}, 16384")
    g(f"s_add_u32 s{sRK2}, s{sRK}, 8192")
    g(f"s_add_u32 s{sRV2}, s{sRV}, 8192")
    g(f"s_lshl_b32 s{sBase}, s{sGRP}, 22")
    g(f"s_add_u32 s{sBaseB}, s{sBase}, 0x200000")
    g(f"s_lshl_b32 s{sTmp}, s{sX}, 2")
    g(f"s_add_u32 s{sTmp}, s{sTmp}, s{sSW}")
    g(f"s_lshl_b32 s{sTmp}, s{sTmp}, 13")
    g(f"s_add_u32 s{sT}, s{sBase}, s{sTmp}")
    USTR = 32 * 8192
    g("s_waitcnt lgkmcnt(0)")
    g.srd(sKs, P_K, 0x8000000)
    g.srd(sVs, P_V, 0x8000000)
    sT1, sNext1, sHalf, sNHalf = 32, 33, 34, 35
    vBlk1, vBias, vOA, vOB, vMLa, vDump = 114, 115, 116, 117, 118, 119

    def dma(i, sreg, imm, half_other, agpr=None):
        j = i & 1
        if agpr is None:
            base = (sRK2 if half_other else sRK) if i < 2 else (sRV2 if half_other else sRV)
            g(f"s_add_u32 m0, s{base}, {j*4096}")
        g(f"s_add_u32 s{sTmp}, s{sreg}, {imm}")
        for k in range(4):
            vo = vKoff + k if i < 2 else vVoff + (k & 1)
            srd = sKs if i < 2 else sVs
            pol = KPOL if i < 2 else VPOL
            if agpr is None:
                g(f"buffer_load_dwordx4 v{vo}, s[{srd}:{srd+3}], s{sTmp} offen offset:{k*1024} {pol} lds")
            else:
                g(f"buffer_load_dwordx4 {ar(agpr+4*k,4)}, v{vo}, s[{srd}:{srd+3}], s{sTmp} offen offset:{k*1024} {pol}")
    def headB(n):
        u, i = n >> 2, n & 3
        dma(i, sT, u*USTR + (i & 1)*4096, u == 1, agpr=(64 + 16*i) if u == 2 else None)
    for i in range(2):
        headB(i)
    if dbg >= 2: g.stamp(7)
    g(f"s_load_dword s{sTag}, s[{P_WS}:{P_WS+1}], {WS_EPOCH}")
    g(f"s_cmp_eq_u32 s{sSwd}, 1")
    g("s_cbranch_scc1 L_Snb0")
    g.c("barrier 0")
    g("s_barrier")
    g.label("L_Snb0")
    for i in range(2):
        g(f"v_add_u32 v46, {4*i}, v45")
        g("v_lshlrev_b32 v46, 1, v46")
        g("v_xor_b32 v46, v44, v46")
        g("v_lshlrev_b32 v46, 4, v46")
        g(f"v_lshl_add_u32 v{vVoff+i}, v45, 8, v46")
    for i in range(2, HPD):
        headB(i)
    g.srd(sWSs, P_WS, WS_SIZE)
    for c in range(4):
        g(f"v_add_u32 v46, {4*c}, v45")
        g("v_xor_b32 v46, v44, v46")
        g("v_lshlrev_b32 v46, 4, v46")
        g("v_lshl_add_u32 v46, v44, 8, v46")
        g(f"v_add_u32 v{vKrd+c}, s{sRK}, v46")
    g("v_lshrrev_b32 v46, 2, v0")
    g("v_and_b32 v47, 7, v46")
    g("v_lshlrev_b32 v46, 8, v46")
    g("v_and_b32 v43, 3, v0")
    g("v_lshl_add_u32 v46, v43, 3, v46")
    g(f"v_add_u32 v46, s{sRV}, v46")
    for db in range(8):
        g(f"v_xor_b32 v43, {db}, v47")
        g(f"v_lshl_add_u32 v{vVrd+db}, v43, 5, v46")
    g("v_and_b32 v43, 3, v0")
    g("v_lshlrev_b32 v43, 8, v43")
    g("v_lshl_add_u32 v43, v45, 4, v43")
    g(f"v_add_u32 v43, {L_QBUF}, v43")
    g(f"v_add_u32 v40, 1024, v43")
    g("v_bfe_u32 v42, v0, 2, 1")
    g(f"v_mov_b32 v41, {L_ZERO}")
    g(f"v_mov_b32 v{vM}, {MINIT:#x}")
    for j in range(2):
        g(f"v_cmp_eq_u32 vcc, {j}, v42")
        g("s_nop 1")
        g(f"v_cndmask_b32 v{vT+j}, v41, v43, vcc")
        g(f"v_cndmask_b32 v{vQB+j}, v41, v40, vcc")
        if j == 1:
            g(f"v_cndmask_b32 v{vBlk1}, 0, v{vM}, vcc")
    g(f"v_mov_b32 v{vL}, 0")
    g(f"v_mov_b32 v{vBias}, 0")
    if dbg >= 2: g("v_mov_b32 v120, 0")
    g(f"v_mov_b32 v{vHeadA}, {L_HEAD}")
    g(f"v_mov_b32 v{vOne}, 1")
    for i in range(32):
        g(f"v_mov_b32 v{vAcc+i}, 0")
    g("v_lshlrev_b32 v46, 9, v44")
    g("v_lshl_add_u32 v46, v45, 4, v46")
    g(f"v_add_u32 v{vOB}, s{sRK0}, v46")
    g(f"s_lshl_b32 s{sTmp}, s{sSW}, 11")
    g(f"s_add_u32 s{sTmp}, s{sTmp}, {L_AST}")
    g(f"v_add_u32 v{vOA}, s{sTmp}, v46")
    g(f"s_lshl_b32 s{sTmp}, s{sSW}, 5")
    g(f"s_add_u32 s{sTmp}, s{sTmp}, {L_ML}")
    g(f"v_lshl_add_u32 v{vMLa}, v44, 3, s{sTmp}")
    g("v_cmp_gt_u32 s[36:37], 4, v44")
    g(f"v_lshl_add_u32 v{vDump}, v0, 4, s{sRK0}")
    g(f"s_mov_b32 s{sLog2e}, 0x3fb8aa3b")
    g(f"s_mov_b32 s{sScale}, 0x3db504f3")
    g(f"s_mov_b32 s{sThr}, 0x41000000")
    g(f"s_mov_b32 s{sCnt}, 3")
    g(f"s_mov_b32 s{sSwd}, 0")
    g(f"s_mov_b32 s{sHalf}, 1")
    for i in range(4):
        g(f"s_mov_b32 s{sSEL+i}, {0x07060500 | i:#x}")
    g("s_mov_b32 s64, 0x0c0c0400")
    g("s_mov_b32 s65, 0x04000c0c")
    g(f"v_mov_b32 v47, {L_FLAG3}")
    for i in range(max(HPD, 2), 12):
        g(f"s_waitcnt vmcnt({4*((HPD if i < HSW else HPD2)-1)})")
        headB(i)
        if dbg >= 2:
            g("s_memrealtime s[90:91]")
            g("s_waitcnt lgkmcnt(0)")
            g(f"v_writelane_b32 v120, s90, {40+i}")
    g("s_waitcnt lgkmcnt(0)")
    g(f"s_add_u32 s{sTag}, s{sTag}, 1")
    g(f"v_mov_b32 v{vTag}, s{sTag}")
    g.stamp(1)
    g("s_mov_b32 s70, 0x100000")
    g.label("L_wq")
    g("ds_read_b32 v46, v47")
    g("s_sub_u32 s70, s70, 1")
    g("s_waitcnt lgkmcnt(0)")
    g("v_cmp_ne_u32 vcc, 1, v46")
    g("s_cbranch_vccz L_wqok")
    g("s_sleep 1")
    g("s_cmp_lg_u32 s70, 0")
    g("s_cbranch_scc1 L_wq")
    g.label("L_wqok")
    g.stamp(2)
    for j in range(2):
        for c in range(4):
            g(f"ds_read_b128 {ar(16*j+4*c,4)}, v{vT+j} offset:{c*64}")
    g(f"s_add_u32 s{sNext}, s{sT}, {3*USTR}")
    g("s_waitcnt lgkmcnt(0)")

    def rescale_code():
        g(f"v_mul_f32 v{vT+6}, s{sLog2e}, v{vT+6}")
        g("s_nop 1")
        g(f"v_max_f32_dpp v{vT+7}, v{vT+6}, v{vT+6} row_ror:4 row_mask:0xf bank_mask:0xf")
        g(f"v_mov_b32 v{vT+6}, v{vT+7}")
        g("s_nop 1")
        g(f"v_permlane16_swap_b32 v{vT+6}, v{vT+7}")
        g(f"v_max_f32 v{vT+6}, v{vT+6}, v{vT+7}")
        g(f"v_mov_b32 v{vT+7}, v{vT+6}")
        g("s_nop 1")
        g(f"v_permlane32_swap_b32 v{vT+6}, v{vT+7}")
        g(f"v_max3_f32 v{vT+6}, v{vT+6}, v{vT+7}, v{vM}")
        g(f"v_sub_f32 v{vT+7}, v{vM}, v{vT+6}")
        g(f"v_exp_f32 v{vT+7}, v{vT+7}")
        g(f"v_mov_b32 v{vM}, v{vT+6}")
        g(f"v_mul_f32 v{vL}, v{vL}, v{vT+7}")
        for i in range(32):
            g(f"v_mul_f32 v{vAcc+i}, v{vAcc+i}, v{vT+7}")

    def body(it):
        W = {0: (44, 40, 36, 32), 1: (28, 24, 20, 20), 2: (None,)*4, 3: (8, 8, 8, 8), 4: (None, None, 20, 16)}[it]
        def wait(s_):
            if W[s_] is not None: g(f"s_waitcnt vmcnt({W[s_]})")
        if it == 4:
            g.label('L_burst')
            dma(0, sNext, 0, True)
            dma(1, sNext1, 0, True)
            dma(2, sNext, 0, True)
            dma(3, sNext1, 0, True)
        else:
            wait(0)
            for c in range(4):
                g(f"ds_read_b128 {vr(vF+4*c,4)}, v{vKrd+c}")
            if it == 3:
                g(f"ds_read_b32 v{vEnt}, v{vQa}")
                g(f"s_cmp_eq_u32 s{sHalf}, 1")
                g("s_cbranch_scc1 L_skip0")
                dma(3, sT1, 0, False)
                g.label("L_skip0")
            elif it == 2:
                dma(2, sNext, 0, True)
            g("s_waitcnt lgkmcnt(0)")
            for c in range(4):
                srcc = "0" if c == 0 else vr(vD, 4)
                g(f"v_mfma_f32_16x16x32_bf16 {vr(vD,4)}, {vr(vF+4*c,4)}, {ar(4*c,4)}, {srcc}")
            wait(1)
            for c in range(4):
                g(f"ds_read_b128 {vr(vF+16+4*c,4)}, v{vKrd+c} offset:4096")
            if it == 3:
                g(f"v_readfirstlane_b32 s{sTmp}, v{vEnt}")
                g(f"s_lshr_b32 s{sTmp2}, s{sPop}, 5")
                g(f"s_add_u32 s{sTmp2}, s{sTmp2}, 1")
                g(f"s_lshr_b32 s{sNext}, s{sTmp}, 16")
                g(f"s_cmp_lg_u32 s{sNext}, s{sTmp2}")
                g("s_cbranch_scc1 L_qwait")
                g.label("L_qgo")
                g(f"s_and_b32 s{sTmp}, s{sTmp}, 0xffff")
                g(f"s_min_u32 s{sTmp2}, s{sTmp}, {U0}")
                g(f"s_add_u32 s{sTmp2}, s{sTmp2}, s{sTmp}")
                g(f"s_lshl_b32 s{sNext}, s{sTmp2}, 12")
                g(f"s_add_u32 s{sNext}, s{sNext}, s{sBase}")
                g(f"s_add_u32 s{sNext1}, s{sNext}, 4096")
                g(f"s_cmp_lt_u32 s{sTmp}, {U0}")
                g(f"s_cselect_b32 s{sNext1}, s{sNext1}, 0x80000000")
                g(f"s_cselect_b32 s{sNHalf}, 0, -1")
                g(f"s_cmp_lt_u32 s{sTmp}, {NU}")
                g(f"s_cselect_b32 s{sNext}, s{sNext}, 0x80000000")
                if BURST < 1000:
                    g(f"s_cmp_ge_u32 s{sTmp}, {BURST}")
                    g("s_cbranch_scc1 L_burst")
                dma(0, sNext, 0, True)
            elif it == 2:
                dma(3, sNext, 4096, True)
        g("s_waitcnt lgkmcnt(0)")
        for c in range(4):
            g(f"v_mfma_f32_16x16x32_bf16 {vr(vD,4)}, {vr(vF+16+4*c,4)}, {ar(16+4*c,4)}, {vr(vD,4)}")
        wait(2)
        for db in range(8):
            g(f"ds_read_b64_tr_b16 {vr(vF+4*db,2)}, v{vVrd+db}")
        if it == 3:
            dma(1, sNext1, 0, True)
        elif it == 1:
            dma(0, sNext, 0, False)
        else:
            g("s_nop 7")
        e = vT
        g(f"v_cvt_pk_bf16_f32 v{vT+4}, v{vD}, v{vD+1}")
        g(f"v_cvt_pk_bf16_f32 v{vT+5}, v{vD+2}, v{vD+3}")
        g(f"v_lshlrev_b32 v{e}, 16, v{vT+4}")
        g(f"v_and_b32 v{e+1}, 0xffff0000, v{vT+4}")
        g(f"v_lshlrev_b32 v{e+2}, 16, v{vT+5}")
        g(f"v_and_b32 v{e+3}, 0xffff0000, v{vT+5}")
        for i in range(4):
            if it >= 3 and U0 < 512:
                g(f"v_fma_f32 v{e+i}, s{sScale}, v{e+i}, v{vBias}")
            else:
                g(f"v_mul_f32 v{e+i}, s{sScale}, v{e+i}")
        g(f"v_cvt_pk_bf16_f32 v{vT+4}, v{e}, v{e+1}")
        g(f"v_cvt_pk_bf16_f32 v{vT+5}, v{e+2}, v{e+3}")
        g(f"v_lshlrev_b32 v{e}, 16, v{vT+4}")
        g(f"v_and_b32 v{e+1}, 0xffff0000, v{vT+4}")
        g(f"v_lshlrev_b32 v{e+2}, 16, v{vT+5}")
        g(f"v_and_b32 v{e+3}, 0xffff0000, v{vT+5}")
        g(f"v_max3_f32 v{vT+6}, v{e}, v{e+1}, v{e+2}")
        g(f"v_max_f32 v{vT+6}, v{vT+6}, v{e+3}")
        if it >= 3:
            g(f"v_fma_f32 v{vT+7}, v{vT+6}, s{sLog2e}, -v{vM}")
            g(f"v_cmp_lt_f32 vcc, s{sThr}, v{vT+7}")
            g(f"s_cbranch_vccnz L_rescale{it}")
            g.label(f"L_back{it}")
        else:
            rescale_code()
        for i in range(4):
            g(f"v_fma_f32 v{e+i}, v{e+i}, s{sLog2e}, -v{vM}")
        for i in range(4):
            g(f"v_exp_f32 v{e+i}, v{e+i}")
        g("s_nop 0")
        g(f"v_cvt_pk_bf16_f32 v{vP01}, v{e}, v{e+1}")
        g(f"v_cvt_pk_bf16_f32 v{vP01+1}, v{e+2}, v{e+3}")
        g(f"v_add_f32 v{vT+4}, v{e}, v{e+1}")
        g(f"v_add_f32 v{vT+5}, v{e+2}, v{e+3}")
        g(f"v_mov_b32_dpp v{vP01+2}, v{vP01} row_ror:12 row_mask:0xf bank_mask:0xf")
        g(f"v_mov_b32_dpp v{vP01+3}, v{vP01+1} row_ror:12 row_mask:0xf bank_mask:0xf")
        g(f"v_add_f32 v{vT+4}, v{vT+4}, v{vT+5}")
        g(f"v_add_f32 v{vL}, v{vL}, v{vT+4}")
        wait(3)
        for db in range(8):
            g(f"ds_read_b64_tr_b16 {vr(vF+4*db+2,2)}, v{vVrd+db} offset:4096")
        if it >= 2:
            g("s_mov_b64 exec, 1")
            g(f"ds_add_rtn_u32 v{vPop}, v{vHeadA}, v{vOne}")
            g("s_mov_b64 exec, -1")
        if it == 3:
            dma(2, sNext, 0, True)
        elif it == 1:
            dma(1, sNext, 4096, False)
        for i in range(12):
            g(f"v_xor_b32 v{vKrd+i}, 0x2000, v{vKrd+i}")
        for r_ in (sRK, sRV, sRK2, sRV2):
            g(f"s_xor_b32 s{r_}, s{r_}, 0x2000")
        if dbg >= 2: g("s_memrealtime s[90:91]")
        g("s_waitcnt lgkmcnt(0)")
        if dbg >= 2:
            if it < 3: g(f"v_writelane_b32 v120, s90, {it}")
            else:
                g(f"s_mov_b32 m0, s{sCnt}")
                g(f"v_writelane_b32 v120, s90, m0")
        for db in range(8):
            g(f"v_mfma_f32_16x16x32_bf16 {vr(vAcc+4*db,4)}, {vr(vF+4*db,4)}, {vr(vP01,4)}, {vr(vAcc+4*db,4)}")
        if it == 1:
            g("s_waitcnt vmcnt(8)")
            for i in range(4):
                for k in range(4):
                    off = (0 if i < 2 else 16384) + (i & 1)*4096 + k*1024
                    g(f"ds_write_b128 v{vDump}, {ar(64+16*i+4*k,4)} offset:{off}")
            g("s_waitcnt lgkmcnt(0)")
        if it >= 2:
            g(f"v_readfirstlane_b32 s{sPop}, v{vPop}")
            g(f"s_mov_b32 s{sT}, s{sNext}")
            g(f"s_and_b32 s{sTmp}, s{sPop}, 31")
            g(f"s_lshl2_add_u32 s{sTmp}, s{sTmp}, {L_Q}")
            g(f"v_mov_b32 v{vQa}, s{sTmp}")
        if it >= 3:
            g(f"s_mov_b32 s{sT1}, s{sNext1}")
            if U0 < 512:
                g(f"v_and_b32 v{vBias}, s{sNHalf}, v{vBlk1}")
            g(f"s_mov_b32 s{sHalf}, {it - 3}")

    def decode(lbl):
        g(f"v_readfirstlane_b32 s{sTmp}, v{vEnt}")
        g(f"s_lshr_b32 s{sTmp2}, s{sPop}, 5")
        g(f"s_add_u32 s{sTmp2}, s{sTmp2}, 1")
        g(f"s_lshr_b32 s{sNext}, s{sTmp}, 16")
        g(f"s_cmp_lg_u32 s{sNext}, s{sTmp2}")
        g("s_cbranch_scc1 L_qwait")
        g.label("L_qgo")
        g(f"s_and_b32 s{sTmp}, s{sTmp}, 0xffff")
        g(f"s_lshl_b32 s{sNext}, s{sTmp}, 13")
        g(f"s_add_u32 s{sNext}, s{sNext}, s{sBase}")
        g(f"s_cmp_lt_u32 s{sTmp}, 512")
        g(f"s_cselect_b32 s{sNext}, s{sNext}, 0x80000000")

    def body4(it):
        W = {0: (44, 40, 36, 32), 1: (28, 24, 20, 20), 2: (None,)*4, 3: (12, 12, 12, 12)}[it]
        def wait(s_):
            if W[s_] is not None: g(f"s_waitcnt vmcnt({W[s_]})")
        if it == 3:
            decode("")
        wait(0)
        for c in range(4):
            g(f"ds_read_b128 {vr(vF+4*c,4)}, v{vKrd+c}")
        if it == 3:
            dma(0, sNext, 0, True)
        elif it == 2:
            dma(2, sNext, 0, True)
        g("s_waitcnt lgkmcnt(0)")
        for c in range(4):
            srcc = "0" if c == 0 else vr(vD, 4)
            g(f"v_mfma_f32_16x16x32_bf16 {vr(vD,4)}, {vr(vF+4*c,4)}, {ar(4*c,4)}, {srcc}")
        wait(1)
        for c in range(4):
            g(f"ds_read_b128 {vr(vF+16+4*c,4)}, v{vKrd+c} offset:4096")
        if it >= 2 and POPS == 1:
            g("s_mov_b64 exec, 1")
            g(f"ds_add_rtn_u32 v{vPop}, v{vHeadA}, v{vOne}")
            g("s_mov_b64 exec, -1")
        if it == 3:
            dma(1, sNext, 4096, True)
        elif it == 2:
            dma(3, sNext, 4096, True)
        g("s_waitcnt lgkmcnt(0)")
        for c in range(4):
            g(f"v_mfma_f32_16x16x32_bf16 {vr(vD,4)}, {vr(vF+16+4*c,4)}, {ar(16+4*c,4)}, {vr(vD,4)}")
        def popaddr():
            g(f"v_readfirstlane_b32 s{sPop}, v{vPop}")
            g(f"s_and_b32 s{sTmp}, s{sPop}, 31")
            g(f"s_lshl2_add_u32 s{sTmp}, s{sTmp}, {L_Q}")
            g(f"v_mov_b32 v{vQa}, s{sTmp}")
        if it >= 2 and POPS == 1:
            popaddr()
        wait(2)
        if it >= 2 and POPS == 2:
            g("s_mov_b64 exec, 1")
            g(f"ds_add_rtn_u32 v{vPop}, v{vHeadA}, v{vOne}")
            g("s_mov_b64 exec, -1")
        for db in range(8):
            g(f"ds_read_b64_tr_b16 {vr(vF+4*db,2)}, v{vVrd+db}")
        if it == 3:
            dma(2, sNext, 0, True)
        elif it == 1:
            dma(0, sNext, 0, False)
        else:
            g("s_nop 7")
        e = vT
        g(f"v_cvt_pk_bf16_f32 v{vT+4}, v{vD}, v{vD+1}")
        g(f"v_cvt_pk_bf16_f32 v{vT+5}, v{vD+2}, v{vD+3}")
        g(f"v_lshlrev_b32 v{e}, 16, v{vT+4}")
        g(f"v_and_b32 v{e+1}, 0xffff0000, v{vT+4}")
        g(f"v_lshlrev_b32 v{e+2}, 16, v{vT+5}")
        g(f"v_and_b32 v{e+3}, 0xffff0000, v{vT+5}")
        for i in range(4):
            g(f"v_mul_f32 v{e+i}, s{sScale}, v{e+i}")
        g(f"v_cvt_pk_bf16_f32 v{vT+4}, v{e}, v{e+1}")
        g(f"v_cvt_pk_bf16_f32 v{vT+5}, v{e+2}, v{e+3}")
        g(f"v_lshlrev_b32 v{e}, 16, v{vT+4}")
        g(f"v_and_b32 v{e+1}, 0xffff0000, v{vT+4}")
        g(f"v_lshlrev_b32 v{e+2}, 16, v{vT+5}")
        g(f"v_and_b32 v{e+3}, 0xffff0000, v{vT+5}")
        g(f"v_max3_f32 v{vT+6}, v{e}, v{e+1}, v{e+2}")
        g(f"v_max_f32 v{vT+6}, v{vT+6}, v{e+3}")
        if it == 3:
            g(f"v_fma_f32 v{vT+7}, v{vT+6}, s{sLog2e}, -v{vM}")
            g(f"v_cmp_lt_f32 vcc, s{sThr}, v{vT+7}")
            g("s_cbranch_vccnz L_rescale")
            g.label("L_back")
        else:
            rescale_code()
        for i in range(4):
            g(f"v_fma_f32 v{e+i}, v{e+i}, s{sLog2e}, -v{vM}")
        for i in range(4):
            g(f"v_exp_f32 v{e+i}, v{e+i}")
        if it >= 2 and POPS == 2:
            g("s_waitcnt lgkmcnt(8)")
            popaddr()
        else:
            g("s_nop 0")
        g(f"v_cvt_pk_bf16_f32 v{vP01}, v{e}, v{e+1}")
        g(f"v_cvt_pk_bf16_f32 v{vP01+1}, v{e+2}, v{e+3}")
        g(f"v_add_f32 v{vT+4}, v{e}, v{e+1}")
        g(f"v_add_f32 v{vT+5}, v{e+2}, v{e+3}")
        g(f"v_mov_b32_dpp v{vP01+2}, v{vP01} row_ror:12 row_mask:0xf bank_mask:0xf")
        g(f"v_mov_b32_dpp v{vP01+3}, v{vP01+1} row_ror:12 row_mask:0xf bank_mask:0xf")
        g(f"v_add_f32 v{vT+4}, v{vT+4}, v{vT+5}")
        g(f"v_add_f32 v{vL}, v{vL}, v{vT+4}")
        wait(3)
        for db in range(8):
            g(f"ds_read_b64_tr_b16 {vr(vF+4*db+2,2)}, v{vVrd+db} offset:4096")
        if it >= 2:
            g(f"ds_read_b32 v{vEnt}, v{vQa}")
        if it == 3:
            dma(3, sNext, 4096, True)
        elif it == 1:
            dma(1, sNext, 4096, False)
        for i in range(12):
            g(f"v_xor_b32 v{vKrd+i}, 0x2000, v{vKrd+i}")
        for r_ in (sRK, sRV, sRK2, sRV2):
            g(f"s_xor_b32 s{r_}, s{r_}, 0x2000")
        if dbg >= 2: g("s_memrealtime s[90:91]")
        g("s_waitcnt lgkmcnt(0)")
        if dbg >= 2:
            if it < 3: g(f"v_writelane_b32 v120, s90, {it}")
            else:
                g(f"s_mov_b32 m0, s{sCnt}")
                g(f"v_writelane_b32 v120, s90, m0")
        for db in range(8):
            g(f"v_mfma_f32_16x16x32_bf16 {vr(vAcc+4*db,4)}, {vr(vF+4*db,4)}, {vr(vP01,4)}, {vr(vAcc+4*db,4)}")
        if it == 1:
            g("s_waitcnt vmcnt(8)")
            for i in range(4):
                for k in range(4):
                    off = (0 if i < 2 else 16384) + (i & 1)*4096 + k*1024
                    g(f"ds_write_b128 v{vDump}, {ar(64+16*i+4*k,4)} offset:{off}")
            g("s_waitcnt lgkmcnt(0)")
        if it >= 2:
            g(f"s_mov_b32 s{sT}, s{sNext}")
    def body2(it):
        W = {0: (44, 40, 36, 32), 1: (28, 24, 20, 20), 2: (None,)*4, 3: ((4, 8, 4, 8) if PD4 == 3 else (W2, W2, W2, W2))}[it]
        def wait(s_):
            if W[s_] is not None: g(f"s_waitcnt vmcnt({W[s_]})")
        wait(0)
        for c in range(4):
            g(f"ds_read_b128 {vr(vF+4*c,4)}, v{vKrd+c}")
        if it == 3:
            g("s_mov_b64 exec, 1")
            g(f"ds_add_rtn_u32 v{vPop}, v{vHeadA}, v{vOne}")
            g("s_mov_b64 exec, -1")
            g(f"s_cmp_eq_u32 s{sHalf}, 1")
            g("s_cbranch_scc1 L_skip0")
            dma(2, sT, 0, False)
            if PD4 == 3:
                dma(3, sT, 4096, False)
            g.label("L_skip0")
        elif it == 2:
            dma(2, sNext, 0, True)
        g("s_waitcnt lgkmcnt(0)")
        if it == 3:
            g(f"v_readfirstlane_b32 s{sPop}, v{vPop}")
            g(f"s_and_b32 s{sTmp}, s{sPop}, 31")
            g(f"s_lshl2_add_u32 s{sTmp}, s{sTmp}, {L_Q}")
            g(f"v_mov_b32 v{vQa}, s{sTmp}")
        for c in range(4):
            srcc = "0" if c == 0 else vr(vD, 4)
            g(f"v_mfma_f32_16x16x32_bf16 {vr(vD,4)}, {vr(vF+4*c,4)}, {ar(4*c,4)}, {srcc}")
        wait(1)
        for c in range(4):
            g(f"ds_read_b128 {vr(vF+16+4*c,4)}, v{vKrd+c} offset:4096")
        if it == 3:
            g(f"ds_read_b32 v{vEnt}, v{vQa}")
            if PD4 != 3:
                g(f"s_cmp_eq_u32 s{sHalf}, 1")
                g("s_cbranch_scc1 L_skip1")
                dma(3, sT, 4096, False)
                g.label("L_skip1")
        elif it == 2:
            dma(3, sNext, 4096, True)
        g("s_waitcnt lgkmcnt(0)")
        for c in range(4):
            g(f"v_mfma_f32_16x16x32_bf16 {vr(vD,4)}, {vr(vF+16+4*c,4)}, {ar(16+4*c,4)}, {vr(vD,4)}")
        def popaddr():
            g(f"v_readfirstlane_b32 s{sPop}, v{vPop}")
            g(f"s_and_b32 s{sTmp}, s{sPop}, 31")
            g(f"s_lshl2_add_u32 s{sTmp}, s{sTmp}, {L_Q}")
            g(f"v_mov_b32 v{vQa}, s{sTmp}")
        wait(2)
        for db in range(8):
            g(f"ds_read_b64_tr_b16 {vr(vF+4*db,2)}, v{vVrd+db}")
        if it == 3:
            decode("")
            if BURST < 1000:
                g(f"s_cmp_ge_u32 s{sTmp}, {BURST}")
                g(f"s_cselect_b32 s{sHalf}, 1, 0")
            dma(0, sNext, 0, True)
            if PD4 == 3:
                dma(1, sNext, 4096, True)
            if BURST < 1000:
                g(f"s_cmp_eq_u32 s{sHalf}, 0")
                g("s_cbranch_scc1 L_nb2")
                dma(1, sNext, 4096, True)
                dma(2, sNext, 0, True)
                dma(3, sNext, 4096, True)
                g.label("L_nb2")
        elif it == 1:
            dma(0, sNext, 0, False)
        else:
            g("s_nop 7")
        e = vT
        g(f"v_cvt_pk_bf16_f32 v{vT+4}, v{vD}, v{vD+1}")
        g(f"v_cvt_pk_bf16_f32 v{vT+5}, v{vD+2}, v{vD+3}")
        g(f"v_lshlrev_b32 v{e}, 16, v{vT+4}")
        g(f"v_and_b32 v{e+1}, 0xffff0000, v{vT+4}")
        g(f"v_lshlrev_b32 v{e+2}, 16, v{vT+5}")
        g(f"v_and_b32 v{e+3}, 0xffff0000, v{vT+5}")
        for i in range(4):
            g(f"v_mul_f32 v{e+i}, s{sScale}, v{e+i}")
        g(f"v_cvt_pk_bf16_f32 v{vT+4}, v{e}, v{e+1}")
        g(f"v_cvt_pk_bf16_f32 v{vT+5}, v{e+2}, v{e+3}")
        g(f"v_lshlrev_b32 v{e}, 16, v{vT+4}")
        g(f"v_and_b32 v{e+1}, 0xffff0000, v{vT+4}")
        g(f"v_lshlrev_b32 v{e+2}, 16, v{vT+5}")
        g(f"v_and_b32 v{e+3}, 0xffff0000, v{vT+5}")
        g(f"v_max3_f32 v{vT+6}, v{e}, v{e+1}, v{e+2}")
        g(f"v_max_f32 v{vT+6}, v{vT+6}, v{e+3}")
        if it == 3:
            g(f"v_fma_f32 v{vT+7}, v{vT+6}, s{sLog2e}, -v{vM}")
            g(f"v_cmp_lt_f32 vcc, s{sThr}, v{vT+7}")
            g("s_cbranch_vccnz L_rescale")
            g.label("L_back")
        else:
            rescale_code()
        for i in range(4):
            g(f"v_fma_f32 v{e+i}, v{e+i}, s{sLog2e}, -v{vM}")
        for i in range(4):
            g(f"v_exp_f32 v{e+i}, v{e+i}")
        g("s_nop 0")
        g(f"v_cvt_pk_bf16_f32 v{vP01}, v{e}, v{e+1}")
        g(f"v_cvt_pk_bf16_f32 v{vP01+1}, v{e+2}, v{e+3}")
        g(f"v_add_f32 v{vT+4}, v{e}, v{e+1}")
        g(f"v_add_f32 v{vT+5}, v{e+2}, v{e+3}")
        g(f"v_mov_b32_dpp v{vP01+2}, v{vP01} row_ror:12 row_mask:0xf bank_mask:0xf")
        g(f"v_mov_b32_dpp v{vP01+3}, v{vP01+1} row_ror:12 row_mask:0xf bank_mask:0xf")
        g(f"v_add_f32 v{vT+4}, v{vT+4}, v{vT+5}")
        g(f"v_add_f32 v{vL}, v{vL}, v{vT+4}")
        if it == 3 and BURST < 1000:
            g(f"s_cmp_eq_u32 s{sHalf}, 1")
            g("s_cbranch_scc1 L_b3")
        wait(3)
        if it == 3 and BURST < 1000:
            g.label("L_b3")
            g("s_waitcnt vmcnt(16)")
        for db in range(8):
            g(f"ds_read_b64_tr_b16 {vr(vF+4*db+2,2)}, v{vVrd+db} offset:4096")
        if it == 3 and PD4 == 3:
            pass
        elif it == 3:
            if BURST < 1000:
                g("s_cbranch_scc1 L_nb3")
            dma(1, sNext, 4096, True)
            g.label("L_nb3")
        elif it == 1:
            dma(1, sNext, 4096, False)
        for i in range(12):
            g(f"v_xor_b32 v{vKrd+i}, 0x2000, v{vKrd+i}")
        for r_ in (sRK, sRV, sRK2, sRV2):
            g(f"s_xor_b32 s{r_}, s{r_}, 0x2000")
        if dbg >= 2: g("s_memrealtime s[90:91]")
        g("s_waitcnt lgkmcnt(0)")
        if dbg >= 2:
            if it < 3: g(f"v_writelane_b32 v120, s90, {it}")
            else:
                g(f"s_mov_b32 m0, s{sCnt}")
                g(f"v_writelane_b32 v120, s90, m0")
        for db in range(8):
            g(f"v_mfma_f32_16x16x32_bf16 {vr(vAcc+4*db,4)}, {vr(vF+4*db,4)}, {vr(vP01,4)}, {vr(vAcc+4*db,4)}")
        if it == 1:
            g("s_waitcnt vmcnt(8)")
            for i in range(4):
                for k in range(4):
                    off = (0 if i < 2 else 16384) + (i & 1)*4096 + k*1024
                    g(f"ds_write_b128 v{vDump}, {ar(64+16*i+4*k,4)} offset:{off}")
            g("s_waitcnt lgkmcnt(0)")
        if it >= 2:
            g(f"s_mov_b32 s{sT}, s{sNext}")
        if it == 3 and BURST >= 1000:
            g(f"s_mov_b32 s{sHalf}, 0")
    if PD4:
        assert U0 == 512
        body = body4 if PD4 == 1 else body2

    body(0)
    body(1)
    body(2)
    g.label("L_unit")
    body(3)
    g.label("L_uend")
    g(f"s_add_u32 s{sCnt}, s{sCnt}, 1")
    g(f"s_cmp_lt_u32 s{sT}, s{sBaseB}")
    g("s_cbranch_scc1 L_unit")
    g(f"s_cmp_eq_u32 s{sSwd}, 0")
    g("s_cbranch_scc1 L_switch")
    g.label("L_after_switch")
    g(f"s_cmp_lt_u32 s{sT}, 0x80000000")
    g("s_cbranch_scc1 L_unit")
    g("s_branch L_Sdone")

    g.label("L_qwait")
    g("s_mov_b32 s70, 0x40000")
    g.label("L_qw1")
    if dbg: g("s_add_u32 s84, s84, 1")
    g("s_sleep 1")
    g(f"ds_read_b32 v{vEnt}, v{vQa}")
    g("s_waitcnt lgkmcnt(0)")
    g(f"v_readfirstlane_b32 s{sTmp}, v{vEnt}")
    g("s_sub_u32 s70, s70, 1")
    g(f"s_lshr_b32 s{sNext}, s{sTmp}, 16")
    g(f"s_cmp_eq_u32 s{sNext}, s{sTmp2}")
    g("s_cbranch_scc1 L_qgo")
    g("s_cmp_lg_u32 s70, 0")
    g("s_cbranch_scc1 L_qw1")
    g(f"s_mov_b32 s{sTmp}, {NU}")
    g("s_branch L_qgo")

    if PD4:
        g.label("L_rescale")
        rescale_code()
        g("s_branch L_back")
    else:
        g.label("L_rescale3")
        rescale_code()
        g("s_branch L_back3")
        if BURST < 1000:
            body(4)
            g("s_branch L_uend")
            g.label("L_rescale4")
            rescale_code()
            g("s_branch L_back4")

    def reduce_l():
        g(f"v_add_f32_dpp v{vT}, v{vL}, v{vL} row_ror:4 row_mask:0xf bank_mask:0xf")
        g(f"v_mov_b32 v{vL}, v{vT}")
        g("s_nop 1")
        g(f"v_permlane16_swap_b32 v{vL}, v{vT}")
        g(f"v_add_f32 v{vL}, v{vL}, v{vT}")
        g(f"v_mov_b32 v{vT}, v{vL}")
        g("s_nop 1")
        g(f"v_permlane32_swap_b32 v{vL}, v{vT}")
        g(f"v_add_f32 v{vL}, v{vL}, v{vT}")

    g.label("L_switch")
    for j in range(2):
        for c in range(4):
            g(f"ds_read_b128 {ar(16*j+4*c,4)}, v{vQB+j} offset:{c*64}")
    reduce_l()
    g("s_nop 7")
    g("s_mov_b64 exec, s[36:37]")
    g(f"ds_write_b64 v{vMLa}, {vr(vM,2)}")
    for db in range(8):
        g(f"ds_write_b128 v{vOA}, {vr(vAcc+4*db,4)} offset:{db*64}")
    g("s_mov_b64 exec, -1")
    g(f"s_mov_b32 s{sSwd}, 1")
    if dbg == 1:
        g(f"s_mov_b32 s86, s{sCnt}")
    g("s_waitcnt lgkmcnt(0)")
    if EARLYA:
        g("s_mov_b64 exec, 1")
        g(f"ds_add_u32 v{vHeadA}, v{vOne} offset:{L_SWC - L_HEAD}")
        g("s_mov_b64 exec, -1")
    for i in range(32):
        g(f"v_mov_b32 v{vAcc+i}, 0")
    g(f"v_mov_b32 v{vM}, {MINIT:#x}")
    g(f"v_mov_b32 v{vL}, 0")
    g("s_branch L_after_switch")

    g.label("L_Sdone")
    g.stamp(3)
    if dbg:
        g(f"s_mov_b32 s85, s{sCnt}")
    if dbg >= 2:
        g("s_lshl_b32 s90, s2, 2")
        g(f"s_add_u32 s90, s90, s{sSW}")
        g("s_lshl_b32 s90, s90, 8")
        g("s_add_u32 s90, s90, 0x1a0000")
        g("v_lshlrev_b32 v121, 2, v0")
        g(f"buffer_store_dword v120, v121, s[{sWSs}:{sWSs+3}], s90 offen")
    reduce_l()
    g("s_waitcnt vmcnt(0)")
    g("s_mov_b64 exec, s[36:37]")
    g(f"ds_write_b64 v{vMLa}, {vr(vM,2)} offset:128")
    for db in range(8):
        g(f"ds_write_b128 v{vOB}, {vr(vAcc+4*db,4)} offset:{db*64}")
    g("s_mov_b64 exec, -1")
    g(f"s_lshr_b32 s{sTmp2}, s{sSW}, 1")
    g(f"s_and_b32 s{sTmp}, s{sSW}, 1")
    g(f"s_lshl_b32 s38, s{sTmp}, 10")
    g(f"s_cmp_eq_u32 s{sTmp2}, 0")
    g(f"s_cselect_b32 s39, {L_AST}, 0")
    g(f"s_movk_i32 s40, 0x800")
    g(f"s_cselect_b32 s40, s40, 0x8000")
    g(f"s_add_u32 s39, s39, s38")
    g(f"v_lshl_add_u32 v4, v0, 4, s39")
    g(f"v_add_u32 v9, s40, v4")
    g(f"v_add_u32 v10, s40, v9")
    g(f"v_add_u32 v11, s40, v10")
    g(f"s_lshl_b32 s{sTmp}, s{sTmp}, 1")
    g(f"v_lshrrev_b32 v2, 5, v0")
    g(f"v_add_u32 v2, s{sTmp}, v2")
    g(f"s_lshl_b32 s{sTmp}, s{sTmp2}, 7")
    g(f"s_add_u32 s{sTmp}, s{sTmp}, {L_ML}")
    g(f"v_lshl_add_u32 v5, v2, 3, s{sTmp}")
    g(f"s_lshl_b32 s{sT}, s{sGRP}, 1")
    g(f"s_add_u32 s{sT}, s{sT}, s{sTmp2}")
    g(f"s_lshl_b32 s{sNext}, s{sT}, 14")
    g(f"s_lshl_b32 s{sTmp}, s{sX}, 11")
    g(f"s_add_u32 s{sNext}, s{sNext}, s{sTmp}")
    g(f"s_add_u32 s{sNext}, s{sNext}, s38")
    g(f"s_add_u32 s{sNext}, s{sNext}, {WS_RO}")
    g("v_lshlrev_b32 v8, 4, v0")
    g(f"s_lshl_b32 s{sT}, s{sT}, {12 if MLC else 9}")
    g(f"s_lshl_b32 s{sTmp}, s{sX}, 4")
    g(f"s_add_u32 s{sT}, s{sT}, s{sTmp}")
    g(f"s_add_u32 s{sT}, s{sT}, {WS_ML8 if MLC else WS_ML}")
    g("v_and_b32 v3, 31, v0")
    if MLC:
        g("v_lshl_add_u32 v7, v2, 3, v3")
        g("v_lshlrev_b32 v7, 7, v7")
        g("v_cmp_gt_u32 s[66:67], 8, v3")
    else:
        g("v_lshlrev_b32 v7, 7, v2")
        g("v_cmp_eq_u32 s[66:67], 0, v3")
    g("s_waitcnt lgkmcnt(0)")
    g.c("barrier 2")
    g("s_barrier")
    g.stamp(4)
    if EARLYA:
        g(f"s_cmp_lt_u32 s{sSW}, 2")
        g("s_cbranch_scc1 L_Spost")
    for w in range(4):
        g(f"ds_read_b64 v[{64+2*w}:{65+2*w}], v5 offset:{w*32}")
    g(f"ds_read_b128 v[48:51], v4")
    g(f"ds_read_b128 v[52:55], v9")
    g(f"ds_read_b128 v[56:59], v10")
    g(f"ds_read_b128 v[60:63], v11")
    g("s_waitcnt lgkmcnt(4)")
    g("v_max3_f32 v72, v64, v66, v68")
    g("v_max_f32 v72, v72, v70")
    g("v_and_b32 v72, 0xffffff00, v72")
    for w in range(4):
        g(f"v_sub_f32 v{74+w}, v{64+2*w}, v72")
    for w in range(4):
        g(f"v_exp_f32 v{74+w}, v{74+w}")
    g("s_waitcnt lgkmcnt(0)")
    for i in range(4):
        g(f"v_mul_f32 v{80+i}, v74, v{48+i}")
    for w in range(1, 4):
        for i in range(4):
            g(f"v_fmac_f32 v{80+i}, v{74+w}, v{48+4*w+i}")
    for i in range(4):
        tagit(80+i, 80+i, i)
    g(f"buffer_store_dwordx4 v[80:83], v8, s[{sWSs}:{sWSs+3}], s{sNext} offen sc1")
    g("v_mul_f32 v73, v74, v65")
    for w in range(1, 4):
        g(f"v_fmac_f32 v73, v{74+w}, v{65+2*w}")
    tagit(84, 72, 0)
    tagit(85, 73, 1)
    tagit(86, 72, 2)
    tagit(87, 72, 3)
    g("s_mov_b64 exec, s[66:67]")
    g(f"buffer_store_dwordx4 v[84:87], v7, s[{sWSs}:{sWSs+3}], s{sT} offen sc1")
    g("s_mov_b64 exec, -1")
    if EARLYA:
        g.label("L_Spost")
        g(f"s_bitcmp1_b32 s{sB}, 0")
        g("s_cbranch_scc1 L_gather")
        g.stamp(8)
        g("s_branch L_fin")
    else:
        g("s_branch L_gather")

    g.label("L_H")
    sHW = sWAVE
    sA, sBs = 24, 28
    sU, sU2, sU3 = 58, 59, 60
    g("v_mov_b32 v24, 0")
    g("v_mov_b32 v25, 0")
    g("v_lshlrev_b32 v26, 3, v0")
    g(f"v_add_u32 v26, {L_ZERO}, v26")
    g("ds_write_b64 v26, v[24:25]")
    g("v_and_b32 v2, 15, v0")
    g("v_lshrrev_b32 v3, 4, v0")
    for i in range(4):
        g(f"s_mov_b32 s{sSEL+i}, {0x07060500 | i:#x}")
    g("s_mov_b32 s64, 0x0c0c0400")
    g("s_mov_b32 s65, 0x04000c0c")
    g("s_waitcnt lgkmcnt(0)")
    g.c("barrier 0")
    g("s_barrier")
    g(f"s_load_dword s{sTag}, s[{P_WS}:{P_WS+1}], {WS_EPOCH}")
    g.srd(sWSs, P_WS, WS_SIZE)
    g("v_lshrrev_b32 v4, 3, v0")
    g("v_and_b32 v5, 7, v0")
    g("v_lshlrev_b32 v5, 4, v5")
    g("v_lshrrev_b32 v6, 2, v2")
    g("v_lshl_add_u32 v6, v3, 3, v6")
    g("v_lshlrev_b32 v6, 7, v6")
    g("v_and_b32 v7, 3, v0")
    g("v_lshl_add_u32 v6, v7, 3, v6")
    g(f"s_cmp_lg_u32 s{sHW}, 0")
    g("s_cbranch_scc1 L_H123")
    g(f"s_cmp_ge_u32 s{sA_}, 8")
    g("s_cbranch_scc1 L_H0np")
    g(f"s_bitcmp1_b32 s{sX}, 0")
    g("s_cbranch_scc1 L_nocnt")
    g(f"s_lshl_b32 s{sU2}, s{sA_}, 3")
    g(f"s_add_u32 s{sU2}, s{sU2}, s{sX}")
    g(f"s_lshl_b32 s{sU2}, s{sU2}, 11")
    g(f"s_add_u32 s{sU2}, s{sU2}, {WS_CNT}")
    g("v_mov_b32 v8, 128")
    g("s_mov_b64 exec, 1")
    g(f"buffer_store_dword v8, v24, s[{sWSs}:{sWSs+3}], s{sU2} offen sc1")
    g("s_mov_b64 exec, -1")
    g.label("L_nocnt")
    g("v_lshlrev_b32 v8, 2, v7")
    g(f"v_add_u32 v8, {L_FLAG}, v8")
    g("v_lshlrev_b32 v9, 4, v0")
    g(f"v_add_u32 v9, {L_AST}, v9")
    g("v_lshlrev_b32 v10, 14, v3")
    g("v_lshl_add_u32 v10, v2, 4, v10")
    g(f"s_lshl_b32 s{sU}, s{sX}, 11")
    g(f"s_lshl_b32 s{sU2}, s{sA_}, 8")
    g(f"s_add_u32 s{sU}, s{sU}, s{sU2}")
    g(f"s_add_u32 s{sU}, s{sU}, {WS_QG}")
    g(f"s_add_u32 s{sU2}, s{sU}, 65536")
    g("s_mov_b32 s20, 0x05040c00")
    g("s_mov_b32 s21, 0x07060c01")
    g("s_mov_b32 s22, 0x05040c02")
    g("s_mov_b32 s23, 0x07060c03")
    g("s_waitcnt lgkmcnt(0)")
    g(f"s_add_u32 s{sTag}, s{sTag}, 1")
    g(f"v_mov_b32 v{vTag}, s{sTag}")
    g("s_mov_b32 s70, 0x40000")
    g.label("L_pf")
    g("ds_read_b32 v11, v8")
    g("s_sub_u32 s70, s70, 1")
    g("s_waitcnt lgkmcnt(0)")
    g(f"v_cmp_ne_u32 vcc, 1, v11")
    g("s_cbranch_vccz L_pfok")
    g("s_cmp_lg_u32 s70, 0")
    g("s_cbranch_scc1 L_pf")
    g.label("L_pfok")
    g.stamp(1)
    for hb in range(2):
        for w in range(4):
            g(f"ds_read_b128 {vr(32+16*hb+4*w,4)}, v9 offset:{w*2048 + hb*1024}")
    g("s_waitcnt lgkmcnt(0)")
    for hb in range(2):
        b0 = 32 + 16*hb
        for i in range(4):
            g(f"v_add_f32 v{b0+i}, v{b0+i}, v{b0+4+i}")
            g(f"v_add_f32 v{b0+8+i}, v{b0+8+i}, v{b0+12+i}")
        for i in range(4):
            g(f"v_add_f32 v{b0+i}, v{b0+i}, v{b0+8+i}")
        g(f"v_cvt_pk_bf16_f32 v{b0+4}, v{b0}, v{b0+1}")
        g(f"v_cvt_pk_bf16_f32 v{b0+5}, v{b0+2}, v{b0+3}")
        g(f"v_perm_b32 v{b0+8}, v{b0+4}, v{vTag}, s20")
        g(f"v_perm_b32 v{b0+9}, v{b0+4}, v{vTag}, s21")
        g(f"v_perm_b32 v{b0+10}, v{b0+5}, v{vTag}, s22")
        g(f"v_perm_b32 v{b0+11}, v{b0+5}, v{vTag}, s23")
    g("s_waitcnt vmcnt(0)")
    g(f"buffer_store_dwordx4 v[40:43], v10, s[{sWSs}:{sWSs+3}], s{sU} offen sc1")
    g(f"buffer_store_dwordx4 v[56:59], v10, s[{sWSs}:{sWSs+3}], s{sU2} offen sc1")
    g(f"v_mov_b32 v8, {L_FLAG2}")
    g("v_mov_b32 v9, 1")
    g("ds_write_b32 v8, v9")
    g.stamp(2)
    g("s_branch L_H0q")
    g.label("L_H0np")
    if QSLEEP0:
        g(f"s_sleep {QSLEEP0}")
    g("s_waitcnt lgkmcnt(0)")
    g(f"s_add_u32 s{sTag}, s{sTag}, 1")
    g(f"v_mov_b32 v{vTag}, s{sTag}")
    g.label("L_H0q")
    g(f"s_lshl_b32 s{sU2}, s{sGRP}, 12")
    g(f"s_add_u32 s{sU2}, s{sU2}, {WS_QG}")
    g("v_lshlrev_b32 v26, 4, v0")
    g("v_lshlrev_b32 v25, 3, v0")
    g(f"v_add_u32 v25, {L_QBUF}, v25")
    g("s_mov_b32 s20, 0x07060302")
    g("s_mov_b32 s70, 0x40000")
    if QPIPE <= 1:
        g("s_mov_b32 s71, 15")
        g.label("L_pollq")
        for u in range(4):
            g(f"s_bitcmp1_b32 s71, {u}")
            g(f"s_cbranch_scc0 L_qa{u}")
            g(f"buffer_load_dwordx4 {vr(32+4*u,4)}, v26, s[{sWSs}:{sWSs+3}], s{sU2} offen offset:{u*1024} sc1")
            g.label(f"L_qa{u}")
        g("s_waitcnt vmcnt(0)")
        for u in range(4):
            tagchk(27, 32+4*u, True, 28, 29)
            g("v_cmp_ne_u32 vcc, 0, v27")
            g(f"s_cbranch_vccnz L_qb{u}")
            g(f"s_bitset0_b32 s71, {u}")
            g.label(f"L_qb{u}")
        g("s_cmp_eq_u32 s71, 0")
        g("s_cbranch_scc1 L_qok")
        g("s_sub_u32 s70, s70, 1")
        g("s_cmp_lg_u32 s70, 0")
        g("s_cbranch_scc1 L_pollq")
    else:
        def qiss(k):
            for u in range(4):
                g(f"buffer_load_dwordx4 {vr(32+16*k+4*u,4)}, v26, s[{sWSs}:{sWSs+3}], s{sU2} offen offset:{u*1024} sc1")
        g("s_waitcnt vmcnt(0)")
        for k in range(QPIPE - 1):
            qiss(k)
            g(f"s_sleep {QGAP}")
        g.label("L_pollq")
        for k in range(QPIPE):
            qiss((k + QPIPE - 1) % QPIPE)
            g(f"s_waitcnt vmcnt({4*(QPIPE-1)})")
            for u in range(4):
                tagchk(27, 32+16*k+4*u, u == 0, 28, 29)
            g("v_cmp_ne_u32 vcc, 0, v27")
            g(f"s_cbranch_vccz L_qok{k}")
            g(f"s_sleep {QGAP}")
        g("s_sub_u32 s70, s70, 1")
        g("s_cmp_lg_u32 s70, 0")
        g("s_cbranch_scc1 L_pollq")
        for k in range(QPIPE - 1, -1, -1):
            g.label(f"L_qok{k}")
            for u in range(4):
                g(f"v_perm_b32 v{112+2*u}, v{33+16*k+4*u}, v{32+16*k+4*u}, s20")
                g(f"v_perm_b32 v{113+2*u}, v{35+16*k+4*u}, v{34+16*k+4*u}, s20")
            if k: g("s_branch L_qok")
    g.label("L_qok")
    g.stamp(3)
    for u in range(4):
        if QPIPE <= 1:
            g(f"v_perm_b32 v{112+2*u}, v{33+4*u}, v{32+4*u}, s20")
            g(f"v_perm_b32 v{113+2*u}, v{35+4*u}, v{34+4*u}, s20")
        g(f"ds_write_b64 v25, {vr(112+2*u,2)} offset:{u*512}")
    g(f"v_mov_b32 v8, {L_FLAG3}")
    g("v_mov_b32 v9, 1")
    g("s_waitcnt lgkmcnt(0)")
    g("ds_write_b32 v8, v9")
    g("s_waitcnt vmcnt(0)")
    g.stamp(4)
    g.srd(sA, P_X, 8192)
    g.srd(sBs, P_GW, 1024)
    g("v_lshlrev_b32 v8, 4, v0")
    g(f"s_lshl_b32 s{sU2}, s{sB}, 10")
    g(f"buffer_load_dwordx4 v[16:19], v8, s[{sA}:{sA+3}], s{sU2} offen")
    g(f"buffer_load_dwordx4 v[20:23], v8, s[{sBs}:{sBs+3}], 0 offen")
    g("s_waitcnt vmcnt(0)")
    for i in range(4):
        g(f"v_lshlrev_b32 v{24+2*i}, 16, v{16+i}")
        g(f"v_and_b32 v{25+2*i}, 0xffff0000, v{16+i}")
        g(f"v_lshlrev_b32 v{32+2*i}, 16, v{20+i}")
        g(f"v_and_b32 v{33+2*i}, 0xffff0000, v{20+i}")
    for i in range(8):
        g(f"v_mul_f32 v{24+i}, v{24+i}, v{32+i}")
    for i in range(4):
        g(f"v_cvt_pk_bf16_f32 v{32+i}, v{24+2*i}, v{25+2*i}")
    for i in range(4):
        g(f"v_lshlrev_b32 v{24+2*i}, 16, v{32+i}")
        g(f"v_and_b32 v{25+2*i}, 0xffff0000, v{32+i}")
    g("v_add_f32 v24, v24, v25")
    g("v_add_f32 v26, v26, v27")
    g("v_add_f32 v28, v28, v29")
    g("v_add_f32 v30, v30, v31")
    g("v_add_f32 v24, v24, v26")
    g("v_add_f32 v28, v28, v30")
    g("v_add_f32 v24, v24, v28")
    for rot in (1, 2, 4, 8):
        g("s_nop 1")
        g(f"v_add_f32_dpp v25, v24, v24 row_ror:{rot} row_mask:0xf bank_mask:0xf")
        g("v_mov_b32 v24, v25")
    g("s_nop 1")
    g("v_permlane16_swap_b32 v24, v25")
    g("v_add_f32 v24, v24, v25")
    g("v_mov_b32 v25, v24")
    g("s_nop 1")
    g("v_permlane32_swap_b32 v24, v25")
    g("v_add_f32 v24, v24, v25")
    g("v_cvt_pk_bf16_f32 v24, v24, v24")
    g("v_and_b32 v24, 0xffff0000, v24")
    g("v_mul_f32 v24, 0xbfb8aa3b, v24")
    g("v_exp_f32 v24, v24")
    g("s_nop 0")
    g("v_add_f32 v24, 1.0, v24")
    g("v_rcp_f32 v24, v24")
    g("s_nop 0")
    g("v_cvt_pk_bf16_f32 v24, v24, v24")
    g("v_and_b32 v10, 0xffff0000, v24")
    g("v_sub_f32 v11, 1.0, v10")
    g("v_cvt_pk_bf16_f32 v11, v11, v11")
    g("v_and_b32 v11, 0xffff0000, v11")

    def inbox_reduce(tag, off, nchunk2, sleep, dst, presleep=0):
        g(f"s_lshl_b32 s{sU2}, s2, 12")
        g(f"s_add_u32 s{sU2}, s{sU2}, {WS_PAB + off}")
        g("v_lshlrev_b32 v8, 4, v0")
        if nchunk2 < 64:
            g(f"v_cmp_gt_u32 s[66:67], {nchunk2}, v0")
            g(f"v_min_u32 v9, {nchunk2-1}, v0")
            g("v_lshlrev_b32 v9, 4, v9")
        g("s_mov_b32 s70, 0x40000")
        for _ in range(presleep):
            g("s_sleep 127")
        if tag == "a" and APIPE > 1:
            AB = 80
            def aiss(k):
                g(f"buffer_load_dwordx4 {vr(AB+8*k,4)}, v8, s[{sWSs}:{sWSs+3}], s{sU2} offen sc1")
                g(f"buffer_load_dwordx4 {vr(AB+8*k+4,4)}, v8, s[{sWSs}:{sWSs+3}], s{sU2} offen offset:1024 sc1")
            for k in range(APIPE - 1):
                aiss(k)
                g(f"s_sleep {AGAP}")
            g.label("L_pollia")
            for k in range(APIPE):
                aiss((k + APIPE - 1) % APIPE)
                g(f"s_waitcnt vmcnt({2*(APIPE-1)})")
                tagchk(24, AB+8*k, True, 25, 26)
                tagchk(24, AB+8*k+4, False, 25, 26)
                g("v_cmp_ne_u32 vcc, 0, v24")
                g(f"s_cbranch_vccz L_aok{k}")
                g(f"s_sleep {AGAP}")
            g("s_sub_u32 s70, s70, 1")
            g("s_cmp_lg_u32 s70, 0")
            g("s_cbranch_scc1 L_pollia")
            for k in range(APIPE - 1, -1, -1):
                g.label(f"L_aok{k}")
                for i in range(4):
                    g(f"v_add_f32 v{16+i}, v{AB+8*k+i}, v{AB+8*k+4+i}")
                if k: g("s_branch L_ioka")
            g.label("L_ioka")
            g.stamp(13)
        else:
            g.label(f"L_polli{tag}")
            g(f"buffer_load_dwordx4 v[16:19], v8, s[{sWSs}:{sWSs+3}], s{sU2} offen sc1")
            g(f"buffer_load_dwordx4 v[20:23], {'v9' if nchunk2 < 64 else 'v8'}, s[{sWSs}:{sWSs+3}], s{sU2} offen offset:1024 sc1")
            g("s_waitcnt vmcnt(0)")
            tagchk(24, 16, True, 25, 26)
            tagchk(24, 20, False, 25, 26)
            g("v_cmp_ne_u32 vcc, 0, v24")
            g(f"s_cbranch_vccz L_iok{tag}")
            g(f"s_sleep {sleep}")
            g("s_sub_u32 s70, s70, 1")
            g("s_cmp_lg_u32 s70, 0")
            g(f"s_cbranch_scc1 L_polli{tag}")
            g.label(f"L_iok{tag}")
            if tag == "a": g.stamp(13)
            if nchunk2 < 64:
                for i in range(4):
                    g(f"v_cndmask_b32 v{20+i}, 0, v{20+i}, s[66:67]")
            for i in range(4):
                g(f"v_add_f32 v{16+i}, v{16+i}, v{20+i}")
        g("s_nop 0")
        for i in range(4):
            g(f"v_add_f32_dpp v{20+i}, v{16+i}, v{16+i} row_ror:4 row_mask:0xf bank_mask:0xf")
        g("s_nop 0")
        for i in range(4):
            g(f"v_add_f32_dpp v{16+i}, v{20+i}, v{20+i} row_ror:8 row_mask:0xf bank_mask:0xf")
        for i in range(4):
            g(f"v_mov_b32 v{20+i}, v{16+i}")
        g("s_nop 0")
        for i in range(4):
            g(f"v_permlane16_swap_b32 v{16+i}, v{20+i}")
        for i in range(4):
            g(f"v_add_f32 v{16+i}, v{16+i}, v{20+i}")
        for i in range(4):
            g(f"v_mov_b32 v{20+i}, v{16+i}")
        g("s_nop 0")
        for i in range(4):
            g(f"v_permlane32_swap_b32 v{16+i}, v{20+i}")
        for i in range(4):
            g(f"v_add_f32 v{dst+i}, v{16+i}, v{20+i}")
    g.stamp(5)
    if not NOFFN:
        inbox_reduce("b", 2048, 48, 32, 12, presleep=3)
    g.stamp(6)
    for i in range(8*APIPE if APIPE > 1 else 0):
        g(f"v_not_b32 v{80+i}, v{vTag}")
    g("s_branch L_Hbar2")

    g.label("L_H123")
    g(f"s_cmp_lg_u32 s{sHW}, 2")
    g("s_cbranch_scc1 L_H13")
    g("v_mov_b32 v8, 0")
    g(f"v_mov_b32 v9, {L_HEAD}")
    g(f"s_lshl_b32 s{sU}, s{sGRP}, 12")
    g(f"s_add_u32 s{sU}, s{sU}, {WS_CNT}")
    g("s_mov_b32 s20, 0")
    g(f"s_mov_b32 s22, {TH}")
    g(f"s_mov_b32 s23, {BF}")
    g("s_mov_b32 s24, 0")
    g("s_mov_b32 s25, 0x10000")
    g("s_mov_b32 s70, 0x100000")
    g("s_waitcnt lgkmcnt(0)")
    g(f"s_add_u32 s{sTag}, s{sTag}, 1")
    g(f"v_mov_b32 v{vTag}, s{sTag}")
    g("s_mov_b64 exec, 1")
    g.label("L_Dwq")
    g(f"ds_read_b32 v10, v9 offset:{L_FLAG3 - L_HEAD}")
    g("s_sub_u32 s70, s70, 1")
    g("s_waitcnt lgkmcnt(0)")
    g("v_cmp_ne_u32 vcc, 1, v10")
    g("s_cbranch_vccz L_Dclaim")
    g("s_sleep 2")
    g("s_cmp_lg_u32 s70, 0")
    g("s_cbranch_scc1 L_Dwq")
    g("s_branch L_Ddone")
    if True:
        g.label("L_Dloop")
        g("ds_read_b32 v10, v9")
        g("s_sub_u32 s70, s70, 1")
        g("s_waitcnt lgkmcnt(0)")
        g("v_readfirstlane_b32 s21, v10")
        g("s_cmp_eq_u32 s70, 0")
        g("s_cbranch_scc1 L_Ddone")
        g("s_sub_u32 s21, s20, s21")
        g("s_cmp_lt_i32 s21, s22")
        g("s_cbranch_scc1 L_Dclaim")
        g("s_sleep 1")
        g("s_branch L_Dloop")
        g.label("L_Dclaim")
        g("v_mov_b32 v11, s23")
        g(f"buffer_atomic_add v11, v8, s[{sWSs}:{sWSs+3}], s{sU} offen sc0 sc1")
        g("s_mov_b64 exec, 0xffff")
        g("v_add_u32 v12, s20, v0")
        g("v_lshrrev_b32 v13, 5, v12")
        g("v_add_u32 v13, 1, v13")
        g("v_lshlrev_b32 v13, 16, v13")
        g("v_and_b32 v12, 31, v12")
        g(f"v_lshlrev_b32 v12, 2, v12")
        g("s_bfm_b32 s26, s23, 0")
        g("s_add_u32 s20, s20, s23")
        g("s_waitcnt vmcnt(0)")
        g("v_readfirstlane_b32 s21, v11")
        g("s_add_u32 s27, s21, s23")
        g(f"s_cmp_ge_u32 s27, {NU}")
        g("s_cselect_b32 s26, 0xffff, s26")
        g("s_cselect_b32 s28, 1, 0")
        g("v_add_u32 v14, s21, v0")
        g(f"v_min_u32 v14, {NU}, v14")
        g("v_or_b32 v13, v13, v14")
        g("s_mov_b32 exec_lo, s26")
        g(f"ds_write_b32 v12, v13 offset:{L_Q & 0xffff}" if False else f"v_add_u32 v12, {L_Q}, v12")
        g("ds_write_b32 v12, v13")
        g("s_mov_b64 exec, 1")
        g("s_sub_u32 s27, s21, s24")
        g("s_cmp_gt_u32 s27, s25")
        g(f"s_cselect_b32 s22, {THS}, {TH}")
        g(f"s_mul_i32 s25, s23, {SLOWQ}")
        g(f"s_cselect_b32 s23, {BS}, {BF}")
        if SLOWFROM:
            g(f"s_cmp_lt_u32 s21, {SLOWFROM}")
            g(f"s_cselect_b32 s22, {TH}, s22")
            g(f"s_cselect_b32 s23, {BF}, s23")
        if EPH:
            g(f"s_cmp_ge_u32 s21, {NU - EPH}")
            g(f"s_cselect_b32 s27, {THE}, {TH}")
            g(f"s_cselect_b32 s29, {BE}, {BF}")
            g("s_min_u32 s22, s22, s27")
            g("s_min_u32 s23, s23, s29")
        g("s_mov_b32 s24, s21")
        g("s_cmp_eq_u32 s28, 0")
        g("s_cbranch_scc1 L_Dloop")
        g.label("L_Ddone")
        g("s_mov_b64 exec, -1")
        g("s_waitcnt lgkmcnt(0)")
    if LOCAL:
        g("v_lshlrev_b32 v8, 4, v0")
        g("s_lshl_b32 s20, s2, 12")
        g(f"s_add_u32 s20, s20, {WS_PAB}")
        g(f"buffer_load_dwordx4 v[12:15], v8, s[{sWSs}:{sWSs+3}], s20 offen sc1")
        g(f"buffer_load_dwordx4 v[16:19], v8, s[{sWSs}:{sWSs+3}], s20 offen offset:1024 sc1")
        g("s_waitcnt vmcnt(0)")
    if PRET:
        g("v_and_b32 v8, 7, v0")
        g("v_bfe_u32 v9, v0, 3, 2")
        g("v_lshl_add_u32 v8, v8, 2, v9")
        g("v_lshlrev_b32 v8, 15, v8")
        g(f"s_lshl_b32 s20, s{sB}, 12")
        g(f"s_add_u32 s20, s20, {WS_PAB + 3968}")
        g("v_add_u32 v8, s20, v8")
        g("v_bfe_u32 v9, v0, 2, 3")
        g("v_lshlrev_b32 v9, 17, v9")
        g("v_lshl_add_u32 v9, v7, 12, v9")
        g(f"s_lshl_b32 s20, s{sX}, 14")
        g(f"s_lshl_b32 s21, s{sSPLIT}, 9")
        g("s_add_u32 s20, s20, s21")
        g(f"s_add_u32 s20, s20, {WS_RO}")
        g("v_add_u32 v9, s20, v9")
        g("v_cmp_gt_u32 vcc, 32, v0")
        g("v_cndmask_b32 v8, v9, v8, vcc")
        g(f"buffer_load_dword v10, v8, s[{sWSs}:{sWSs+3}], 0 offen sc1")
        if PRET >= 2:
            g("v_and_b32 v8, 1, v0")
            g("v_lshlrev_b32 v8, 14, v8")
            g(f"s_lshl_b32 s20, s{sGRP}, 15")
            g(f"s_lshl_b32 s21, s{sX}, 11")
            g("s_add_u32 s20, s20, s21")
            g(f"s_add_u32 s20, s20, {WS_RO}")
            g("v_add_u32 v8, s20, v8")
            g("v_and_b32 v9, 7, v0")
            g("v_lshlrev_b32 v9, 12, v9")
            g(f"v_add_u32 v9, {WS_ML}, v9")
            g("v_cmp_gt_u32 vcc, 8, v0")
            g("v_cndmask_b32 v8, v9, v8, vcc")
            g("s_mov_b64 exec, 0xffff")
            g(f"buffer_load_dword v11, v8, s[{sWSs}:{sWSs+3}], 0 offen sc1")
            g("s_mov_b64 exec, -1")
        g("s_waitcnt vmcnt(0)")
    g.stamp(5)
    g("s_branch L_Hbar2")

    g.label("L_H13")
    g("s_waitcnt lgkmcnt(0)")
    g(f"s_add_u32 s{sTag}, s{sTag}, 1")
    g(f"v_mov_b32 v{vTag}, s{sTag}")
    g(f"s_cmp_eq_u32 s{sHW}, 3")
    g("s_cbranch_scc1 L_H3" if LOCAL else "s_cbranch_scc1 L_Hbar2")
    if WDELAY:
        g(f"s_sleep {WDELAY}")
    g(f"s_cmp_ge_u32 s{sA_}, 8")
    g("s_cbranch_scc1 L_H1wo")
    g(f"v_mov_b32 v8, {L_FLAG2}")
    g("s_mov_b32 s70, 0x4000")
    g.label("L_H1w")
    g("ds_read_b32 v9, v8")
    g("s_sub_u32 s70, s70, 1")
    g("s_waitcnt lgkmcnt(0)")
    g("v_cmp_ne_u32 vcc, 1, v9")
    g("s_cbranch_vccz L_H1wo")
    g("s_sleep 2")
    g("s_cmp_lg_u32 s70, 0")
    g("s_cbranch_scc1 L_H1w")
    g.label("L_H1wo")
    g.srd(sA, P_WO, 4096 * 512 * 2)
    g("v_lshl_add_u32 v8, v4, 10, v5")
    if LOCAL:
        g(f"s_lshl_b32 s{sU}, s{sA_}, 17")
        g(f"s_lshl_b32 s{sU2}, s{sX}, 7")
    else:
        g(f"s_lshl_b32 s{sU}, s{sX}, 2")
        g(f"s_add_u32 s{sU}, s{sU}, s{sSPLIT}")
        g(f"s_lshl_b32 s{sU}, s{sU}, 17")
        g(f"s_lshl_b32 s{sU2}, s{sB}, 7")
    g(f"s_add_u32 s{sU}, s{sU}, s{sU2}")
    for i in range(16):
        g(f"s_mov_b32 m0, {L_ST + i*1024}")
        g(f"s_add_u32 s{sU2}, s{sU}, {i*8192}")
        g(f"buffer_load_dwordx4 v8, s[{sA}:{sA+3}], s{sU2} offen {WPOL} lds")
    g("s_waitcnt vmcnt(0)")
    g.stamp(5)
    if EARLYA:
        assert LOCAL and MLC
        def ldspoll(lbl, addr, cmpop, val, slp):
            g(f"v_mov_b32 v8, {addr}")
            g("s_mov_b32 s70, 0x40000")
            g.label(lbl)
            g("ds_read_b32 v31, v8")
            g("s_sub_u32 s70, s70, 1")
            g("s_waitcnt lgkmcnt(0)")
            g(f"v_cmp_{cmpop}_u32 vcc, {val}, v31")
            g(f"s_cbranch_vccz {lbl}ok")
            g(f"s_sleep {slp}")
            g("s_cmp_lg_u32 s70, 0")
            g(f"s_cbranch_scc1 {lbl}")
            g.label(lbl + "ok")
        for _ in range(4):
            g("s_sleep 127")
        ldspoll("L_A1", L_SWC, "ne", 4, 16)
        g.stamp(1)
        g("v_lshrrev_b32 v50, 5, v0")
        g("v_and_b32 v51, 31, v0")
        g("v_lshlrev_b32 v8, 4, v0")
        g(f"v_add_u32 v9, {L_AST}, v8")
        g(f"v_lshlrev_b32 v10, 3, v50")
        g(f"v_add_u32 v10, {L_ML}, v10")
        g("v_lshl_add_u32 v11, v50, 3, v51")
        g("v_lshlrev_b32 v11, 7, v11")
        g("v_cmp_gt_u32 s[66:67], 8, v51")
        g(f"s_lshl_b32 s20, s{sGRP}, 15")
        g(f"s_lshl_b32 s21, s{sX}, 11")
        g("s_add_u32 s20, s20, s21")
        g(f"s_add_u32 s20, s20, {WS_RO}")
        g(f"s_lshl_b32 s21, s{sGRP}, 13")
        g(f"s_lshl_b32 s22, s{sX}, 4")
        g("s_add_u32 s21, s21, s22")
        g(f"s_add_u32 s21, s21, {WS_ML8}")
        for hp in range(2):
            for w in range(4):
                g(f"ds_read_b64 v[{64+2*w}:{65+2*w}], v10 offset:{w*32 + hp*16}")
            for w in range(4):
                g(f"ds_read_b128 {vr(32+4*w,4)}, v9 offset:{w*2048 + hp*1024}")
            g("s_waitcnt lgkmcnt(0)")
            g("v_max3_f32 v72, v64, v66, v68")
            g("v_max_f32 v72, v72, v70")
            g("v_and_b32 v72, 0xffffff00, v72")
            for w in range(4):
                g(f"v_sub_f32 v{74+w}, v{64+2*w}, v72")
            for w in range(4):
                g(f"v_exp_f32 v{74+w}, v{74+w}")
            g("s_nop 0")
            d = 80 + 8*hp
            for i in range(4):
                g(f"v_mul_f32 v{d+i}, v74, v{32+i}")
            for w in range(1, 4):
                for i in range(4):
                    g(f"v_fmac_f32 v{d+i}, v{74+w}, v{32+4*w+i}")
            for i in range(4):
                tagit(d+i, d+i, i)
            g(f"buffer_store_dwordx4 {vr(d,4)}, v8, s[{sWSs}:{sWSs+3}], s20 offen offset:{hp*1024} sc1")
            g("v_mul_f32 v73, v74, v65")
            for w in range(1, 4):
                g(f"v_fmac_f32 v73, v{74+w}, v{65+2*w}")
            tagit(d+4, 72, 0)
            tagit(d+5, 73, 1)
            tagit(d+6, 72, 2)
            tagit(d+7, 72, 3)
            g("s_mov_b64 exec, s[66:67]")
            g(f"buffer_store_dwordx4 {vr(d+4,4)}, v11, s[{sWSs}:{sWSs+3}], s21 offen offset:{hp*2048} sc1")
            g("s_mov_b64 exec, -1")
        g.stamp(2)
        g(f"s_bitcmp1_b32 s{sB}, 0")
        g("s_cbranch_scc1 L_Hbar2")
        g(f"s_lshl_b32 s20, s{sA_}, 10")
        g(f"s_lshl_b32 s21, s{sX}, 7")
        g("s_add_u32 s20, s20, s21")
        g(f"s_add_u32 s20, s20, {WS_ML8}")
        g("v_lshl_add_u32 v9, v4, 15, v5")
        g("s_mov_b32 s70, 0x4000")
        g.label("L_A2")
        g("s_sleep 32")
        g(f"buffer_load_dwordx4 v[12:15], v9, s[{sWSs}:{sWSs+3}], s20 offen sc1")
        g("s_sub_u32 s70, s70, 1")
        g("s_waitcnt vmcnt(0)")
        tagchk(16, 12, True, 17, 18)
        g("v_cmp_ne_u32 vcc, 0, v16")
        g("s_cbranch_vccz L_A2ok")
        g("s_cmp_lg_u32 s70, 0")
        g("s_cbranch_scc1 L_A2")
        g.label("L_A2ok")
        g.stamp(3)
        g("v_lshlrev_b32 v9, 11, v50")
        g("v_lshl_add_u32 v9, v51, 4, v9")
        g("v_lshl_add_u32 v10, v7, 1, v50")
        g("v_lshlrev_b32 v10, 4, v10")
        g(f"s_lshl_b32 s21, s{sB}, 14")
        g(f"s_lshl_b32 s22, s{sSPLIT}, 9")
        g("s_add_u32 s21, s21, s22")
        g(f"s_add_u32 s21, s21, {WS_RO}")
        g(f"v_lshlrev_b32 v11, 3, v51")
        g(f"v_add_u32 v11, {L_OBUF2}, v11")
        g("s_mov_b32 s23, 0")
        g.label("L_A3")
        g("s_mov_b32 s70, 0x4000")
        g.label("L_A3r")
        for bb in range(4):
            B0 = 40 + 20*bb
            g(f"s_add_u32 s22, s20, {bb*32768}")
            g(f"buffer_load_dwordx4 {vr(B0+16,4)}, v10, s[{sWSs}:{sWSs+3}], s22 offen sc1")
            for i in range(4):
                g(f"s_add_u32 s22, s21, {bb*131072 + i*4096}")
                g(f"buffer_load_dwordx4 {vr(B0+4*i,4)}, v9, s[{sWSs}:{sWSs+3}], s22 offen sc1")
        g("s_sub_u32 s70, s70, 1")
        g("s_waitcnt vmcnt(0)")
        for k in range(20):
            tagchk(16, 40+4*k, k == 0, 17, 18)
        g("v_cmp_ne_u32 vcc, 0, v16")
        g("s_cbranch_vccz L_A3ok")
        g("s_sleep 8")
        g("s_cmp_lg_u32 s70, 0")
        g("s_cbranch_scc1 L_A3r")
        g.label("L_A3ok")
        for bb in range(4):
            B0 = 40 + 20*bb
            gmath(B0, B0+16, 12, 16)
            g(f"ds_write_b64 v11, v[12:13] offset:{bb*256}")
        g("v_add_u32 v11, 1024, v11")
        g(f"s_add_u32 s20, s20, {4*32768}")
        g(f"s_add_u32 s21, s21, {4*131072}")
        g("s_add_u32 s23, s23, 1")
        g("s_cmp_lt_u32 s23, 2")
        g("s_cbranch_scc1 L_A3")
        g.stamp(4)
        ldspoll("L_A4", L_LOC, "eq", 0, 16)
        g("v_and_b32 v9, 7, v0")
        g("v_lshlrev_b32 v9, 8, v9")
        g("v_lshl_add_u32 v9, v3, 4, v9")
        g(f"v_add_u32 v9, {L_OBUF2}, v9")
        for kb in range(4):
            g(f"ds_read_b128 {vr(48+4*kb,4)}, v9 offset:{kb*64}")
        g(f"v_add_u32 v9, {L_ST}, v6")
        for t in range(4):
            for kb in range(4):
                g(f"ds_read_b64_tr_b16 {vr(64+16*t+4*kb,2)}, v9 offset:{kb*4096 + t*32}")
                g(f"ds_read_b64_tr_b16 {vr(66+16*t+4*kb,2)}, v9 offset:{kb*4096 + 512 + t*32}")
            if t == 2:
                g("s_waitcnt lgkmcnt(0)")
        g("v_lshlrev_b32 v8, 17, v2")
        g("v_lshl_add_u32 v8, v3, 4, v8")
        g(f"s_lshl_b32 s20, s{sX}, 12")
        g(f"s_lshl_b32 s21, s{sA_}, 6")
        g("s_add_u32 s20, s20, s21")
        g(f"s_add_u32 s20, s20, {WS_PAB}")
        g("v_cmp_gt_u32 s[66:67], 8, v2")
        g("v_cmp_eq_u32 vcc, 1, v31")
        g("s_waitcnt lgkmcnt(0)")
        for t in range(4):
            for kb in range(4):
                srcc = "0" if kb == 0 else vr(32+4*t, 4)
                g(f"v_mfma_f32_16x16x32_bf16 {vr(32+4*t,4)}, {vr(64+16*t+4*kb,4)}, {vr(48+4*kb,4)}, {srcc}")
        g("s_nop 7")
        g("s_nop 3")
        g(f"v_mov_b32 v{vTag}, s{sTag}")
        for i in range(16):
            tagit(32+i, 32+i, i & 3)
        g("s_mov_b64 exec, s[66:67]")
        g("s_cbranch_vccz L_A5s")
        for t in range(4):
            g(f"s_add_u32 s21, s20, {t*32768}")
            g(f"buffer_store_dwordx4 {vr(32+4*t,4)}, v8, s[{sWSs}:{sWSs+3}], s21 offen")
        g("s_branch L_A5d")
        g.label("L_A5s")
        for t in range(4):
            g(f"s_add_u32 s21, s20, {t*32768}")
            g(f"buffer_store_dwordx4 {vr(32+4*t,4)}, v8, s[{sWSs}:{sWSs+3}], s21 offen sc1")
        g.label("L_A5d")
        g("s_mov_b64 exec, -1")
        g.stamp(6)
    if LOCAL:
        g("s_branch L_Hbar2")
        g.label("L_H3")
        g("s_getreg_b32 s20, hwreg(HW_REG_XCC_ID)")
        g("s_lshl_b32 s20, s20, 8")
        g("v_mov_b32 v8, s20")
        for i in range(4):
            tagit(12+i, 8, i)
        g(f"s_lshl_b32 s21, s{sX}, 9")
        g(f"s_add_u32 s21, s21, {WS_XT}")
        g(f"s_lshl_b32 s22, s{sA_}, 4")
        g("s_add_u32 s22, s22, s21")
        g("v_mov_b32 v9, 0")
        g("s_sleep 127")
        g("s_mov_b64 exec, 1")
        g(f"buffer_store_dwordx4 v[12:15], v9, s[{sWSs}:{sWSs+3}], s22 offen sc1")
        g("s_mov_b64 exec, -1")
        g("v_and_b32 v9, 31, v0")
        g("v_lshlrev_b32 v9, 4, v9")
        for _ in range(4):
            g("s_sleep 127")
        g("s_mov_b32 s70, 0x4000")
        g.label("L_H3p")
        g("s_sleep 64")
        g(f"buffer_load_dwordx4 v[16:19], v9, s[{sWSs}:{sWSs+3}], s21 offen sc1")
        g("s_sub_u32 s70, s70, 1")
        g("s_waitcnt vmcnt(0)")
        tagchk(20, 16, True, 21, 22)
        g("v_cmp_ne_u32 vcc, 0, v20")
        g("s_cbranch_vccz L_H3ok")
        g("s_cmp_lg_u32 s70, 0")
        g("s_cbranch_scc1 L_H3p")
        g.label("L_H3ok")
        g("v_cmp_ne_u32 vcc, v12, v16")
        g(f"v_mov_b32 v8, {L_LOC}")
        g("v_mov_b32 v9, 2")
        g("s_cbranch_vccnz L_H3w")
        g("v_mov_b32 v9, 1")
        g.label("L_H3w")
        g("ds_write_b32 v8, v9")
        g("s_waitcnt lgkmcnt(0)")

    g.label("L_Hbar2")
    g(f"s_lshl_b32 s{sU}, s{sHW}, 5")
    g(f"s_add_u32 s{sU}, s{sU}, {L_ST}")
    g(f"v_add_u32 v9, s{sU}, v6")
    g.stamp(7)
    g.c("barrier 2")
    g("s_barrier")
    if EARLYA:
        g(f"s_bitcmp0_b32 s{sB}, 0")
        g("s_cbranch_scc1 L_PAd")
    for kb in range(4):
        g(f"ds_read_b64_tr_b16 {vr(32+4*kb,2)}, v9 offset:{kb*4096}")
        g(f"ds_read_b64_tr_b16 {vr(34+4*kb,2)}, v9 offset:{kb*4096+512}")
    if LOCAL:
        g(f"v_mov_b32 v9, {L_LOC}")
        g("ds_read_b32 v31, v9")

    g.label("L_gather")
    g.stamp(8)
    g(f"s_lshl_b32 s58, s{sWAVE}, 3")
    g(f"s_add_u32 s58, s58, s{sB if LOCAL else sX}")
    g(f"s_lshl_b32 s59, s58, 2")
    g(f"s_add_u32 s59, s59, s{sSPLIT}")
    if MLC:
        g(f"s_lshl_b32 s59, s59, 3")
        g(f"s_add_u32 s59, s59, s{sX if LOCAL else sB}")
    g(f"s_lshl_b32 s59, s59, 7")
    g(f"s_add_u32 s59, s59, {WS_ML8 if MLC else WS_ML}")
    g(f"s_lshl_b32 s58, s58, 14")
    g(f"s_lshl_b32 s60, s{sSPLIT}, 9")
    g(f"s_add_u32 s58, s58, s60")
    g(f"s_add_u32 s60, s58, {WS_RO}")
    g(f"s_add_u32 s61, s58, {WS_RO + 4096}")
    g(f"s_add_u32 s62, s58, {WS_RO + 8192}")
    g(f"s_add_u32 s63, s58, {WS_RO + 12288}")
    g("v_lshrrev_b32 v50, 5, v0")
    g("v_and_b32 v51, 31, v0")
    g("v_lshlrev_b32 v48, 11, v50")
    g("v_lshl_add_u32 v48, v51, 4, v48")
    g("v_and_b32 v49, 3, v0")
    g("v_lshl_add_u32 v49, v49, 1, v50")
    g("v_lshlrev_b32 v49, 4, v49")
    g("s_mov_b32 s71, 15")
    g("s_mov_b32 s68, 0")
    g("s_mov_b32 s70, 0x40000")
    if dbg: g("s_mov_b32 s87, 0")
    g.label("L_pollr")
    if dbg: g("s_add_u32 s87, s87, 1")
    g("s_andn2_b32 s69, s71, s68")
    g("s_bcnt1_i32_b32 s69, s69")
    g(f"s_cmp_le_u32 s69, {GEAGER}")
    g("s_cselect_b32 s69, 15, s68")
    g("s_and_b32 s69, s69, s71")
    g("s_cmp_eq_u32 s68, 15")
    g("s_cbranch_scc1 L_pr4")
    g(f"buffer_load_dwordx4 {vr(72,4)}, v49, s[{sWSs}:{sWSs+3}], s59 offen sc1")
    g.label("L_pr4")
    for s_ in range(4):
        g(f"s_bitcmp1_b32 s69, {s_}")
        g(f"s_cbranch_scc0 L_pr{s_}")
        g(f"buffer_load_dwordx4 {vr(56+4*s_,4)}, v48, s[{sWSs}:{sWSs+3}], s{60+s_} offen sc1")
        g.label(f"L_pr{s_}")
    g("s_waitcnt vmcnt(0)")
    tagchk(52, 72, True, 53, 54)
    g("v_cmp_eq_u32 vcc, 0, v52")
    g("s_and_b32 s68, vcc_lo, vcc_hi")
    g("s_and_b32 s68, s68, 15")
    for s_ in range(4):
        g(f"s_bitcmp1_b32 s69, {s_}")
        g(f"s_cbranch_scc0 L_pq{s_}")
        tagchk(52, 56+4*s_, True, 53, 54)
        g("v_cmp_ne_u32 vcc, 0, v52")
        g(f"s_cbranch_vccnz L_pq{s_}")
        g(f"s_bitset0_b32 s71, {s_}")
        g.label(f"L_pq{s_}")
    g("s_xor_b32 s69, s68, 15")
    g("s_or_b32 s69, s69, s71")
    g("s_cmp_eq_u32 s69, 0")
    g("s_cbranch_scc1 L_rok")
    if RSLEEP:
        g(f"s_sleep {RSLEEP}")
    g("s_sub_u32 s70, s70, 1")
    g("s_cmp_lg_u32 s70, 0")
    g("s_cbranch_scc1 L_pollr")
    g.label("L_rok")
    g.stamp(9)
    gmath(56, 72, 52, 76)
    g(f"s_lshl_b32 s58, s{sWAVE}, 8")
    g(f"s_add_u32 s58, s58, {L_OBUF}")
    g(f"v_lshl_add_u32 v50, v51, 3, s58")
    g("ds_write_b64 v50, v[52:53]")
    g("s_waitcnt lgkmcnt(0)")
    g.c("barrier 3")
    g("s_barrier")
    g.stamp(10)
    g(f"s_cmp_ge_u32 s{sWAVE}, 4")
    g("s_cbranch_scc1 L_fin")
    g("v_and_b32 v9, 7, v0")
    g("v_lshlrev_b32 v9, 8, v9")
    g("v_lshl_add_u32 v9, v3, 4, v9")
    for kb in range(4):
        g(f"ds_read_b128 {vr(48+4*kb,4)}, v9 offset:{L_OBUF + kb*64}")
    g("v_lshlrev_b32 v8, 17, v2")
    g("v_lshl_add_u32 v8, v3, 4, v8")
    g(f"s_lshl_b32 s{sU}, s{sHW}, 3")
    g(f"s_add_u32 s{sU}, s{sU}, s{sX if LOCAL else sB}")
    g(f"s_lshl_b32 s{sU}, s{sU}, 12")
    if LOCAL:
        g(f"s_lshl_b32 s{sU2}, s{sA_}, 6")
        g("v_cmp_eq_u32 vcc, 1, v31")
    else:
        g(f"s_lshl_b32 s{sU2}, s{sX}, 2")
        g(f"s_add_u32 s{sU2}, s{sU2}, s{sSPLIT}")
        g(f"s_lshl_b32 s{sU2}, s{sU2}, 6")
    g(f"s_add_u32 s{sU}, s{sU}, s{sU2}")
    g(f"s_add_u32 s{sU}, s{sU}, {WS_PAB}")
    g("v_cmp_gt_u32 s[66:67], 8, v2")
    g("s_waitcnt lgkmcnt(0)")
    for kb in range(4):
        srcc = "0" if kb == 0 else "v[64:67]"
        g(f"v_mfma_f32_16x16x32_bf16 v[64:67], {vr(32+4*kb,4)}, {vr(48+4*kb,4)}, {srcc}")
    g("s_nop 7")
    g("s_nop 3")
    for i in range(4):
        tagit(64+i, 64+i, i)
    g("s_mov_b64 exec, s[66:67]")
    if LOCAL:
        g("s_cbranch_vccz L_PAs")
        g(f"buffer_store_dwordx4 v[64:67], v8, s[{sWSs}:{sWSs+3}], s{sU} offen")
        g("s_branch L_PAd")
        g.label("L_PAs")
    g(f"buffer_store_dwordx4 v[64:67], v8, s[{sWSs}:{sWSs+3}], s{sU} offen sc1")
    g.label("L_PAd")
    g("s_mov_b64 exec, -1")
    g.stamp(11)
    g(f"s_cmp_lg_u32 s{sHW}, 0")
    g("s_cbranch_scc1 L_fin")
    g.srd(sA, P_OUT, 8192)
    inbox_reduce("a", 0, 64, ASLEEP, 24)
    g(f"s_lshl_b32 s{sU}, s{sB}, 10")
    g(f"s_lshl_b32 s{sU2}, s{sX}, 7")
    g(f"s_add_u32 s{sU}, s{sU}, s{sU2}")
    g(f"s_lshl_b32 s{sU2}, s{sSPLIT}, 5")
    g(f"s_add_u32 s{sU}, s{sU}, s{sU2}")
    g("v_lshlrev_b32 v8, 3, v0")
    for i in range(4):
        g(f"v_cvt_pk_bf16_f32 v{16+i}, v{24+i}, v{12+i}")
    for i in range(4):
        g(f"v_lshlrev_b32 v{20+i}, 16, v{16+i}")
        g(f"v_and_b32 v{24+i}, 0xffff0000, v{16+i}")
    for i in range(4):
        g(f"v_mul_f32 v{20+i}, v10, v{20+i}")
        g(f"v_mul_f32 v{24+i}, v11, v{24+i}")
    for i in range(4):
        g(f"v_cvt_pk_bf16_f32 v{16+i}, v{20+i}, v{24+i}")
    for i in range(4):
        g(f"v_lshlrev_b32 v{20+i}, 16, v{16+i}")
        g(f"v_and_b32 v{24+i}, 0xffff0000, v{16+i}")
    for i in range(4):
        g(f"v_add_f32 v{20+i}, v{20+i}, v{24+i}")
    g("v_cvt_pk_bf16_f32 v16, v20, v21")
    g("v_cvt_pk_bf16_f32 v17, v22, v23")
    g("s_mov_b64 exec, 15")
    g(f"buffer_store_dwordx2 v[16:17], v8, s[{sA}:{sA+3}], s{sU} offen")
    g("s_cmp_lg_u32 s2, 0")
    g("s_cbranch_scc1 L_noep")
    g("s_mov_b64 exec, 1")
    g(f"buffer_store_dword v{vTag}, v8, s[{sWSs}:{sWSs+3}], 0 offen offset:{WS_EPOCH} sc1")
    g.label("L_noep")
    if dbg:
        g("s_waitcnt vmcnt(0)")
    g.stamp(12)
    g.label("L_fin")
    g.stamp_out(sWSs)
    g.label("L_end")
    g("s_endpgm")
    g.o.append('.section .rodata,"a"')
    g.o.append(".p2align 6")
    g.o.append(f".amdhsa_kernel {KN}")
    for l in ("next_free_vgpr 256", "next_free_sgpr 96", "accum_offset 128", "group_segment_fixed_size 0",
              "kernarg_size 104", "user_sgpr_count 2", "user_sgpr_kernarg_segment_ptr 1",
              "system_sgpr_workgroup_id_x 1"):
        g.o.append("  .amdhsa_" + l)
    g.o.append(".end_amdhsa_kernel")
    return "\n".join(g.o) + "\n"


if __name__ == "__main__":
    out = sys.argv[1] if len(sys.argv) > 1 else "k4.s"
    open(out, "w").write(gen(dbg=int(sys.argv[2]) if len(sys.argv) > 2 else 0))
```

```python
import sys, os

KN = "gated_mix__gqa_block_cached__geglu_ffn__decode_kernel"

WS_EPOCH = 0
WS_CNT = 0x20000
WS_QG = 0x40000
WS_ML = 0x60000
WS_RO = 0x80000
WS_PAB = 0x200000
WS_SIZE = 0x400000

L_H = 131072
L_QBUF = L_H
L_ZERO = L_H + 2048
L_CTL = L_H + 2304
L_FLAG = L_CTL
L_HEAD = L_CTL + 16
L_FLAG2 = L_CTL + 20
L_FLAG3 = L_CTL + 24
L_Q = L_CTL + 64
L_ML = L_H + 2560
L_ST = L_H + 4096
L_AST = L_H + 20480
L_OBUF = 16384
LDS_TOTAL = 163840

HPD = int(os.environ.get("HPD", "2"))
RSLEEP = int(os.environ.get("RSLEEP", "2"))
ASLEEP = int(os.environ.get("ASLEEP", "1"))
QSLEEP0 = int(os.environ.get("QSLEEP0", "127"))
TH = int(os.environ.get("TH", "2"))
PDF = int(os.environ.get("PDF", "5"))
NOFFN = int(os.environ.get("NOFFN", "0"))
STATIC = int(os.environ.get("STATIC", "0"))
SDELAY = int(os.environ.get("SDELAY", "16"))
FDELAY = int(os.environ.get("FDELAY", "48"))
GEAGER = int(os.environ.get("GEAGER", "1"))
KPOL = os.environ.get("KPOL", "nt").replace("+", " ").replace("def", "")
VPOL = os.environ.get("VPOL", "nt").replace("+", " ").replace("def", "")
WPOL = os.environ.get("WPOL", "nt").replace("+", " ").replace("def", "")
QPIPE = int(os.environ.get("QPIPE", "1"))
QGAP = int(os.environ.get("QGAP", "8"))
PWAIT = int(os.environ.get("PWAIT", "1"))
HSW = int(os.environ.get("HSW", "12"))
HPD2 = int(os.environ.get("HPD2", "1"))
NS = 7
U0 = int(os.environ.get("U0", "512"))
NU = U0 + 2 * (512 - U0)
WDELAY = int(os.environ.get("WDELAY", "32"))
APIPE = int(os.environ.get("APIPE", "1"))
AGAP = int(os.environ.get("AGAP", "3"))
PRET = int(os.environ.get("PRET", "0"))
LOCAL = int(os.environ.get("LOCAL", "0"))
MLC = int(os.environ.get("MLC", "0"))
EARLYA = int(os.environ.get("EARLYA", "0"))
PD4 = int(os.environ.get("PD4", "2"))
BURST = int(os.environ.get("BURST", "9999"))
W2 = int(os.environ.get("W2", "4"))
WGAP = int(os.environ.get("WGAP", "0"))
WD2 = int(os.environ.get("WD2", "0"))
QS2 = int(os.environ.get("QS2", "20"))
QSP = int(os.environ.get("QSP", "48"))
QS1 = int(os.environ.get("QS1", "8"))
FFNONLY = int(os.environ.get("FFNONLY", "0"))
GFIRST = int(os.environ.get("GFIRST", "0"))
ADELAY = int(os.environ.get("ADELAY", "16"))
BF = int(os.environ.get("BF", "4"))
THS = int(os.environ.get("THS", os.environ.get("TH", "2")))
BS = int(os.environ.get("BS", "4"))
SLOWQ = int(os.environ.get("SLOWQ", "10"))
EPH = int(os.environ.get("EPH", "0"))
THE = int(os.environ.get("THE", "2"))
BE = int(os.environ.get("BE", "2"))
SLOWFROM = int(os.environ.get("SLOWFROM", "0"))
POPS = int(os.environ.get("POPS", "2"))
L_SWC = L_CTL + 32
L_OBUF2 = L_H + 28672
WS_ML8 = 0x300000
WS_XT = 0x70000
L_LOC = L_CTL + 28
MINIT = 0xf149f2ca


LIGHT = int(os.environ.get("LIGHT", "0"))

class G:
    def __init__(self):
        self.o = []
    def __call__(self, s):
        self.o.append("    " + s)
    def label(self, s):
        self.o.append(s + ":")
    def c(self, s):
        self.o.append("    ; " + s)
    def stamp(self, i):
        if LIGHT and i == 0:
            self("s_memrealtime s[72:73]")
        if LIGHT and i == 12:
            self("s_waitcnt vmcnt(0)")
            self("s_memrealtime s[90:91]")
            self("s_lshl_b32 s74, s2, 9")
            self("s_add_u32 s74, s74, 0x180000")
            self("s_mov_b64 exec, 1")
            self("v_mov_b32 v1, 0")
            self("v_mov_b32 v2, s72")
            self("s_waitcnt lgkmcnt(0)")
            self("v_mov_b32 v3, s90")
            self("buffer_store_dwordx2 v[2:3], v1, s[16:19], s74 offen")
        if not self.stamps: return
        self("s_memrealtime s[90:91]")
        self("s_waitcnt lgkmcnt(0)")
        self(f"s_mov_b32 s{72+i}, s90")
    def stamp_out(self, sWSs):
        if not self.stamps: return
        self("s_lshl_b32 s90, s2, 9")
        self("s_lshl_b32 s91, s3, 6")
        self("s_add_u32 s90, s90, s91")
        self("s_add_u32 s90, s90, 0x180000")
        self("s_mov_b64 exec, 1")
        self("v_mov_b32 v1, 0")
        for i in range(16):
            self(f"v_mov_b32 v2, s{72+i}")
            self(f"buffer_store_dword v2, v1, s[{sWSs}:{sWSs+3}], s90 offen offset:{4*i}")
            self("s_nop 1")
    def srd(self, d, p, nbytes):
        self(f"s_mov_b32 s{d}, s{p}")
        self(f"s_and_b32 s{d+1}, s{p+1}, 0xffff")
        self(f"s_mov_b32 s{d+2}, {nbytes:#x}")
        self(f"s_mov_b32 s{d+3}, 0x20000")


def vr(a, n=1):
    return f"v{a}" if n == 1 else f"v[{a}:{a+n-1}]"
def ar(a, n=1):
    return f"a{a}" if n == 1 else f"a[{a}:{a+n-1}]"


def gen(dbg=0):
    g = G()
    g.stamps = dbg
    g.o.append(f"; @launch grid=(256,1,1) block=(512,1,1) lds={LDS_TOTAL}")
    g.o.append('.amdgcn_target "amdgcn-amd-amdhsa--gfx950"')
    g.o.append(".text")
    g.o.append(f".globl {KN}")
    g.o.append(".p2align 8")
    g.o.append(f".type {KN},@function")
    g.label(KN)
    P_X, P_K, P_V, P_WQ, P_WO, P_WG, P_WU, P_WD, P_GW, P_OUT, P_DBG, P_WS = 32, 34, 36, 38, 40, 44, 46, 48, 50, 52, 54, 56
    sWAVE, sX, sA_, sB, sSPLIT = 3, 4, 5, 6, 7
    sKs, sVs, sWSs = 8, 12, 16
    sTag, sGRP = 88, 89
    sSEL = 92
    vTag = 126

    def tagit(dst, src, i):
        g(f"v_perm_b32 v{dst}, v{src}, v{vTag}, s{sSEL+i}")

    def tagchk(acc, r, first, t0, t1):
        g(f"v_perm_b32 v{t0}, v{r+1}, v{r}, s64")
        g(f"v_perm_b32 v{t1}, v{r+3}, v{r+2}, s65")
        if first:
            g(f"v_or_b32 v{acc}, v{t0}, v{t1}")
            g(f"v_xor_b32 v{acc}, v{vTag}, v{acc}")
        else:
            g(f"v_or_b32 v{t0}, v{t0}, v{t1}")
            g(f"v_xor_b32 v{t0}, v{vTag}, v{t0}")
            g(f"v_or_b32 v{acc}, v{acc}, v{t0}")

    def gmath(O, M, T, R):
        g(f"v_and_b32 v{M}, 0xffffff00, v{M}")
        g("s_nop 1")
        g(f"v_max_f32_dpp v{T}, v{M}, v{M} quad_perm:[1,0,3,2] row_mask:0xf bank_mask:0xf")
        g("s_nop 1")
        g(f"v_max_f32_dpp v{T+1}, v{T}, v{T} quad_perm:[2,3,0,1] row_mask:0xf bank_mask:0xf")
        g(f"v_mov_b32 v{T}, v{T+1}")
        g("s_nop 1")
        g(f"v_permlane32_swap_b32 v{T}, v{T+1}")
        g(f"v_max_f32 v{T}, v{T}, v{T+1}")
        g(f"v_sub_f32 v{T}, v{M}, v{T}")
        g(f"v_exp_f32 v{T}, v{T}")
        g("s_nop 0")
        g(f"v_mul_f32 v{T+1}, v{T}, v{M+1}")
        g("s_nop 0")
        for i in range(4):
            g(f"v_mul_f32_dpp v{R+i}, v{T}, v{O+i} quad_perm:[0,0,0,0] row_mask:0xf bank_mask:0xf")
        g(f"v_add_f32_dpp v{T+2}, v{T+1}, v{T+1} quad_perm:[1,0,3,2] row_mask:0xf bank_mask:0xf")
        for s_ in range(1, 4):
            for i in range(4):
                g(f"v_fmac_f32_dpp v{R+i}, v{T}, v{O+4*s_+i} quad_perm:[{s_},{s_},{s_},{s_}] row_mask:0xf bank_mask:0xf")
            if s_ == 1:
                g(f"v_add_f32_dpp v{T+1}, v{T+2}, v{T+2} quad_perm:[2,3,0,1] row_mask:0xf bank_mask:0xf")
        g(f"v_mov_b32 v{T+2}, v{T+1}")
        for i in range(4):
            g(f"v_mov_b32 v{O+i}, v{R+i}")
        g("s_nop 0")
        g(f"v_permlane32_swap_b32 v{T+1}, v{T+2}")
        for i in range(4):
            g(f"v_permlane32_swap_b32 v{R+i}, v{O+i}")
        g(f"v_add_f32 v{T+1}, v{T+1}, v{T+2}")
        g(f"v_rcp_f32 v{T+1}, v{T+1}")
        for i in range(4):
            g(f"v_add_f32 v{R+i}, v{R+i}, v{O+i}")
        for i in range(4):
            g(f"v_mul_f32 v{R+i}, v{T+1}, v{R+i}")
        g(f"v_cvt_pk_bf16_f32 v{T}, v{R}, v{R+1}")
        g(f"v_cvt_pk_bf16_f32 v{T+1}, v{R+2}, v{R+3}")

    g("s_cmp_ge_u32 s2, 256")
    g("s_cbranch_scc1 L_end")
    g("s_load_dwordx16 s[32:47], s[0:1], 0")
    g("s_load_dwordx2 s[56:57], s[0:1], 96")
    g("s_load_dwordx8 s[48:55], s[0:1], 64")
    g("v_lshrrev_b32 v1, 6, v0")
    g("v_and_b32 v0, 63, v0")
    g(f"v_readfirstlane_b32 s{sWAVE}, v1")
    g(f"s_and_b32 s{sX}, s2, 7")
    g(f"s_lshr_b32 s{sA_}, s2, 3")
    g(f"s_lshr_b32 s{sB}, s{sA_}, 2")
    g(f"s_and_b32 s{sSPLIT}, s{sA_}, 3")
    g(f"s_lshl_b32 s{sGRP}, s{sX}, 2")
    g(f"s_add_u32 s{sGRP}, s{sGRP}, s{sA_}")
    g(f"s_and_b32 s{sGRP}, s{sGRP}, 31")
    if dbg:
        for i in range(16): g(f"s_mov_b32 s{72+i}, 0")
    g.stamp(0)
    if dbg >= 2: g.stamp(14)
    if FFNONLY:
        g("s_sub_u32 s21, s2, 128")
        g("s_cmp_ge_u32 s21, 28")
        g("s_cbranch_scc1 L_end")
    g(f"s_cmp_lt_u32 s{sWAVE}, 4")
    g("s_cbranch_scc1 L_H")
    sSW = 29
    g(f"s_sub_u32 s{sSW}, s{sWAVE}, 4")

    vKoff, vVoff, vKrd, vVrd = 2, 6, 8, 12
    vM, vL = 20, 21
    vPop, vEnt = 22, 23
    vD = 24
    vP01 = 28
    vHeadA, vOne, vQa = 32, 33, 34
    vT = 36
    vF = 48
    vAcc = 80
    vQB = 112
    sT, sNext, sRK, sRV, sTmp, sCnt, sLog2e, sScale, sThr = 20, 21, 22, 23, 24, 25, 26, 27, 28
    sBase, sBaseB, sRK2, sRV2, sRK0, sPop, sSwd, sTmp2 = 58, 59, 60, 61, 62, 63, 30, 31
    g.c("---- S wave setup ----")
    g(f"s_lshl_b32 s{sRK}, s{sSW}, 15")
    g("v_and_b32 v44, 15, v0")
    g("v_lshrrev_b32 v45, 4, v0")
    g("v_lshrrev_b32 v118, 3, v0")
    g("v_and_b32 v113, 7, v0")
    g(f"s_cmp_ge_u32 s{sA_}, 8")
    g("s_cbranch_scc1 L_Snoq")
    g("v_lshlrev_b32 v112, 13, v118")
    g("v_lshl_add_u32 v112, v113, 4, v112")
    g(f"s_lshl_b32 s{sT}, s{sX}, 10")
    g(f"s_lshl_b32 s{sTmp}, s{sA_}, 7")
    g(f"s_add_u32 s{sT}, s{sT}, s{sTmp}")
    g(f"s_lshl_b32 s{sTmp}, s{sSW}, 20")
    g(f"s_add_u32 s{sT}, s{sT}, s{sTmp}")
    g(f"s_mov_b32 m0, s{sRK}")
    g("v_lshlrev_b32 v113, 10, v113")
    g("v_lshl_add_u32 v113, v45, 4, v113")
    g(f"s_lshl_b32 s{sTmp}, s{sSW}, 8")
    g("s_waitcnt lgkmcnt(0)")
    g.srd(sVs, P_X, 8192)
    g.srd(sKs, P_WQ, 512 * 4096 * 2)
    for i in range(4):
        g(f"buffer_load_dwordx4 {vr(96+4*i,4)}, v113, s[{sVs}:{sVs+3}], s{sTmp} offen offset:{i*64}")
    for i in range(16):
        g(f"buffer_load_dwordx4 v112, s[{sKs}:{sKs+3}], s{sT} offen {WPOL} lds")
        if i < 15:
            g(f"s_add_u32 m0, m0, 1024")
            g(f"s_add_u32 s{sT}, s{sT}, 65536")
    def prejob_addrs():
        g("v_lshrrev_b32 v114, 2, v44")
        g("v_lshl_add_u32 v114, v45, 3, v114")
        g("v_lshlrev_b32 v114, 7, v114")
        g("v_and_b32 v115, 3, v0")
        g("v_lshl_add_u32 v114, v115, 3, v114")
        g(f"v_add_u32 v114, s{sRK}, v114")
        g(f"s_lshl_b32 s{sTmp}, s{sSW}, 11")
        g(f"s_add_u32 s{sTmp}, s{sTmp}, {L_AST}")
        g("v_lshlrev_b32 v115, 8, v44")
        g("v_lshl_add_u32 v115, v45, 4, v115")
        g(f"v_add_u32 v115, s{sTmp}, v115")
        g(f"s_lshl_b32 s{sTmp}, s{sSW}, 2")
        g(f"s_add_u32 s{sTmp}, s{sTmp}, {L_FLAG}")
        g(f"v_mov_b32 v116, s{sTmp}")
        g("v_mov_b32 v117, 1")
        g("v_cmp_gt_u32 s[66:67], 8, v44")
        g.c("barrier 0: flags zeroed")
        g("s_barrier")
    def prejob_mm(nkb, xf, acc, after):
        for kb in range(nkb):
            fr = vF + 16 * (kb & 1)
            g(f"s_waitcnt vmcnt({4*(nkb-1-kb) + after})")
            for ct in range(4):
                g(f"ds_read_b64_tr_b16 {vr(fr+4*ct,2)}, v114 offset:{kb*4096 + ct*32}")
                g(f"ds_read_b64_tr_b16 {vr(fr+4*ct+2,2)}, v114 offset:{kb*4096 + ct*32 + 512}")
            g("s_waitcnt lgkmcnt(0)")
            for ct in range(4):
                srcc = "0" if kb == 0 else vr(acc+4*ct, 4)
                g(f"v_mfma_f32_16x16x32_bf16 {vr(acc+4*ct,4)}, {vr(fr+4*ct,4)}, {vr(xf+4*kb,4)}, {srcc}")
    def prejob_pub(acc):
        g("s_mov_b64 exec, s[66:67]")
        for ct in range(4):
            g(f"ds_write_b128 v115, {vr(acc+4*ct,4)} offset:{ct*64}")
        g("s_mov_b64 exec, 1")
        g("s_waitcnt lgkmcnt(0)")
        g("ds_write_b32 v116, v117")
        g("s_mov_b64 exec, -1")
    prejob_addrs()
    prejob_mm(4, 96, 80, 0)
    g.stamp(5)
    g("s_nop 7")
    g("s_nop 3")
    prejob_pub(80)
    g.stamp(6)
    if PWAIT:
        g(f"v_mov_b32 v116, {L_FLAG2}")
        g("s_mov_b32 s70, 0x4000")
        g.label("L_pw")
        g("ds_read_b32 v117, v116")
        g("s_sub_u32 s70, s70, 1")
        g("s_waitcnt lgkmcnt(0)")
        g("v_cmp_ne_u32 vcc, 1, v117")
        g("s_cbranch_vccz L_Sgo")
        g("s_cmp_lg_u32 s70, 0")
        g("s_cbranch_scc1 L_pw")
    g("s_branch L_Sgo")

    g.label("L_Snoq")
    sG = 21
    g(f"s_sub_u32 s{sG}, s2, 128")
    g(f"s_cmp_ge_u32 s{sG}, {0 if NOFFN else 28}")
    g("s_cbranch_scc1 L_Snof")
    g("s_movk_i32 s61, 3584")
    g("v_mul_u32_u24 v112, s61, v118")
    g("v_lshl_add_u32 v112, v113, 4, v112")
    g("v_lshlrev_b32 v119, 10, v118")
    g("v_lshl_add_u32 v119, v113, 4, v119")
    g("v_lshlrev_b32 v113, 10, v113")
    g("v_lshl_add_u32 v113, v45, 4, v113")
    g(f"s_and_b32 s{sTmp2}, s{sSW}, 1")
    g(f"s_mul_i32 s{sT}, s{sTmp2}, {256*3584}")
    g(f"s_lshl_b32 s{sTmp}, s{sG}, 7")
    g(f"s_add_u32 s{sT}, s{sT}, s{sTmp}")
    g(f"s_lshl_b32 s{sTmp}, s{sTmp2}, 9")
    g(f"s_mov_b32 m0, s{sRK}")
    if FDELAY:
        g(f"s_sleep {FDELAY}")
    g("s_waitcnt lgkmcnt(0)")
    g(f"s_load_dword s{sTag}, s[{P_WS}:{P_WS+1}], {WS_EPOCH}")
    g.srd(sVs, P_X, 8192)
    g(f"s_cmp_ge_u32 s{sSW}, 2")
    g(f"s_cselect_b32 s{sKs}, s{P_WU}, s{P_WG}")
    g(f"s_cselect_b32 s{sKs+1}, s{P_WU+1}, s{P_WG+1}")
    g(f"s_and_b32 s{sKs+1}, s{sKs+1}, 0xffff")
    g(f"s_mov_b32 s{sKs+2}, {512*1792*2:#x}")
    g(f"s_mov_b32 s{sKs+3}, 0x20000")
    XF = 4
    for i in range(8):
        g(f"buffer_load_dwordx4 {vr(XF+4*i,4)}, v113, s[{sVs}:{sVs+3}], s{sTmp} offen offset:{i*64}")
    for i in range(32):
        g(f"buffer_load_dwordx4 v112, s[{sKs}:{sKs+3}], s{sT} offen {WPOL} lds")
        if i < 31:
            g(f"s_add_u32 m0, m0, 1024")
            g(f"s_add_u32 s{sT}, s{sT}, {8*3584}")
    prejob_addrs()
    g.srd(sVs, P_WD, 1792 * 512 * 2)
    g.srd(sWSs, P_WS, WS_SIZE)
    for i in range(4):
        g(f"s_mov_b32 s{sSEL+i}, {0x07060500 | i:#x}")
    prejob_mm(8, XF, 80, 0)
    g.stamp(5)
    g(f"s_lshl_b32 s{sT}, s{sG}, 16")
    g(f"s_lshl_b32 s{sTmp}, s{sSW}, 8")
    g(f"s_add_u32 s{sT}, s{sT}, s{sTmp}")
    g(f"s_mov_b32 m0, s{sRK}")
    for i in range(16):
        g(f"s_add_u32 s{sTmp}, s{sT}, {(i & 7)*8192 + (i >> 3)*128}")
        g(f"buffer_load_dwordx4 v119, s[{sVs}:{sVs+3}], s{sTmp} offen {WPOL} lds")
        if i < 15:
            g(f"s_add_u32 m0, m0, 1024")
    prejob_pub(80)
    g("v_and_b32 v116, 3, v0")
    g("v_lshlrev_b32 v116, 2, v116")
    g(f"v_add_u32 v116, {L_FLAG}, v116")
    g("v_and_b32 v115, 7, v0")
    g("v_lshlrev_b32 v115, 8, v115")
    g("v_lshl_add_u32 v115, v45, 5, v115")
    g(f"v_add_u32 v115, {L_AST}, v115")
    g(f"s_add_u32 s{sTag}, s{sTag}, 1")
    g(f"v_mov_b32 v{vTag}, s{sTag}")
    g("s_mov_b32 s70, 0x40000")
    g.label("L_ff")
    g("ds_read_b32 v117, v116")
    g("s_sub_u32 s70, s70, 1")
    g("s_waitcnt lgkmcnt(0)")
    g("v_cmp_ne_u32 vcc, 1, v117")
    g("s_cbranch_vccz L_ffok")
    g("s_sleep 1")
    g("s_cmp_lg_u32 s70, 0")
    g("s_cbranch_scc1 L_ff")
    g.label("L_ffok")
    if FFNONLY: g.stamp(8)
    GA, UA, T = 4, 20, 80
    for w in range(4):
        dst = (GA, 48, UA, 64)[w]
        for q4 in range(4):
            g(f"ds_read_b128 {vr(dst+4*q4,4)}, v115 offset:{w*2048 + (q4>>1)*128 + (q4&1)*16}")
    g("s_waitcnt lgkmcnt(0)")
    for i in range(16):
        g(f"v_add_f32 v{GA+i}, v{GA+i}, v{48+i}")
        g(f"v_add_f32 v{UA+i}, v{UA+i}, v{64+i}")
    for i in range(8):
        g(f"v_cvt_pk_bf16_f32 v{48+i}, v{GA+2*i}, v{GA+2*i+1}")
        g(f"v_cvt_pk_bf16_f32 v{56+i}, v{UA+2*i}, v{UA+2*i+1}")
    for i in range(8):
        g(f"v_lshlrev_b32 v{GA+2*i}, 16, v{48+i}")
        g(f"v_and_b32 v{GA+2*i+1}, 0xffff0000, v{48+i}")
        g(f"v_lshlrev_b32 v{UA+2*i}, 16, v{56+i}")
        g(f"v_and_b32 v{UA+2*i+1}, 0xffff0000, v{56+i}")
    g("s_mov_b32 s61, 0x3d372713")
    g("s_mov_b32 s63, 0x40135761")
    for i in range(16):
        x = GA + i
        g(f"v_mul_f32 v{T+i}, v{x}, v{x}")
        g(f"v_mul_f32 v{T+i}, v{T+i}, v{x}")
        g(f"v_fma_f32 v{T+i}, v{T+i}, s61, v{x}")
        g(f"v_mul_f32 v{T+i}, s63, v{T+i}")
    for i in range(16):
        g(f"v_exp_f32 v{T+i}, v{T+i}")
    g("s_nop 0")
    for i in range(16):
        g(f"v_add_f32 v{T+i}, 1.0, v{T+i}")
    for i in range(16):
        g(f"v_rcp_f32 v{T+i}, v{T+i}")
    g("s_nop 0")
    for i in range(16):
        g(f"v_sub_f32 v{T+i}, 1.0, v{T+i}")
        g(f"v_mul_f32 v{T+i}, v{GA+i}, v{T+i}")
    for i in range(8):
        g(f"v_cvt_pk_bf16_f32 v{48+i}, v{T+2*i}, v{T+2*i+1}")
    for i in range(8):
        g(f"v_lshlrev_b32 v{T+2*i}, 16, v{48+i}")
        g(f"v_and_b32 v{T+2*i+1}, 0xffff0000, v{48+i}")
    for i in range(16):
        g(f"v_mul_f32 v{T+i}, v{T+i}, v{UA+i}")
    for i in range(8):
        g(f"v_cvt_pk_bf16_f32 v{4+i}, v{T+2*i}, v{T+2*i+1}")
    for t in range(4):
        cb2, kb = t >> 1, t & 1
        fr = vF + 16 * (t & 1)
        acc = 80 + 16 * cb2
        g(f"s_waitcnt vmcnt({4*(3-t)})")
        for ct in range(4):
            g(f"ds_read_b64_tr_b16 {vr(fr+4*ct,2)}, v114 offset:{t*4096 + ct*32}")
            g(f"ds_read_b64_tr_b16 {vr(fr+4*ct+2,2)}, v114 offset:{t*4096 + ct*32 + 512}")
        g("s_waitcnt lgkmcnt(0)")
        for ct in range(4):
            srcc = "0" if kb == 0 else vr(acc+4*ct, 4)
            g(f"v_mfma_f32_16x16x32_bf16 {vr(acc+4*ct,4)}, {vr(fr+4*ct,4)}, {vr(4+4*kb,4)}, {srcc}")
    g("v_lshlrev_b32 v112, 17, v44")
    g("v_lshl_add_u32 v112, v45, 4, v112")
    g(f"s_lshl_b32 s{sT}, s{sG}, 6")
    g(f"s_lshl_b32 s{sTmp}, s{sSW}, 13")
    g(f"s_add_u32 s{sT}, s{sT}, s{sTmp}")
    g(f"s_add_u32 s{sT}, s{sT}, {WS_PAB + 2048}")
    g("s_nop 7")
    g("s_nop 3")
    g("s_mov_b64 exec, s[66:67]")
    for cb2 in range(2):
        for ct in range(4):
            d = 80 + 16*cb2 + 4*ct
            for i in range(4):
                tagit(d+i, d+i, i)
            g(f"s_add_u32 s{sTmp}, s{sT}, {cb2*4096 + ct*32768}")
            g(f"buffer_store_dwordx4 {vr(d,4)}, v112, s[{sWSs}:{sWSs+3}], s{sTmp} offen sc1")
    g("s_mov_b64 exec, -1")
    if FFNONLY: g.stamp(7)
    g("s_waitcnt vmcnt(0)")
    g.stamp(6)
    g("s_branch L_fin" if FFNONLY else "s_branch L_Sgo")
    g.label("L_Snof")
    g(f"s_mov_b32 s{sSwd}, 0")
    if SDELAY:
        g(f"s_sleep {SDELAY}")
    g("s_branch L_Sgo2")
    g.label("L_Sgo")
    g(f"s_mov_b32 s{sSwd}, 1")
    g.label("L_Sgo2")
    if dbg >= 2: g.stamp(11)
    for i in range(4):
        g(f"v_add_u32 v46, {4*i}, v45")
        g("v_xor_b32 v46, v44, v46")
        g("v_lshlrev_b32 v46, 4, v46")
        g(f"v_lshl_add_u32 v{vKoff+i}, v45, 8, v46")
    g(f"s_mov_b32 s{sRK0}, s{sRK}")
    g(f"s_add_u32 s{sRV}, s{sRK}, 16384")
    g(f"s_add_u32 s{sRK2}, s{sRK}, 8192")
    g(f"s_add_u32 s{sRV2}, s{sRV}, 8192")
    g(f"s_lshl_b32 s{sBase}, s{sGRP}, 22")
    g(f"s_add_u32 s{sBaseB}, s{sBase}, 0x200000")
    g(f"s_lshl_b32 s{sTmp}, s{sX}, 2")
    g(f"s_add_u32 s{sTmp}, s{sTmp}, s{sSW}")
    g(f"s_lshl_b32 s{sTmp}, s{sTmp}, 13")
    g(f"s_add_u32 s{sT}, s{sBase}, s{sTmp}")
    USTR = 32 * 8192
    g("s_waitcnt lgkmcnt(0)")
    g.srd(sKs, P_K, 0x8000000)
    g.srd(sVs, P_V, 0x8000000)
    sT1, sNext1, sHalf, sNHalf = 32, 33, 34, 35
    vBlk1, vBias, vOA, vOB, vMLa, vDump = 114, 115, 116, 117, 118, 119

    def dma(i, sreg, imm, half_other, agpr=None):
        j = i & 1
        if agpr is None:
            base = (sRK2 if half_other else sRK) if i < 2 else (sRV2 if half_other else sRV)
            g(f"s_add_u32 m0, s{base}, {j*4096}")
        g(f"s_add_u32 s{sTmp}, s{sreg}, {imm}")
        for k in range(4):
            vo = vKoff + k if i < 2 else vVoff + (k & 1)
            srd = sKs if i < 2 else sVs
            pol = KPOL if i < 2 else VPOL
            if agpr is None:
                g(f"buffer_load_dwordx4 v{vo}, s[{srd}:{srd+3}], s{sTmp} offen offset:{k*1024} {pol} lds")
            else:
                g(f"buffer_load_dwordx4 {ar(agpr+4*k,4)}, v{vo}, s[{srd}:{srd+3}], s{sTmp} offen offset:{k*1024} {pol}")
    def headB(n):
        u, i = n >> 2, n & 3
        dma(i, sT, u*USTR + (i & 1)*4096, u == 1, agpr=(64 + 16*i) if u == 2 else None)
    for i in range(2):
        headB(i)
    if dbg >= 2: g.stamp(7)
    g(f"s_load_dword s{sTag}, s[{P_WS}:{P_WS+1}], {WS_EPOCH}")
    g(f"s_cmp_eq_u32 s{sSwd}, 1")
    g("s_cbranch_scc1 L_Snb0")
    g.c("barrier 0")
    g("s_barrier")
    g.label("L_Snb0")
    for i in range(2):
        g(f"v_add_u32 v46, {4*i}, v45")
        g("v_lshlrev_b32 v46, 1, v46")
        g("v_xor_b32 v46, v44, v46")
        g("v_lshlrev_b32 v46, 4, v46")
        g(f"v_lshl_add_u32 v{vVoff+i}, v45, 8, v46")
    for i in range(2, HPD):
        headB(i)
    g.srd(sWSs, P_WS, WS_SIZE)
    for c in range(4):
        g(f"v_add_u32 v46, {4*c}, v45")
        g("v_xor_b32 v46, v44, v46")
        g("v_lshlrev_b32 v46, 4, v46")
        g("v_lshl_add_u32 v46, v44, 8, v46")
        g(f"v_add_u32 v{vKrd+c}, s{sRK}, v46")
    g("v_lshrrev_b32 v46, 2, v0")
    g("v_and_b32 v47, 7, v46")
    g("v_lshlrev_b32 v46, 8, v46")
    g("v_and_b32 v43, 3, v0")
    g("v_lshl_add_u32 v46, v43, 3, v46")
    g(f"v_add_u32 v46, s{sRV}, v46")
    for db in range(8):
        g(f"v_xor_b32 v43, {db}, v47")
        g(f"v_lshl_add_u32 v{vVrd+db}, v43, 5, v46")
    g("v_and_b32 v43, 3, v0")
    g("v_lshlrev_b32 v43, 8, v43")
    g("v_lshl_add_u32 v43, v45, 4, v43")
    g(f"v_add_u32 v43, {L_QBUF}, v43")
    g(f"v_add_u32 v40, 1024, v43")
    g("v_bfe_u32 v42, v0, 2, 1")
    g(f"v_mov_b32 v41, {L_ZERO}")
    g(f"v_mov_b32 v{vM}, {MINIT:#x}")
    for j in range(2):
        g(f"v_cmp_eq_u32 vcc, {j}, v42")
        g("s_nop 1")
        g(f"v_cndmask_b32 v{vT+j}, v41, v43, vcc")
        g(f"v_cndmask_b32 v{vQB+j}, v41, v40, vcc")
        if j == 1:
            g(f"v_cndmask_b32 v{vBlk1}, 0, v{vM}, vcc")
    g(f"v_mov_b32 v{vL}, 0")
    g(f"v_mov_b32 v{vBias}, 0")
    if dbg >= 2: g("v_mov_b32 v120, 0")
    g(f"v_mov_b32 v{vHeadA}, {L_HEAD}")
    g(f"v_mov_b32 v{vOne}, 1")
    for i in range(32):
        g(f"v_mov_b32 v{vAcc+i}, 0")
    g("v_lshlrev_b32 v46, 9, v44")
    g("v_lshl_add_u32 v46, v45, 4, v46")
    g(f"v_add_u32 v{vOB}, s{sRK0}, v46")
    g(f"s_lshl_b32 s{sTmp}, s{sSW}, 11")
    g(f"s_add_u32 s{sTmp}, s{sTmp}, {L_AST}")
    g(f"v_add_u32 v{vOA}, s{sTmp}, v46")
    g(f"s_lshl_b32 s{sTmp}, s{sSW}, 5")
    g(f"s_add_u32 s{sTmp}, s{sTmp}, {L_ML}")
    g(f"v_lshl_add_u32 v{vMLa}, v44, 3, s{sTmp}")
    g("v_cmp_gt_u32 s[36:37], 4, v44")
    g(f"v_lshl_add_u32 v{vDump}, v0, 4, s{sRK0}")
    g(f"s_mov_b32 s{sLog2e}, 0x3fb8aa3b")
    g(f"s_mov_b32 s{sScale}, 0x3db504f3")
    g(f"s_mov_b32 s{sThr}, 0x41000000")
    g(f"s_mov_b32 s{sCnt}, 3")
    g(f"s_mov_b32 s{sSwd}, 0")
    g(f"s_mov_b32 s{sHalf}, 1")
    for i in range(4):
        g(f"s_mov_b32 s{sSEL+i}, {0x07060500 | i:#x}")
    g("s_mov_b32 s64, 0x0c0c0400")
    g("s_mov_b32 s65, 0x04000c0c")
    g(f"v_mov_b32 v47, {L_FLAG3}")
    for i in range(max(HPD, 2), 12):
        g(f"s_waitcnt vmcnt({4*((HPD if i < HSW else HPD2)-1)})")
        headB(i)
        if dbg >= 2:
            g("s_memrealtime s[90:91]")
            g("s_waitcnt lgkmcnt(0)")
            g(f"v_writelane_b32 v120, s90, {40+i}")
    g("s_waitcnt lgkmcnt(0)")
    g(f"s_add_u32 s{sTag}, s{sTag}, 1")
    g(f"v_mov_b32 v{vTag}, s{sTag}")
    g.stamp(1)
    g("s_mov_b32 s70, 0x100000")
    g.label("L_wq")
    g("ds_read_b32 v46, v47")
    g("s_sub_u32 s70, s70, 1")
    g("s_waitcnt lgkmcnt(0)")
    g("v_cmp_ne_u32 vcc, 1, v46")
    g("s_cbranch_vccz L_wqok")
    g("s_sleep 1")
    g("s_cmp_lg_u32 s70, 0")
    g("s_cbranch_scc1 L_wq")
    g.label("L_wqok")
    g.stamp(2)
    for j in range(2):
        for c in range(4):
            g(f"ds_read_b128 {ar(16*j+4*c,4)}, v{vT+j} offset:{c*64}")
    g(f"s_add_u32 s{sNext}, s{sT}, {3*USTR}")
    g("s_waitcnt lgkmcnt(0)")

    def rescale_code():
        g(f"v_mul_f32 v{vT+6}, s{sLog2e}, v{vT+6}")
        g("s_nop 1")
        g(f"v_max_f32_dpp v{vT+7}, v{vT+6}, v{vT+6} row_ror:4 row_mask:0xf bank_mask:0xf")
        g(f"v_mov_b32 v{vT+6}, v{vT+7}")
        g("s_nop 1")
        g(f"v_permlane16_swap_b32 v{vT+6}, v{vT+7}")
        g(f"v_max_f32 v{vT+6}, v{vT+6}, v{vT+7}")
        g(f"v_mov_b32 v{vT+7}, v{vT+6}")
        g("s_nop 1")
        g(f"v_permlane32_swap_b32 v{vT+6}, v{vT+7}")
        g(f"v_max3_f32 v{vT+6}, v{vT+6}, v{vT+7}, v{vM}")
        g(f"v_sub_f32 v{vT+7}, v{vM}, v{vT+6}")
        g(f"v_exp_f32 v{vT+7}, v{vT+7}")
        g(f"v_mov_b32 v{vM}, v{vT+6}")
        g(f"v_mul_f32 v{vL}, v{vL}, v{vT+7}")
        for i in range(32):
            g(f"v_mul_f32 v{vAcc+i}, v{vAcc+i}, v{vT+7}")

    def body(it):
        W = {0: (44, 40, 36, 32), 1: (28, 24, 20, 20), 2: (None,)*4, 3: (8, 8, 8, 8), 4: (None, None, 20, 16)}[it]
        def wait(s_):
            if W[s_] is not None: g(f"s_waitcnt vmcnt({W[s_]})")
        if it == 4:
            g.label('L_burst')
            dma(0, sNext, 0, True)
            dma(1, sNext1, 0, True)
            dma(2, sNext, 0, True)
            dma(3, sNext1, 0, True)
        else:
            wait(0)
            for c in range(4):
                g(f"ds_read_b128 {vr(vF+4*c,4)}, v{vKrd+c}")
            if it == 3:
                g(f"ds_read_b32 v{vEnt}, v{vQa}")
                g(f"s_cmp_eq_u32 s{sHalf}, 1")
                g("s_cbranch_scc1 L_skip0")
                dma(3, sT1, 0, False)
                g.label("L_skip0")
            elif it == 2:
                dma(2, sNext, 0, True)
            g("s_waitcnt lgkmcnt(0)")
            for c in range(4):
                srcc = "0" if c == 0 else vr(vD, 4)
                g(f"v_mfma_f32_16x16x32_bf16 {vr(vD,4)}, {vr(vF+4*c,4)}, {ar(4*c,4)}, {srcc}")
            wait(1)
            for c in range(4):
                g(f"ds_read_b128 {vr(vF+16+4*c,4)}, v{vKrd+c} offset:4096")
            if it == 3:
                g(f"v_readfirstlane_b32 s{sTmp}, v{vEnt}")
                g(f"s_lshr_b32 s{sTmp2}, s{sPop}, 5")
                g(f"s_add_u32 s{sTmp2}, s{sTmp2}, 1")
                g(f"s_lshr_b32 s{sNext}, s{sTmp}, 16")
                g(f"s_cmp_lg_u32 s{sNext}, s{sTmp2}")
                g("s_cbranch_scc1 L_qwait")
                g.label("L_qgo")
                g(f"s_and_b32 s{sTmp}, s{sTmp}, 0xffff")
                g(f"s_min_u32 s{sTmp2}, s{sTmp}, {U0}")
                g(f"s_add_u32 s{sTmp2}, s{sTmp2}, s{sTmp}")
                g(f"s_lshl_b32 s{sNext}, s{sTmp2}, 12")
                g(f"s_add_u32 s{sNext}, s{sNext}, s{sBase}")
                g(f"s_add_u32 s{sNext1}, s{sNext}, 4096")
                g(f"s_cmp_lt_u32 s{sTmp}, {U0}")
                g(f"s_cselect_b32 s{sNext1}, s{sNext1}, 0x80000000")
                g(f"s_cselect_b32 s{sNHalf}, 0, -1")
                g(f"s_cmp_lt_u32 s{sTmp}, {NU}")
                g(f"s_cselect_b32 s{sNext}, s{sNext}, 0x80000000")
                if BURST < 1000:
                    g(f"s_cmp_ge_u32 s{sTmp}, {BURST}")
                    g("s_cbranch_scc1 L_burst")
                dma(0, sNext, 0, True)
            elif it == 2:
                dma(3, sNext, 4096, True)
        g("s_waitcnt lgkmcnt(0)")
        for c in range(4):
            g(f"v_mfma_f32_16x16x32_bf16 {vr(vD,4)}, {vr(vF+16+4*c,4)}, {ar(16+4*c,4)}, {vr(vD,4)}")
        wait(2)
        for db in range(8):
            g(f"ds_read_b64_tr_b16 {vr(vF+4*db,2)}, v{vVrd+db}")
        if it == 3:
            dma(1, sNext1, 0, True)
        elif it == 1:
            dma(0, sNext, 0, False)
        else:
            g("s_nop 7")
        e = vT
        g(f"v_cvt_pk_bf16_f32 v{vT+4}, v{vD}, v{vD+1}")
        g(f"v_cvt_pk_bf16_f32 v{vT+5}, v{vD+2}, v{vD+3}")
        g(f"v_lshlrev_b32 v{e}, 16, v{vT+4}")
        g(f"v_and_b32 v{e+1}, 0xffff0000, v{vT+4}")
        g(f"v_lshlrev_b32 v{e+2}, 16, v{vT+5}")
        g(f"v_and_b32 v{e+3}, 0xffff0000, v{vT+5}")
        for i in range(4):
            if it >= 3 and U0 < 512:
                g(f"v_fma_f32 v{e+i}, s{sScale}, v{e+i}, v{vBias}")
            else:
                g(f"v_mul_f32 v{e+i}, s{sScale}, v{e+i}")
        g(f"v_cvt_pk_bf16_f32 v{vT+4}, v{e}, v{e+1}")
        g(f"v_cvt_pk_bf16_f32 v{vT+5}, v{e+2}, v{e+3}")
        g(f"v_lshlrev_b32 v{e}, 16, v{vT+4}")
        g(f"v_and_b32 v{e+1}, 0xffff0000, v{vT+4}")
        g(f"v_lshlrev_b32 v{e+2}, 16, v{vT+5}")
        g(f"v_and_b32 v{e+3}, 0xffff0000, v{vT+5}")
        g(f"v_max3_f32 v{vT+6}, v{e}, v{e+1}, v{e+2}")
        g(f"v_max_f32 v{vT+6}, v{vT+6}, v{e+3}")
        if it >= 3:
            g(f"v_fma_f32 v{vT+7}, v{vT+6}, s{sLog2e}, -v{vM}")
            g(f"v_cmp_lt_f32 vcc, s{sThr}, v{vT+7}")
            g(f"s_cbranch_vccnz L_rescale{it}")
            g.label(f"L_back{it}")
        else:
            rescale_code()
        for i in range(4):
            g(f"v_fma_f32 v{e+i}, v{e+i}, s{sLog2e}, -v{vM}")
        for i in range(4):
            g(f"v_exp_f32 v{e+i}, v{e+i}")
        g("s_nop 0")
        g(f"v_cvt_pk_bf16_f32 v{vP01}, v{e}, v{e+1}")
        g(f"v_cvt_pk_bf16_f32 v{vP01+1}, v{e+2}, v{e+3}")
        g(f"v_add_f32 v{vT+4}, v{e}, v{e+1}")
        g(f"v_add_f32 v{vT+5}, v{e+2}, v{e+3}")
        g(f"v_mov_b32_dpp v{vP01+2}, v{vP01} row_ror:12 row_mask:0xf bank_mask:0xf")
        g(f"v_mov_b32_dpp v{vP01+3}, v{vP01+1} row_ror:12 row_mask:0xf bank_mask:0xf")
        g(f"v_add_f32 v{vT+4}, v{vT+4}, v{vT+5}")
        g(f"v_add_f32 v{vL}, v{vL}, v{vT+4}")
        wait(3)
        for db in range(8):
            g(f"ds_read_b64_tr_b16 {vr(vF+4*db+2,2)}, v{vVrd+db} offset:4096")
        if it >= 2:
            g("s_mov_b64 exec, 1")
            g(f"ds_add_rtn_u32 v{vPop}, v{vHeadA}, v{vOne}")
            g("s_mov_b64 exec, -1")
        if it == 3:
            dma(2, sNext, 0, True)
        elif it == 1:
            dma(1, sNext, 4096, False)
        for i in range(12):
            g(f"v_xor_b32 v{vKrd+i}, 0x2000, v{vKrd+i}")
        for r_ in (sRK, sRV, sRK2, sRV2):
            g(f"s_xor_b32 s{r_}, s{r_}, 0x2000")
        if dbg >= 2: g("s_memrealtime s[90:91]")
        g("s_waitcnt lgkmcnt(0)")
        if dbg >= 2:
            if it < 3: g(f"v_writelane_b32 v120, s90, {it}")
            else:
                g(f"s_mov_b32 m0, s{sCnt}")
                g(f"v_writelane_b32 v120, s90, m0")
        for db in range(8):
            g(f"v_mfma_f32_16x16x32_bf16 {vr(vAcc+4*db,4)}, {vr(vF+4*db,4)}, {vr(vP01,4)}, {vr(vAcc+4*db,4)}")
        if it == 1:
            g("s_waitcnt vmcnt(8)")
            for i in range(4):
                for k in range(4):
                    off = (0 if i < 2 else 16384) + (i & 1)*4096 + k*1024
                    g(f"ds_write_b128 v{vDump}, {ar(64+16*i+4*k,4)} offset:{off}")
            g("s_waitcnt lgkmcnt(0)")
        if it >= 2:
            g(f"v_readfirstlane_b32 s{sPop}, v{vPop}")
            g(f"s_mov_b32 s{sT}, s{sNext}")
            g(f"s_and_b32 s{sTmp}, s{sPop}, 31")
            g(f"s_lshl2_add_u32 s{sTmp}, s{sTmp}, {L_Q}")
            g(f"v_mov_b32 v{vQa}, s{sTmp}")
        if it >= 3:
            g(f"s_mov_b32 s{sT1}, s{sNext1}")
            if U0 < 512:
                g(f"v_and_b32 v{vBias}, s{sNHalf}, v{vBlk1}")
            g(f"s_mov_b32 s{sHalf}, {it - 3}")

    def decode(lbl):
        g(f"v_readfirstlane_b32 s{sTmp}, v{vEnt}")
        g(f"s_lshr_b32 s{sTmp2}, s{sPop}, 5")
        g(f"s_add_u32 s{sTmp2}, s{sTmp2}, 1")
        g(f"s_lshr_b32 s{sNext}, s{sTmp}, 16")
        g(f"s_cmp_lg_u32 s{sNext}, s{sTmp2}")
        g("s_cbranch_scc1 L_qwait")
        g.label("L_qgo")
        g(f"s_and_b32 s{sTmp}, s{sTmp}, 0xffff")
        g(f"s_lshl_b32 s{sNext}, s{sTmp}, 13")
        g(f"s_add_u32 s{sNext}, s{sNext}, s{sBase}")
        g(f"s_cmp_lt_u32 s{sTmp}, 512")
        g(f"s_cselect_b32 s{sNext}, s{sNext}, 0x80000000")

    def body4(it):
        W = {0: (44, 40, 36, 32), 1: (28, 24, 20, 20), 2: (None,)*4, 3: (12, 12, 12, 12)}[it]
        def wait(s_):
            if W[s_] is not None: g(f"s_waitcnt vmcnt({W[s_]})")
        if it == 3:
            decode("")
        wait(0)
        for c in range(4):
            g(f"ds_read_b128 {vr(vF+4*c,4)}, v{vKrd+c}")
        if it == 3:
            dma(0, sNext, 0, True)
        elif it == 2:
            dma(2, sNext, 0, True)
        g("s_waitcnt lgkmcnt(0)")
        for c in range(4):
            srcc = "0" if c == 0 else vr(vD, 4)
            g(f"v_mfma_f32_16x16x32_bf16 {vr(vD,4)}, {vr(vF+4*c,4)}, {ar(4*c,4)}, {srcc}")
        wait(1)
        for c in range(4):
            g(f"ds_read_b128 {vr(vF+16+4*c,4)}, v{vKrd+c} offset:4096")
        if it >= 2 and POPS == 1:
            g("s_mov_b64 exec, 1")
            g(f"ds_add_rtn_u32 v{vPop}, v{vHeadA}, v{vOne}")
            g("s_mov_b64 exec, -1")
        if it == 3:
            dma(1, sNext, 4096, True)
        elif it == 2:
            dma(3, sNext, 4096, True)
        g("s_waitcnt lgkmcnt(0)")
        for c in range(4):
            g(f"v_mfma_f32_16x16x32_bf16 {vr(vD,4)}, {vr(vF+16+4*c,4)}, {ar(16+4*c,4)}, {vr(vD,4)}")
        def popaddr():
            g(f"v_readfirstlane_b32 s{sPop}, v{vPop}")
            g(f"s_and_b32 s{sTmp}, s{sPop}, 31")
            g(f"s_lshl2_add_u32 s{sTmp}, s{sTmp}, {L_Q}")
            g(f"v_mov_b32 v{vQa}, s{sTmp}")
        if it >= 2 and POPS == 1:
            popaddr()
        wait(2)
        if it >= 2 and POPS == 2:
            g("s_mov_b64 exec, 1")
            g(f"ds_add_rtn_u32 v{vPop}, v{vHeadA}, v{vOne}")
            g("s_mov_b64 exec, -1")
        for db in range(8):
            g(f"ds_read_b64_tr_b16 {vr(vF+4*db,2)}, v{vVrd+db}")
        if it == 3:
            dma(2, sNext, 0, True)
        elif it == 1:
            dma(0, sNext, 0, False)
        else:
            g("s_nop 7")
        e = vT
        g(f"v_cvt_pk_bf16_f32 v{vT+4}, v{vD}, v{vD+1}")
        g(f"v_cvt_pk_bf16_f32 v{vT+5}, v{vD+2}, v{vD+3}")
        g(f"v_lshlrev_b32 v{e}, 16, v{vT+4}")
        g(f"v_and_b32 v{e+1}, 0xffff0000, v{vT+4}")
        g(f"v_lshlrev_b32 v{e+2}, 16, v{vT+5}")
        g(f"v_and_b32 v{e+3}, 0xffff0000, v{vT+5}")
        for i in range(4):
            g(f"v_mul_f32 v{e+i}, s{sScale}, v{e+i}")
        g(f"v_cvt_pk_bf16_f32 v{vT+4}, v{e}, v{e+1}")
        g(f"v_cvt_pk_bf16_f32 v{vT+5}, v{e+2}, v{e+3}")
        g(f"v_lshlrev_b32 v{e}, 16, v{vT+4}")
        g(f"v_and_b32 v{e+1}, 0xffff0000, v{vT+4}")
        g(f"v_lshlrev_b32 v{e+2}, 16, v{vT+5}")
        g(f"v_and_b32 v{e+3}, 0xffff0000, v{vT+5}")
        g(f"v_max3_f32 v{vT+6}, v{e}, v{e+1}, v{e+2}")
        g(f"v_max_f32 v{vT+6}, v{vT+6}, v{e+3}")
        if it == 3:
            g(f"v_fma_f32 v{vT+7}, v{vT+6}, s{sLog2e}, -v{vM}")
            g(f"v_cmp_lt_f32 vcc, s{sThr}, v{vT+7}")
            g("s_cbranch_vccnz L_rescale")
            g.label("L_back")
        else:
            rescale_code()
        for i in range(4):
            g(f"v_fma_f32 v{e+i}, v{e+i}, s{sLog2e}, -v{vM}")
        for i in range(4):
            g(f"v_exp_f32 v{e+i}, v{e+i}")
        if it >= 2 and POPS == 2:
            g("s_waitcnt lgkmcnt(8)")
            popaddr()
        else:
            g("s_nop 0")
        g(f"v_cvt_pk_bf16_f32 v{vP01}, v{e}, v{e+1}")
        g(f"v_cvt_pk_bf16_f32 v{vP01+1}, v{e+2}, v{e+3}")
        g(f"v_add_f32 v{vT+4}, v{e}, v{e+1}")
        g(f"v_add_f32 v{vT+5}, v{e+2}, v{e+3}")
        g(f"v_mov_b32_dpp v{vP01+2}, v{vP01} row_ror:12 row_mask:0xf bank_mask:0xf")
        g(f"v_mov_b32_dpp v{vP01+3}, v{vP01+1} row_ror:12 row_mask:0xf bank_mask:0xf")
        g(f"v_add_f32 v{vT+4}, v{vT+4}, v{vT+5}")
        g(f"v_add_f32 v{vL}, v{vL}, v{vT+4}")
        wait(3)
        for db in range(8):
            g(f"ds_read_b64_tr_b16 {vr(vF+4*db+2,2)}, v{vVrd+db} offset:4096")
        if it >= 2:
            g(f"ds_read_b32 v{vEnt}, v{vQa}")
        if it == 3:
            dma(3, sNext, 4096, True)
        elif it == 1:
            dma(1, sNext, 4096, False)
        for i in range(12):
            g(f"v_xor_b32 v{vKrd+i}, 0x2000, v{vKrd+i}")
        for r_ in (sRK, sRV, sRK2, sRV2):
            g(f"s_xor_b32 s{r_}, s{r_}, 0x2000")
        if dbg >= 2: g("s_memrealtime s[90:91]")
        g("s_waitcnt lgkmcnt(0)")
        if dbg >= 2:
            if it < 3: g(f"v_writelane_b32 v120, s90, {it}")
            else:
                g(f"s_mov_b32 m0, s{sCnt}")
                g(f"v_writelane_b32 v120, s90, m0")
        for db in range(8):
            g(f"v_mfma_f32_16x16x32_bf16 {vr(vAcc+4*db,4)}, {vr(vF+4*db,4)}, {vr(vP01,4)}, {vr(vAcc+4*db,4)}")
        if it == 1:
            g("s_waitcnt vmcnt(8)")
            for i in range(4):
                for k in range(4):
                    off = (0 if i < 2 else 16384) + (i & 1)*4096 + k*1024
                    g(f"ds_write_b128 v{vDump}, {ar(64+16*i+4*k,4)} offset:{off}")
            g("s_waitcnt lgkmcnt(0)")
        if it >= 2:
            g(f"s_mov_b32 s{sT}, s{sNext}")
    def body2(it):
        W = {0: (44, 40, 36, 32), 1: (28, 24, 20, 20), 2: (None,)*4, 3: ((4, 8, 4, 8) if PD4 == 3 else (W2, W2, W2, W2))}[it]
        def wait(s_):
            if W[s_] is not None: g(f"s_waitcnt vmcnt({W[s_]})")
        wait(0)
        for c in range(4):
            g(f"ds_read_b128 {vr(vF+4*c,4)}, v{vKrd+c}")
        if it == 3:
            g("s_mov_b64 exec, 1")
            g(f"ds_add_rtn_u32 v{vPop}, v{vHeadA}, v{vOne}")
            g("s_mov_b64 exec, -1")
            g(f"s_cmp_eq_u32 s{sHalf}, 1")
            g("s_cbranch_scc1 L_skip0")
            dma(2, sT, 0, False)
            if PD4 == 3:
                dma(3, sT, 4096, False)
            g.label("L_skip0")
        elif it == 2:
            dma(2, sNext, 0, True)
        g("s_waitcnt lgkmcnt(0)")
        if it == 3:
            g(f"v_readfirstlane_b32 s{sPop}, v{vPop}")
            g(f"s_and_b32 s{sTmp}, s{sPop}, 31")
            g(f"s_lshl2_add_u32 s{sTmp}, s{sTmp}, {L_Q}")
            g(f"v_mov_b32 v{vQa}, s{sTmp}")
        for c in range(4):
            srcc = "0" if c == 0 else vr(vD, 4)
            g(f"v_mfma_f32_16x16x32_bf16 {vr(vD,4)}, {vr(vF+4*c,4)}, {ar(4*c,4)}, {srcc}")
        wait(1)
        for c in range(4):
            g(f"ds_read_b128 {vr(vF+16+4*c,4)}, v{vKrd+c} offset:4096")
        if it == 3:
            g(f"ds_read_b32 v{vEnt}, v{vQa}")
            if PD4 != 3:
                g(f"s_cmp_eq_u32 s{sHalf}, 1")
                g("s_cbranch_scc1 L_skip1")
                dma(3, sT, 4096, False)
                g.label("L_skip1")
        elif it == 2:
            dma(3, sNext, 4096, True)
        g("s_waitcnt lgkmcnt(0)")
        for c in range(4):
            g(f"v_mfma_f32_16x16x32_bf16 {vr(vD,4)}, {vr(vF+16+4*c,4)}, {ar(16+4*c,4)}, {vr(vD,4)}")
        def popaddr():
            g(f"v_readfirstlane_b32 s{sPop}, v{vPop}")
            g(f"s_and_b32 s{sTmp}, s{sPop}, 31")
            g(f"s_lshl2_add_u32 s{sTmp}, s{sTmp}, {L_Q}")
            g(f"v_mov_b32 v{vQa}, s{sTmp}")
        wait(2)
        for db in range(8):
            g(f"ds_read_b64_tr_b16 {vr(vF+4*db,2)}, v{vVrd+db}")
        if it == 3:
            decode("")
            if BURST < 1000:
                g(f"s_cmp_ge_u32 s{sTmp}, {BURST}")
                g(f"s_cselect_b32 s{sHalf}, 1, 0")
            dma(0, sNext, 0, True)
            if PD4 == 3:
                dma(1, sNext, 4096, True)
            if BURST < 1000:
                g(f"s_cmp_eq_u32 s{sHalf}, 0")
                g("s_cbranch_scc1 L_nb2")
                dma(1, sNext, 4096, True)
                dma(2, sNext, 0, True)
                dma(3, sNext, 4096, True)
                g.label("L_nb2")
        elif it == 1:
            dma(0, sNext, 0, False)
        else:
            g("s_nop 7")
        e = vT
        g(f"v_cvt_pk_bf16_f32 v{vT+4}, v{vD}, v{vD+1}")
        g(f"v_cvt_pk_bf16_f32 v{vT+5}, v{vD+2}, v{vD+3}")
        g(f"v_lshlrev_b32 v{e}, 16, v{vT+4}")
        g(f"v_and_b32 v{e+1}, 0xffff0000, v{vT+4}")
        g(f"v_lshlrev_b32 v{e+2}, 16, v{vT+5}")
        g(f"v_and_b32 v{e+3}, 0xffff0000, v{vT+5}")
        for i in range(4):
            g(f"v_mul_f32 v{e+i}, s{sScale}, v{e+i}")
        g(f"v_cvt_pk_bf16_f32 v{vT+4}, v{e}, v{e+1}")
        g(f"v_cvt_pk_bf16_f32 v{vT+5}, v{e+2}, v{e+3}")
        g(f"v_lshlrev_b32 v{e}, 16, v{vT+4}")
        g(f"v_and_b32 v{e+1}, 0xffff0000, v{vT+4}")
        g(f"v_lshlrev_b32 v{e+2}, 16, v{vT+5}")
        g(f"v_and_b32 v{e+3}, 0xffff0000, v{vT+5}")
        g(f"v_max3_f32 v{vT+6}, v{e}, v{e+1}, v{e+2}")
        g(f"v_max_f32 v{vT+6}, v{vT+6}, v{e+3}")
        if it == 3:
            g(f"v_fma_f32 v{vT+7}, v{vT+6}, s{sLog2e}, -v{vM}")
            g(f"v_cmp_lt_f32 vcc, s{sThr}, v{vT+7}")
            g("s_cbranch_vccnz L_rescale")
            g.label("L_back")
        else:
            rescale_code()
        for i in range(4):
            g(f"v_fma_f32 v{e+i}, v{e+i}, s{sLog2e}, -v{vM}")
        for i in range(4):
            g(f"v_exp_f32 v{e+i}, v{e+i}")
        g("s_nop 0")
        g(f"v_cvt_pk_bf16_f32 v{vP01}, v{e}, v{e+1}")
        g(f"v_cvt_pk_bf16_f32 v{vP01+1}, v{e+2}, v{e+3}")
        g(f"v_add_f32 v{vT+4}, v{e}, v{e+1}")
        g(f"v_add_f32 v{vT+5}, v{e+2}, v{e+3}")
        g(f"v_mov_b32_dpp v{vP01+2}, v{vP01} row_ror:12 row_mask:0xf bank_mask:0xf")
        g(f"v_mov_b32_dpp v{vP01+3}, v{vP01+1} row_ror:12 row_mask:0xf bank_mask:0xf")
        g(f"v_add_f32 v{vT+4}, v{vT+4}, v{vT+5}")
        g(f"v_add_f32 v{vL}, v{vL}, v{vT+4}")
        if it == 3 and BURST < 1000:
            g(f"s_cmp_eq_u32 s{sHalf}, 1")
            g("s_cbranch_scc1 L_b3")
        wait(3)
        if it == 3 and BURST < 1000:
            g.label("L_b3")
            g("s_waitcnt vmcnt(16)")
        for db in range(8):
            g(f"ds_read_b64_tr_b16 {vr(vF+4*db+2,2)}, v{vVrd+db} offset:4096")
        if it == 3 and PD4 == 3:
            pass
        elif it == 3:
            if BURST < 1000:
                g("s_cbranch_scc1 L_nb3")
            dma(1, sNext, 4096, True)
            g.label("L_nb3")
        elif it == 1:
            dma(1, sNext, 4096, False)
        for i in range(12):
            g(f"v_xor_b32 v{vKrd+i}, 0x2000, v{vKrd+i}")
        for r_ in (sRK, sRV, sRK2, sRV2):
            g(f"s_xor_b32 s{r_}, s{r_}, 0x2000")
        if dbg >= 2: g("s_memrealtime s[90:91]")
        g("s_waitcnt lgkmcnt(0)")
        if dbg >= 2:
            if it < 3: g(f"v_writelane_b32 v120, s90, {it}")
            else:
                g(f"s_mov_b32 m0, s{sCnt}")
                g(f"v_writelane_b32 v120, s90, m0")
        for db in range(8):
            g(f"v_mfma_f32_16x16x32_bf16 {vr(vAcc+4*db,4)}, {vr(vF+4*db,4)}, {vr(vP01,4)}, {vr(vAcc+4*db,4)}")
        if it == 1:
            g("s_waitcnt vmcnt(8)")
            for i in range(4):
                for k in range(4):
                    off = (0 if i < 2 else 16384) + (i & 1)*4096 + k*1024
                    g(f"ds_write_b128 v{vDump}, {ar(64+16*i+4*k,4)} offset:{off}")
            g("s_waitcnt lgkmcnt(0)")
        if it >= 2:
            g(f"s_mov_b32 s{sT}, s{sNext}")
        if it == 3 and BURST >= 1000:
            g(f"s_mov_b32 s{sHalf}, 0")
    if PD4:
        assert U0 == 512
        body = body4 if PD4 == 1 else body2

    body(0)
    body(1)
    body(2)
    g.label("L_unit")
    body(3)
    g.label("L_uend")
    g(f"s_add_u32 s{sCnt}, s{sCnt}, 1")
    g(f"s_cmp_lt_u32 s{sT}, s{sBaseB}")
    g("s_cbranch_scc1 L_unit")
    g(f"s_cmp_eq_u32 s{sSwd}, 0")
    g("s_cbranch_scc1 L_switch")
    g.label("L_after_switch")
    g(f"s_cmp_lt_u32 s{sT}, 0x80000000")
    g("s_cbranch_scc1 L_unit")
    g("s_branch L_Sdone")

    g.label("L_qwait")
    g("s_mov_b32 s70, 0x40000")
    g.label("L_qw1")
    if dbg: g("s_add_u32 s84, s84, 1")
    g("s_sleep 1")
    g(f"ds_read_b32 v{vEnt}, v{vQa}")
    g("s_waitcnt lgkmcnt(0)")
    g(f"v_readfirstlane_b32 s{sTmp}, v{vEnt}")
    g("s_sub_u32 s70, s70, 1")
    g(f"s_lshr_b32 s{sNext}, s{sTmp}, 16")
    g(f"s_cmp_eq_u32 s{sNext}, s{sTmp2}")
    g("s_cbranch_scc1 L_qgo")
    g("s_cmp_lg_u32 s70, 0")
    g("s_cbranch_scc1 L_qw1")
    g(f"s_mov_b32 s{sTmp}, {NU}")
    g("s_branch L_qgo")

    if PD4:
        g.label("L_rescale")
        rescale_code()
        g("s_branch L_back")
    else:
        g.label("L_rescale3")
        rescale_code()
        g("s_branch L_back3")
        if BURST < 1000:
            body(4)
            g("s_branch L_uend")
            g.label("L_rescale4")
            rescale_code()
            g("s_branch L_back4")

    def reduce_l():
        g(f"v_add_f32_dpp v{vT}, v{vL}, v{vL} row_ror:4 row_mask:0xf bank_mask:0xf")
        g(f"v_mov_b32 v{vL}, v{vT}")
        g("s_nop 1")
        g(f"v_permlane16_swap_b32 v{vL}, v{vT}")
        g(f"v_add_f32 v{vL}, v{vL}, v{vT}")
        g(f"v_mov_b32 v{vT}, v{vL}")
        g("s_nop 1")
        g(f"v_permlane32_swap_b32 v{vL}, v{vT}")
        g(f"v_add_f32 v{vL}, v{vL}, v{vT}")

    g.label("L_switch")
    for j in range(2):
        for c in range(4):
            g(f"ds_read_b128 {ar(16*j+4*c,4)}, v{vQB+j} offset:{c*64}")
    reduce_l()
    g("s_nop 7")
    g("s_mov_b64 exec, s[36:37]")
    g(f"ds_write_b64 v{vMLa}, {vr(vM,2)}")
    for db in range(8):
        g(f"ds_write_b128 v{vOA}, {vr(vAcc+4*db,4)} offset:{db*64}")
    g("s_mov_b64 exec, -1")
    g(f"s_mov_b32 s{sSwd}, 1")
    if dbg == 1:
        g(f"s_mov_b32 s86, s{sCnt}")
    g("s_waitcnt lgkmcnt(0)")
    if EARLYA:
        g("s_mov_b64 exec, 1")
        g(f"ds_add_u32 v{vHeadA}, v{vOne} offset:{L_SWC - L_HEAD}")
        g("s_mov_b64 exec, -1")
    for i in range(32):
        g(f"v_mov_b32 v{vAcc+i}, 0")
    g(f"v_mov_b32 v{vM}, {MINIT:#x}")
    g(f"v_mov_b32 v{vL}, 0")
    g("s_branch L_after_switch")

    g.label("L_Sdone")
    g.stamp(3)
    if dbg:
        g(f"s_mov_b32 s85, s{sCnt}")
    if dbg >= 2:
        g("s_lshl_b32 s90, s2, 2")
        g(f"s_add_u32 s90, s90, s{sSW}")
        g("s_lshl_b32 s90, s90, 8")
        g("s_add_u32 s90, s90, 0x1a0000")
        g("v_lshlrev_b32 v121, 2, v0")
        g(f"buffer_store_dword v120, v121, s[{sWSs}:{sWSs+3}], s90 offen")
    reduce_l()
    g("s_waitcnt vmcnt(0)")
    g("s_mov_b64 exec, s[36:37]")
    g(f"ds_write_b64 v{vMLa}, {vr(vM,2)} offset:128")
    for db in range(8):
        g(f"ds_write_b128 v{vOB}, {vr(vAcc+4*db,4)} offset:{db*64}")
    g("s_mov_b64 exec, -1")
    g(f"s_lshr_b32 s{sTmp2}, s{sSW}, 1")
    g(f"s_and_b32 s{sTmp}, s{sSW}, 1")
    g(f"s_lshl_b32 s38, s{sTmp}, 10")
    g(f"s_cmp_eq_u32 s{sTmp2}, 0")
    g(f"s_cselect_b32 s39, {L_AST}, 0")
    g(f"s_movk_i32 s40, 0x800")
    g(f"s_cselect_b32 s40, s40, 0x8000")
    g(f"s_add_u32 s39, s39, s38")
    g(f"v_lshl_add_u32 v4, v0, 4, s39")
    g(f"v_add_u32 v9, s40, v4")
    g(f"v_add_u32 v10, s40, v9")
    g(f"v_add_u32 v11, s40, v10")
    g(f"s_lshl_b32 s{sTmp}, s{sTmp}, 1")
    g(f"v_lshrrev_b32 v2, 5, v0")
    g(f"v_add_u32 v2, s{sTmp}, v2")
    g(f"s_lshl_b32 s{sTmp}, s{sTmp2}, 7")
    g(f"s_add_u32 s{sTmp}, s{sTmp}, {L_ML}")
    g(f"v_lshl_add_u32 v5, v2, 3, s{sTmp}")
    g(f"s_lshl_b32 s{sT}, s{sGRP}, 1")
    g(f"s_add_u32 s{sT}, s{sT}, s{sTmp2}")
    g(f"s_lshl_b32 s{sNext}, s{sT}, 14")
    g(f"s_lshl_b32 s{sTmp}, s{sX}, 11")
    g(f"s_add_u32 s{sNext}, s{sNext}, s{sTmp}")
    g(f"s_add_u32 s{sNext}, s{sNext}, s38")
    g(f"s_add_u32 s{sNext}, s{sNext}, {WS_RO}")
    g("v_lshlrev_b32 v8, 4, v0")
    g(f"s_lshl_b32 s{sT}, s{sT}, {12 if MLC else 9}")
    g(f"s_lshl_b32 s{sTmp}, s{sX}, 4")
    g(f"s_add_u32 s{sT}, s{sT}, s{sTmp}")
    g(f"s_add_u32 s{sT}, s{sT}, {WS_ML8 if MLC else WS_ML}")
    g("v_and_b32 v3, 31, v0")
    if MLC:
        g("v_lshl_add_u32 v7, v2, 3, v3")
        g("v_lshlrev_b32 v7, 7, v7")
        g("v_cmp_gt_u32 s[66:67], 8, v3")
    else:
        g("v_lshlrev_b32 v7, 7, v2")
        g("v_cmp_eq_u32 s[66:67], 0, v3")
    g("s_waitcnt lgkmcnt(0)")
    g.c("barrier 2")
    g("s_barrier")
    g.stamp(4)
    if EARLYA:
        g(f"s_cmp_lt_u32 s{sSW}, 2")
        g("s_cbranch_scc1 L_Spost")
    for w in range(4):
        g(f"ds_read_b64 v[{64+2*w}:{65+2*w}], v5 offset:{w*32}")
    g(f"ds_read_b128 v[48:51], v4")
    g(f"ds_read_b128 v[52:55], v9")
    g(f"ds_read_b128 v[56:59], v10")
    g(f"ds_read_b128 v[60:63], v11")
    g("s_waitcnt lgkmcnt(4)")
    g("v_max3_f32 v72, v64, v66, v68")
    g("v_max_f32 v72, v72, v70")
    g("v_and_b32 v72, 0xffffff00, v72")
    for w in range(4):
        g(f"v_sub_f32 v{74+w}, v{64+2*w}, v72")
    for w in range(4):
        g(f"v_exp_f32 v{74+w}, v{74+w}")
    g("s_waitcnt lgkmcnt(0)")
    for i in range(4):
        g(f"v_mul_f32 v{80+i}, v74, v{48+i}")
    for w in range(1, 4):
        for i in range(4):
            g(f"v_fmac_f32 v{80+i}, v{74+w}, v{48+4*w+i}")
    for i in range(4):
        tagit(80+i, 80+i, i)
    g(f"buffer_store_dwordx4 v[80:83], v8, s[{sWSs}:{sWSs+3}], s{sNext} offen sc1")
    g("v_mul_f32 v73, v74, v65")
    for w in range(1, 4):
        g(f"v_fmac_f32 v73, v{74+w}, v{65+2*w}")
    tagit(84, 72, 0)
    tagit(85, 73, 1)
    tagit(86, 72, 2)
    tagit(87, 72, 3)
    g("s_mov_b64 exec, s[66:67]")
    g(f"buffer_store_dwordx4 v[84:87], v7, s[{sWSs}:{sWSs+3}], s{sT} offen sc1")
    g("s_mov_b64 exec, -1")
    if EARLYA:
        g.label("L_Spost")
        g(f"s_bitcmp1_b32 s{sB}, 0")
        g("s_cbranch_scc1 L_gather")
        g.stamp(8)
        g("s_branch L_fin")
    else:
        g("s_branch L_gather")

    g.label("L_H")
    sHW = sWAVE
    sA, sBs = 24, 28
    sU, sU2, sU3 = 58, 59, 60
    g("v_mov_b32 v24, 0")
    g("v_mov_b32 v25, 0")
    g("v_lshlrev_b32 v26, 3, v0")
    g(f"v_add_u32 v26, {L_ZERO}, v26")
    g("ds_write_b64 v26, v[24:25]")
    g("v_and_b32 v2, 15, v0")
    g("v_lshrrev_b32 v3, 4, v0")
    for i in range(4):
        g(f"s_mov_b32 s{sSEL+i}, {0x07060500 | i:#x}")
    g("s_mov_b32 s64, 0x0c0c0400")
    g("s_mov_b32 s65, 0x04000c0c")
    g("s_waitcnt lgkmcnt(0)")
    g.c("barrier 0")
    g("s_barrier")
    if FFNONLY:
        g("s_endpgm")
    g(f"s_load_dword s{sTag}, s[{P_WS}:{P_WS+1}], {WS_EPOCH}")
    g.srd(sWSs, P_WS, WS_SIZE)
    g("v_lshrrev_b32 v4, 3, v0")
    g("v_and_b32 v5, 7, v0")
    g("v_lshlrev_b32 v5, 4, v5")
    g("v_lshrrev_b32 v6, 2, v2")
    g("v_lshl_add_u32 v6, v3, 3, v6")
    g("v_lshlrev_b32 v6, 7, v6")
    g("v_and_b32 v7, 3, v0")
    g("v_lshl_add_u32 v6, v7, 3, v6")
    g(f"s_cmp_lg_u32 s{sHW}, 0")
    g("s_cbranch_scc1 L_H123")
    g(f"s_cmp_ge_u32 s{sA_}, 8")
    g("s_cbranch_scc1 L_H0np")
    g(f"s_bitcmp1_b32 s{sX}, 0")
    g("s_cbranch_scc1 L_nocnt")
    g(f"s_lshl_b32 s{sU2}, s{sA_}, 3")
    g(f"s_add_u32 s{sU2}, s{sU2}, s{sX}")
    g(f"s_lshl_b32 s{sU2}, s{sU2}, 11")
    g(f"s_add_u32 s{sU2}, s{sU2}, {WS_CNT}")
    g("v_mov_b32 v8, 128")
    g("s_mov_b64 exec, 1")
    g(f"buffer_store_dword v8, v24, s[{sWSs}:{sWSs+3}], s{sU2} offen sc1")
    g("s_mov_b64 exec, -1")
    g.label("L_nocnt")
    g("v_lshlrev_b32 v8, 2, v7")
    g(f"v_add_u32 v8, {L_FLAG}, v8")
    g("v_lshlrev_b32 v9, 4, v0")
    g(f"v_add_u32 v9, {L_AST}, v9")
    g("v_lshlrev_b32 v10, 14, v3")
    g("v_lshl_add_u32 v10, v2, 4, v10")
    g(f"s_lshl_b32 s{sU}, s{sX}, 11")
    g(f"s_lshl_b32 s{sU2}, s{sA_}, 8")
    g(f"s_add_u32 s{sU}, s{sU}, s{sU2}")
    g(f"s_add_u32 s{sU}, s{sU}, {WS_QG}")
    g(f"s_add_u32 s{sU2}, s{sU}, 65536")
    g("s_mov_b32 s20, 0x05040c00")
    g("s_mov_b32 s21, 0x07060c01")
    g("s_mov_b32 s22, 0x05040c02")
    g("s_mov_b32 s23, 0x07060c03")
    g("s_waitcnt lgkmcnt(0)")
    g(f"s_add_u32 s{sTag}, s{sTag}, 1")
    g(f"v_mov_b32 v{vTag}, s{sTag}")
    g("s_mov_b32 s70, 0x40000")
    g.label("L_pf")
    g("ds_read_b32 v11, v8")
    g("s_sub_u32 s70, s70, 1")
    g("s_waitcnt lgkmcnt(0)")
    g(f"v_cmp_ne_u32 vcc, 1, v11")
    g("s_cbranch_vccz L_pfok")
    g("s_cmp_lg_u32 s70, 0")
    g("s_cbranch_scc1 L_pf")
    g.label("L_pfok")
    g.stamp(1)
    for hb in range(2):
        for w in range(4):
            g(f"ds_read_b128 {vr(32+16*hb+4*w,4)}, v9 offset:{w*2048 + hb*1024}")
    g("s_waitcnt lgkmcnt(0)")
    for hb in range(2):
        b0 = 32 + 16*hb
        for i in range(4):
            g(f"v_add_f32 v{b0+i}, v{b0+i}, v{b0+4+i}")
            g(f"v_add_f32 v{b0+8+i}, v{b0+8+i}, v{b0+12+i}")
        for i in range(4):
            g(f"v_add_f32 v{b0+i}, v{b0+i}, v{b0+8+i}")
        g(f"v_cvt_pk_bf16_f32 v{b0+4}, v{b0}, v{b0+1}")
        g(f"v_cvt_pk_bf16_f32 v{b0+5}, v{b0+2}, v{b0+3}")
        g(f"v_perm_b32 v{b0+8}, v{b0+4}, v{vTag}, s20")
        g(f"v_perm_b32 v{b0+9}, v{b0+4}, v{vTag}, s21")
        g(f"v_perm_b32 v{b0+10}, v{b0+5}, v{vTag}, s22")
        g(f"v_perm_b32 v{b0+11}, v{b0+5}, v{vTag}, s23")
    g("s_waitcnt vmcnt(0)")
    g(f"buffer_store_dwordx4 v[40:43], v10, s[{sWSs}:{sWSs+3}], s{sU} offen sc1")
    g(f"buffer_store_dwordx4 v[56:59], v10, s[{sWSs}:{sWSs+3}], s{sU2} offen sc1")
    g(f"v_mov_b32 v8, {L_FLAG2}")
    g("v_mov_b32 v9, 1")
    g("ds_write_b32 v8, v9")
    g.stamp(2)
    if QSP:
        g(f"s_sleep {QSP}")
    g("s_branch L_H0q")
    g.label("L_H0np")
    if QSLEEP0:
        g(f"s_sleep {QSLEEP0}")
    if QS2:
        g(f"s_sleep {QS2}")
    g("s_waitcnt lgkmcnt(0)")
    g(f"s_add_u32 s{sTag}, s{sTag}, 1")
    g(f"v_mov_b32 v{vTag}, s{sTag}")
    g.label("L_H0q")
    g(f"s_lshl_b32 s{sU2}, s{sGRP}, 12")
    g(f"s_add_u32 s{sU2}, s{sU2}, {WS_QG}")
    g("v_lshlrev_b32 v26, 4, v0")
    g("v_lshlrev_b32 v25, 3, v0")
    g(f"v_add_u32 v25, {L_QBUF}, v25")
    g("s_mov_b32 s20, 0x07060302")
    g("s_mov_b32 s70, 0x40000")
    if QPIPE <= 1:
        g("s_mov_b32 s71, 15")
        g.label("L_pollq")
        for u in range(4):
            g(f"s_bitcmp1_b32 s71, {u}")
            g(f"s_cbranch_scc0 L_qa{u}")
            g(f"buffer_load_dwordx4 {vr(32+4*u,4)}, v26, s[{sWSs}:{sWSs+3}], s{sU2} offen offset:{u*1024} sc1")
            g.label(f"L_qa{u}")
        g("s_waitcnt vmcnt(0)")
        for u in range(4):
            tagchk(27, 32+4*u, True, 28, 29)
            g("v_cmp_ne_u32 vcc, 0, v27")
            g(f"s_cbranch_vccnz L_qb{u}")
            g(f"s_bitset0_b32 s71, {u}")
            g.label(f"L_qb{u}")
        g("s_cmp_eq_u32 s71, 0")
        g("s_cbranch_scc1 L_qok")
        if QS1:
            g(f"s_sleep {QS1}")
        g("s_sub_u32 s70, s70, 1")
        g("s_cmp_lg_u32 s70, 0")
        g("s_cbranch_scc1 L_pollq")
    else:
        def qiss(k):
            for u in range(4):
                g(f"buffer_load_dwordx4 {vr(32+16*k+4*u,4)}, v26, s[{sWSs}:{sWSs+3}], s{sU2} offen offset:{u*1024} sc1")
        g("s_waitcnt vmcnt(0)")
        for k in range(QPIPE - 1):
            qiss(k)
            g(f"s_sleep {QGAP}")
        g.label("L_pollq")
        for k in range(QPIPE):
            qiss((k + QPIPE - 1) % QPIPE)
            g(f"s_waitcnt vmcnt({4*(QPIPE-1)})")
            for u in range(4):
                tagchk(27, 32+16*k+4*u, u == 0, 28, 29)
            g("v_cmp_ne_u32 vcc, 0, v27")
            g(f"s_cbranch_vccz L_qok{k}")
            g(f"s_sleep {QGAP}")
        g("s_sub_u32 s70, s70, 1")
        g("s_cmp_lg_u32 s70, 0")
        g("s_cbranch_scc1 L_pollq")
        for k in range(QPIPE - 1, -1, -1):
            g.label(f"L_qok{k}")
            for u in range(4):
                g(f"v_perm_b32 v{112+2*u}, v{33+16*k+4*u}, v{32+16*k+4*u}, s20")
                g(f"v_perm_b32 v{113+2*u}, v{35+16*k+4*u}, v{34+16*k+4*u}, s20")
            if k: g("s_branch L_qok")
    g.label("L_qok")
    g.stamp(3)
    for u in range(4):
        if QPIPE <= 1:
            g(f"v_perm_b32 v{112+2*u}, v{33+4*u}, v{32+4*u}, s20")
            g(f"v_perm_b32 v{113+2*u}, v{35+4*u}, v{34+4*u}, s20")
        g(f"ds_write_b64 v25, {vr(112+2*u,2)} offset:{u*512}")
    g(f"v_mov_b32 v8, {L_FLAG3}")
    g("v_mov_b32 v9, 1")
    g("s_waitcnt lgkmcnt(0)")
    g("ds_write_b32 v8, v9")
    g("s_waitcnt vmcnt(0)")
    g.stamp(4)
    g.srd(sA, P_X, 8192)
    g.srd(sBs, P_GW, 1024)
    g("v_lshlrev_b32 v8, 4, v0")
    g(f"s_lshl_b32 s{sU2}, s{sB}, 10")
    g(f"buffer_load_dwordx4 v[16:19], v8, s[{sA}:{sA+3}], s{sU2} offen")
    g(f"buffer_load_dwordx4 v[20:23], v8, s[{sBs}:{sBs+3}], 0 offen")
    g("s_waitcnt vmcnt(0)")
    for i in range(4):
        g(f"v_lshlrev_b32 v{24+2*i}, 16, v{16+i}")
        g(f"v_and_b32 v{25+2*i}, 0xffff0000, v{16+i}")
        g(f"v_lshlrev_b32 v{32+2*i}, 16, v{20+i}")
        g(f"v_and_b32 v{33+2*i}, 0xffff0000, v{20+i}")
    for i in range(8):
        g(f"v_mul_f32 v{24+i}, v{24+i}, v{32+i}")
    for i in range(4):
        g(f"v_cvt_pk_bf16_f32 v{32+i}, v{24+2*i}, v{25+2*i}")
    for i in range(4):
        g(f"v_lshlrev_b32 v{24+2*i}, 16, v{32+i}")
        g(f"v_and_b32 v{25+2*i}, 0xffff0000, v{32+i}")
    g("v_add_f32 v24, v24, v25")
    g("v_add_f32 v26, v26, v27")
    g("v_add_f32 v28, v28, v29")
    g("v_add_f32 v30, v30, v31")
    g("v_add_f32 v24, v24, v26")
    g("v_add_f32 v28, v28, v30")
    g("v_add_f32 v24, v24, v28")
    for rot in (1, 2, 4, 8):
        g("s_nop 1")
        g(f"v_add_f32_dpp v25, v24, v24 row_ror:{rot} row_mask:0xf bank_mask:0xf")
        g("v_mov_b32 v24, v25")
    g("s_nop 1")
    g("v_permlane16_swap_b32 v24, v25")
    g("v_add_f32 v24, v24, v25")
    g("v_mov_b32 v25, v24")
    g("s_nop 1")
    g("v_permlane32_swap_b32 v24, v25")
    g("v_add_f32 v24, v24, v25")
    g("v_cvt_pk_bf16_f32 v24, v24, v24")
    g("v_and_b32 v24, 0xffff0000, v24")
    g("v_mul_f32 v24, 0xbfb8aa3b, v24")
    g("v_exp_f32 v24, v24")
    g("s_nop 0")
    g("v_add_f32 v24, 1.0, v24")
    g("v_rcp_f32 v24, v24")
    g("s_nop 0")
    g("v_cvt_pk_bf16_f32 v24, v24, v24")
    g("v_and_b32 v10, 0xffff0000, v24")
    g("v_sub_f32 v11, 1.0, v10")
    g("v_cvt_pk_bf16_f32 v11, v11, v11")
    g("v_and_b32 v11, 0xffff0000, v11")

    def inbox_reduce(tag, off, nchunk2, sleep, dst, presleep=0):
        g(f"s_lshl_b32 s{sU2}, s2, 12")
        g(f"s_add_u32 s{sU2}, s{sU2}, {WS_PAB + off}")
        g("v_lshlrev_b32 v8, 4, v0")
        if nchunk2 < 64:
            g(f"v_cmp_gt_u32 s[66:67], {nchunk2}, v0")
            g(f"v_min_u32 v9, {nchunk2-1}, v0")
            g("v_lshlrev_b32 v9, 4, v9")
        g("s_mov_b32 s70, 0x40000")
        for _ in range(presleep):
            g("s_sleep 127")
        if tag == "a" and ADELAY:
            g(f"s_sleep {ADELAY}")
        if tag == "a" and APIPE > 1:
            AB = 80
            def aiss(k):
                g(f"buffer_load_dwordx4 {vr(AB+8*k,4)}, v8, s[{sWSs}:{sWSs+3}], s{sU2} offen sc1")
                g(f"buffer_load_dwordx4 {vr(AB+8*k+4,4)}, v8, s[{sWSs}:{sWSs+3}], s{sU2} offen offset:1024 sc1")
            for k in range(APIPE - 1):
                aiss(k)
                g(f"s_sleep {AGAP}")
            g.label("L_pollia")
            for k in range(APIPE):
                aiss((k + APIPE - 1) % APIPE)
                g(f"s_waitcnt vmcnt({2*(APIPE-1)})")
                tagchk(24, AB+8*k, True, 25, 26)
                tagchk(24, AB+8*k+4, False, 25, 26)
                g("v_cmp_ne_u32 vcc, 0, v24")
                g(f"s_cbranch_vccz L_aok{k}")
                g(f"s_sleep {AGAP}")
            g("s_sub_u32 s70, s70, 1")
            g("s_cmp_lg_u32 s70, 0")
            g("s_cbranch_scc1 L_pollia")
            for k in range(APIPE - 1, -1, -1):
                g.label(f"L_aok{k}")
                for i in range(4):
                    g(f"v_add_f32 v{16+i}, v{AB+8*k+i}, v{AB+8*k+4+i}")
                if k: g("s_branch L_ioka")
            g.label("L_ioka")
            g.stamp(13)
        else:
            g.label(f"L_polli{tag}")
            g(f"buffer_load_dwordx4 v[16:19], v8, s[{sWSs}:{sWSs+3}], s{sU2} offen sc1")
            g(f"buffer_load_dwordx4 v[20:23], {'v9' if nchunk2 < 64 else 'v8'}, s[{sWSs}:{sWSs+3}], s{sU2} offen offset:1024 sc1")
            g("s_waitcnt vmcnt(0)")
            tagchk(24, 16, True, 25, 26)
            tagchk(24, 20, False, 25, 26)
            g("v_cmp_ne_u32 vcc, 0, v24")
            g(f"s_cbranch_vccz L_iok{tag}")
            g(f"s_sleep {sleep}")
            g("s_sub_u32 s70, s70, 1")
            g("s_cmp_lg_u32 s70, 0")
            g(f"s_cbranch_scc1 L_polli{tag}")
            g.label(f"L_iok{tag}")
            if tag == "a": g.stamp(13)
            if nchunk2 < 64:
                for i in range(4):
                    g(f"v_cndmask_b32 v{20+i}, 0, v{20+i}, s[66:67]")
            for i in range(4):
                g(f"v_add_f32 v{16+i}, v{16+i}, v{20+i}")
        g("s_nop 0")
        for i in range(4):
            g(f"v_add_f32_dpp v{20+i}, v{16+i}, v{16+i} row_ror:4 row_mask:0xf bank_mask:0xf")
        g("s_nop 0")
        for i in range(4):
            g(f"v_add_f32_dpp v{16+i}, v{20+i}, v{20+i} row_ror:8 row_mask:0xf bank_mask:0xf")
        for i in range(4):
            g(f"v_mov_b32 v{20+i}, v{16+i}")
        g("s_nop 0")
        for i in range(4):
            g(f"v_permlane16_swap_b32 v{16+i}, v{20+i}")
        for i in range(4):
            g(f"v_add_f32 v{16+i}, v{16+i}, v{20+i}")
        for i in range(4):
            g(f"v_mov_b32 v{20+i}, v{16+i}")
        g("s_nop 0")
        for i in range(4):
            g(f"v_permlane32_swap_b32 v{16+i}, v{20+i}")
        for i in range(4):
            g(f"v_add_f32 v{dst+i}, v{16+i}, v{20+i}")
    g.stamp(5)
    if not NOFFN:
        inbox_reduce("b", 2048, 48, 32, 12, presleep=3)
    g.stamp(6)
    for i in range(8*APIPE if APIPE > 1 else 0):
        g(f"v_not_b32 v{80+i}, v{vTag}")
    g("s_branch L_Hbar2")

    g.label("L_H123")
    g(f"s_cmp_lg_u32 s{sHW}, 2")
    g("s_cbranch_scc1 L_H13")
    g("v_mov_b32 v8, 0")
    g(f"v_mov_b32 v9, {L_HEAD}")
    g(f"s_lshl_b32 s{sU}, s{sGRP}, 12")
    g(f"s_add_u32 s{sU}, s{sU}, {WS_CNT}")
    g("s_mov_b32 s20, 0")
    g(f"s_mov_b32 s22, {TH}")
    g(f"s_mov_b32 s23, {BF}")
    g("s_mov_b32 s24, 0")
    g("s_mov_b32 s25, 0x10000")
    g("s_mov_b32 s70, 0x100000")
    g("s_waitcnt lgkmcnt(0)")
    g(f"s_add_u32 s{sTag}, s{sTag}, 1")
    g(f"v_mov_b32 v{vTag}, s{sTag}")
    g("s_mov_b64 exec, 1")
    g.label("L_Dwq")
    g(f"ds_read_b32 v10, v9 offset:{L_FLAG3 - L_HEAD}")
    g("s_sub_u32 s70, s70, 1")
    g("s_waitcnt lgkmcnt(0)")
    g("v_cmp_ne_u32 vcc, 1, v10")
    g("s_cbranch_vccz L_Dclaim")
    g("s_sleep 2")
    g("s_cmp_lg_u32 s70, 0")
    g("s_cbranch_scc1 L_Dwq")
    g("s_branch L_Ddone")
    if True:
        g.label("L_Dloop")
        g("ds_read_b32 v10, v9")
        g("s_sub_u32 s70, s70, 1")
        g("s_waitcnt lgkmcnt(0)")
        g("v_readfirstlane_b32 s21, v10")
        g("s_cmp_eq_u32 s70, 0")
        g("s_cbranch_scc1 L_Ddone")
        g("s_sub_u32 s21, s20, s21")
        g("s_cmp_lt_i32 s21, s22")
        g("s_cbranch_scc1 L_Dclaim")
        g("s_sleep 1")
        g("s_branch L_Dloop")
        g.label("L_Dclaim")
        g("v_mov_b32 v11, s23")
        g(f"buffer_atomic_add v11, v8, s[{sWSs}:{sWSs+3}], s{sU} offen sc0 sc1")
        g("s_mov_b64 exec, 0xffff")
        g("v_add_u32 v12, s20, v0")
        g("v_lshrrev_b32 v13, 5, v12")
        g("v_add_u32 v13, 1, v13")
        g("v_lshlrev_b32 v13, 16, v13")
        g("v_and_b32 v12, 31, v12")
        g(f"v_lshlrev_b32 v12, 2, v12")
        g("s_bfm_b32 s26, s23, 0")
        g("s_add_u32 s20, s20, s23")
        g("s_waitcnt vmcnt(0)")
        g("v_readfirstlane_b32 s21, v11")
        g("s_add_u32 s27, s21, s23")
        g(f"s_cmp_ge_u32 s27, {NU}")
        g("s_cselect_b32 s26, 0xffff, s26")
        g("s_cselect_b32 s28, 1, 0")
        g("v_add_u32 v14, s21, v0")
        g(f"v_min_u32 v14, {NU}, v14")
        g("v_or_b32 v13, v13, v14")
        g("s_mov_b32 exec_lo, s26")
        g(f"ds_write_b32 v12, v13 offset:{L_Q & 0xffff}" if False else f"v_add_u32 v12, {L_Q}, v12")
        g("ds_write_b32 v12, v13")
        g("s_mov_b64 exec, 1")
        g("s_sub_u32 s27, s21, s24")
        g("s_cmp_gt_u32 s27, s25")
        g(f"s_cselect_b32 s22, {THS}, {TH}")
        g(f"s_mul_i32 s25, s23, {SLOWQ}")
        g(f"s_cselect_b32 s23, {BS}, {BF}")
        if SLOWFROM:
            g(f"s_cmp_lt_u32 s21, {SLOWFROM}")
            g(f"s_cselect_b32 s22, {TH}, s22")
            g(f"s_cselect_b32 s23, {BF}, s23")
        if EPH:
            g(f"s_cmp_ge_u32 s21, {NU - EPH}")
            g(f"s_cselect_b32 s27, {THE}, {TH}")
            g(f"s_cselect_b32 s29, {BE}, {BF}")
            g("s_min_u32 s22, s22, s27")
            g("s_min_u32 s23, s23, s29")
        g("s_mov_b32 s24, s21")
        g("s_cmp_eq_u32 s28, 0")
        g("s_cbranch_scc1 L_Dloop")
        g.label("L_Ddone")
        g("s_mov_b64 exec, -1")
        g("s_waitcnt lgkmcnt(0)")
    if LOCAL:
        g("v_lshlrev_b32 v8, 4, v0")
        g("s_lshl_b32 s20, s2, 12")
        g(f"s_add_u32 s20, s20, {WS_PAB}")
        g(f"buffer_load_dwordx4 v[12:15], v8, s[{sWSs}:{sWSs+3}], s20 offen sc1")
        g(f"buffer_load_dwordx4 v[16:19], v8, s[{sWSs}:{sWSs+3}], s20 offen offset:1024 sc1")
        g("s_waitcnt vmcnt(0)")
    if PRET:
        g("v_and_b32 v8, 7, v0")
        g("v_bfe_u32 v9, v0, 3, 2")
        g("v_lshl_add_u32 v8, v8, 2, v9")
        g("v_lshlrev_b32 v8, 15, v8")
        g(f"s_lshl_b32 s20, s{sB}, 12")
        g(f"s_add_u32 s20, s20, {WS_PAB + 3968}")
        g("v_add_u32 v8, s20, v8")
        g("v_bfe_u32 v9, v0, 2, 3")
        g("v_lshlrev_b32 v9, 17, v9")
        g("v_lshl_add_u32 v9, v7, 12, v9")
        g(f"s_lshl_b32 s20, s{sX}, 14")
        g(f"s_lshl_b32 s21, s{sSPLIT}, 9")
        g("s_add_u32 s20, s20, s21")
        g(f"s_add_u32 s20, s20, {WS_RO}")
        g("v_add_u32 v9, s20, v9")
        g("v_cmp_gt_u32 vcc, 32, v0")
        g("v_cndmask_b32 v8, v9, v8, vcc")
        g(f"buffer_load_dword v10, v8, s[{sWSs}:{sWSs+3}], 0 offen sc1")
        if PRET >= 2:
            g("v_and_b32 v8, 1, v0")
            g("v_lshlrev_b32 v8, 14, v8")
            g(f"s_lshl_b32 s20, s{sGRP}, 15")
            g(f"s_lshl_b32 s21, s{sX}, 11")
            g("s_add_u32 s20, s20, s21")
            g(f"s_add_u32 s20, s20, {WS_RO}")
            g("v_add_u32 v8, s20, v8")
            g("v_and_b32 v9, 7, v0")
            g("v_lshlrev_b32 v9, 12, v9")
            g(f"v_add_u32 v9, {WS_ML}, v9")
            g("v_cmp_gt_u32 vcc, 8, v0")
            g("v_cndmask_b32 v8, v9, v8, vcc")
            g("s_mov_b64 exec, 0xffff")
            g(f"buffer_load_dword v11, v8, s[{sWSs}:{sWSs+3}], 0 offen sc1")
            g("s_mov_b64 exec, -1")
        g("s_waitcnt vmcnt(0)")
    g.stamp(5)
    g("s_branch L_Hbar2")

    g.label("L_H13")
    g("s_waitcnt lgkmcnt(0)")
    g(f"s_add_u32 s{sTag}, s{sTag}, 1")
    g(f"v_mov_b32 v{vTag}, s{sTag}")
    g(f"s_cmp_eq_u32 s{sHW}, 3")
    g("s_cbranch_scc1 L_H3" if LOCAL else "s_cbranch_scc1 L_Hbar2")
    if WDELAY:
        g(f"s_sleep {WDELAY}")
    for _ in range(WD2):
        g("s_sleep 127")
    g(f"s_cmp_ge_u32 s{sA_}, 8")
    g("s_cbranch_scc1 L_H1wo")
    g(f"v_mov_b32 v8, {L_FLAG2}")
    g("s_mov_b32 s70, 0x4000")
    g.label("L_H1w")
    g("ds_read_b32 v9, v8")
    g("s_sub_u32 s70, s70, 1")
    g("s_waitcnt lgkmcnt(0)")
    g("v_cmp_ne_u32 vcc, 1, v9")
    g("s_cbranch_vccz L_H1wo")
    g("s_sleep 2")
    g("s_cmp_lg_u32 s70, 0")
    g("s_cbranch_scc1 L_H1w")
    g.label("L_H1wo")
    g.srd(sA, P_WO, 4096 * 512 * 2)
    g("v_lshl_add_u32 v8, v4, 10, v5")
    if LOCAL:
        g(f"s_lshl_b32 s{sU}, s{sA_}, 17")
        g(f"s_lshl_b32 s{sU2}, s{sX}, 7")
    else:
        g(f"s_lshl_b32 s{sU}, s{sX}, 2")
        g(f"s_add_u32 s{sU}, s{sU}, s{sSPLIT}")
        g(f"s_lshl_b32 s{sU}, s{sU}, 17")
        g(f"s_lshl_b32 s{sU2}, s{sB}, 7")
    g(f"s_add_u32 s{sU}, s{sU}, s{sU2}")
    for i in range(16):
        g(f"s_mov_b32 m0, {L_ST + i*1024}")
        g(f"s_add_u32 s{sU2}, s{sU}, {i*8192}")
        g(f"buffer_load_dwordx4 v8, s[{sA}:{sA+3}], s{sU2} offen {WPOL} lds")
        if WGAP:
            g("s_waitcnt vmcnt(0)")
            g(f"s_sleep {WGAP}")
    g("s_waitcnt vmcnt(0)")
    g.stamp(5)
    if EARLYA:
        assert LOCAL and MLC
        def ldspoll(lbl, addr, cmpop, val, slp):
            g(f"v_mov_b32 v8, {addr}")
            g("s_mov_b32 s70, 0x40000")
            g.label(lbl)
            g("ds_read_b32 v31, v8")
            g("s_sub_u32 s70, s70, 1")
            g("s_waitcnt lgkmcnt(0)")
            g(f"v_cmp_{cmpop}_u32 vcc, {val}, v31")
            g(f"s_cbranch_vccz {lbl}ok")
            g(f"s_sleep {slp}")
            g("s_cmp_lg_u32 s70, 0")
            g(f"s_cbranch_scc1 {lbl}")
            g.label(lbl + "ok")
        for _ in range(4):
            g("s_sleep 127")
        ldspoll("L_A1", L_SWC, "ne", 4, 16)
        g.stamp(1)
        g("v_lshrrev_b32 v50, 5, v0")
        g("v_and_b32 v51, 31, v0")
        g("v_lshlrev_b32 v8, 4, v0")
        g(f"v_add_u32 v9, {L_AST}, v8")
        g(f"v_lshlrev_b32 v10, 3, v50")
        g(f"v_add_u32 v10, {L_ML}, v10")
        g("v_lshl_add_u32 v11, v50, 3, v51")
        g("v_lshlrev_b32 v11, 7, v11")
        g("v_cmp_gt_u32 s[66:67], 8, v51")
        g(f"s_lshl_b32 s20, s{sGRP}, 15")
        g(f"s_lshl_b32 s21, s{sX}, 11")
        g("s_add_u32 s20, s20, s21")
        g(f"s_add_u32 s20, s20, {WS_RO}")
        g(f"s_lshl_b32 s21, s{sGRP}, 13")
        g(f"s_lshl_b32 s22, s{sX}, 4")
        g("s_add_u32 s21, s21, s22")
        g(f"s_add_u32 s21, s21, {WS_ML8}")
        for hp in range(2):
            for w in range(4):
                g(f"ds_read_b64 v[{64+2*w}:{65+2*w}], v10 offset:{w*32 + hp*16}")
            for w in range(4):
                g(f"ds_read_b128 {vr(32+4*w,4)}, v9 offset:{w*2048 + hp*1024}")
            g("s_waitcnt lgkmcnt(0)")
            g("v_max3_f32 v72, v64, v66, v68")
            g("v_max_f32 v72, v72, v70")
            g("v_and_b32 v72, 0xffffff00, v72")
            for w in range(4):
                g(f"v_sub_f32 v{74+w}, v{64+2*w}, v72")
            for w in range(4):
                g(f"v_exp_f32 v{74+w}, v{74+w}")
            g("s_nop 0")
            d = 80 + 8*hp
            for i in range(4):
                g(f"v_mul_f32 v{d+i}, v74, v{32+i}")
            for w in range(1, 4):
                for i in range(4):
                    g(f"v_fmac_f32 v{d+i}, v{74+w}, v{32+4*w+i}")
            for i in range(4):
                tagit(d+i, d+i, i)
            g(f"buffer_store_dwordx4 {vr(d,4)}, v8, s[{sWSs}:{sWSs+3}], s20 offen offset:{hp*1024} sc1")
            g("v_mul_f32 v73, v74, v65")
            for w in range(1, 4):
                g(f"v_fmac_f32 v73, v{74+w}, v{65+2*w}")
            tagit(d+4, 72, 0)
            tagit(d+5, 73, 1)
            tagit(d+6, 72, 2)
            tagit(d+7, 72, 3)
            g("s_mov_b64 exec, s[66:67]")
            g(f"buffer_store_dwordx4 {vr(d+4,4)}, v11, s[{sWSs}:{sWSs+3}], s21 offen offset:{hp*2048} sc1")
            g("s_mov_b64 exec, -1")
        g.stamp(2)
        g(f"s_bitcmp1_b32 s{sB}, 0")
        g("s_cbranch_scc1 L_Hbar2")
        g(f"s_lshl_b32 s20, s{sA_}, 10")
        g(f"s_lshl_b32 s21, s{sX}, 7")
        g("s_add_u32 s20, s20, s21")
        g(f"s_add_u32 s20, s20, {WS_ML8}")
        g("v_lshl_add_u32 v9, v4, 15, v5")
        g("s_mov_b32 s70, 0x4000")
        g.label("L_A2")
        g("s_sleep 32")
        g(f"buffer_load_dwordx4 v[12:15], v9, s[{sWSs}:{sWSs+3}], s20 offen sc1")
        g("s_sub_u32 s70, s70, 1")
        g("s_waitcnt vmcnt(0)")
        tagchk(16, 12, True, 17, 18)
        g("v_cmp_ne_u32 vcc, 0, v16")
        g("s_cbranch_vccz L_A2ok")
        g("s_cmp_lg_u32 s70, 0")
        g("s_cbranch_scc1 L_A2")
        g.label("L_A2ok")
        g.stamp(3)
        g("v_lshlrev_b32 v9, 11, v50")
        g("v_lshl_add_u32 v9, v51, 4, v9")
        g("v_lshl_add_u32 v10, v7, 1, v50")
        g("v_lshlrev_b32 v10, 4, v10")
        g(f"s_lshl_b32 s21, s{sB}, 14")
        g(f"s_lshl_b32 s22, s{sSPLIT}, 9")
        g("s_add_u32 s21, s21, s22")
        g(f"s_add_u32 s21, s21, {WS_RO}")
        g(f"v_lshlrev_b32 v11, 3, v51")
        g(f"v_add_u32 v11, {L_OBUF2}, v11")
        g("s_mov_b32 s23, 0")
        g.label("L_A3")
        g("s_mov_b32 s70, 0x4000")
        g.label("L_A3r")
        for bb in range(4):
            B0 = 40 + 20*bb
            g(f"s_add_u32 s22, s20, {bb*32768}")
            g(f"buffer_load_dwordx4 {vr(B0+16,4)}, v10, s[{sWSs}:{sWSs+3}], s22 offen sc1")
            for i in range(4):
                g(f"s_add_u32 s22, s21, {bb*131072 + i*4096}")
                g(f"buffer_load_dwordx4 {vr(B0+4*i,4)}, v9, s[{sWSs}:{sWSs+3}], s22 offen sc1")
        g("s_sub_u32 s70, s70, 1")
        g("s_waitcnt vmcnt(0)")
        for k in range(20):
            tagchk(16, 40+4*k, k == 0, 17, 18)
        g("v_cmp_ne_u32 vcc, 0, v16")
        g("s_cbranch_vccz L_A3ok")
        g("s_sleep 8")
        g("s_cmp_lg_u32 s70, 0")
        g("s_cbranch_scc1 L_A3r")
        g.label("L_A3ok")
        for bb in range(4):
            B0 = 40 + 20*bb
            gmath(B0, B0+16, 12, 16)
            g(f"ds_write_b64 v11, v[12:13] offset:{bb*256}")
        g("v_add_u32 v11, 1024, v11")
        g(f"s_add_u32 s20, s20, {4*32768}")
        g(f"s_add_u32 s21, s21, {4*131072}")
        g("s_add_u32 s23, s23, 1")
        g("s_cmp_lt_u32 s23, 2")
        g("s_cbranch_scc1 L_A3")
        g.stamp(4)
        ldspoll("L_A4", L_LOC, "eq", 0, 16)
        g("v_and_b32 v9, 7, v0")
        g("v_lshlrev_b32 v9, 8, v9")
        g("v_lshl_add_u32 v9, v3, 4, v9")
        g(f"v_add_u32 v9, {L_OBUF2}, v9")
        for kb in range(4):
            g(f"ds_read_b128 {vr(48+4*kb,4)}, v9 offset:{kb*64}")
        g(f"v_add_u32 v9, {L_ST}, v6")
        for t in range(4):
            for kb in range(4):
                g(f"ds_read_b64_tr_b16 {vr(64+16*t+4*kb,2)}, v9 offset:{kb*4096 + t*32}")
                g(f"ds_read_b64_tr_b16 {vr(66+16*t+4*kb,2)}, v9 offset:{kb*4096 + 512 + t*32}")
            if t == 2:
                g("s_waitcnt lgkmcnt(0)")
        g("v_lshlrev_b32 v8, 17, v2")
        g("v_lshl_add_u32 v8, v3, 4, v8")
        g(f"s_lshl_b32 s20, s{sX}, 12")
        g(f"s_lshl_b32 s21, s{sA_}, 6")
        g("s_add_u32 s20, s20, s21")
        g(f"s_add_u32 s20, s20, {WS_PAB}")
        g("v_cmp_gt_u32 s[66:67], 8, v2")
        g("v_cmp_eq_u32 vcc, 1, v31")
        g("s_waitcnt lgkmcnt(0)")
        for t in range(4):
            for kb in range(4):
                srcc = "0" if kb == 0 else vr(32+4*t, 4)
                g(f"v_mfma_f32_16x16x32_bf16 {vr(32+4*t,4)}, {vr(64+16*t+4*kb,4)}, {vr(48+4*kb,4)}, {srcc}")
        g("s_nop 7")
        g("s_nop 3")
        g(f"v_mov_b32 v{vTag}, s{sTag}")
        for i in range(16):
            tagit(32+i, 32+i, i & 3)
        g("s_mov_b64 exec, s[66:67]")
        g("s_cbranch_vccz L_A5s")
        for t in range(4):
            g(f"s_add_u32 s21, s20, {t*32768}")
            g(f"buffer_store_dwordx4 {vr(32+4*t,4)}, v8, s[{sWSs}:{sWSs+3}], s21 offen")
        g("s_branch L_A5d")
        g.label("L_A5s")
        for t in range(4):
            g(f"s_add_u32 s21, s20, {t*32768}")
            g(f"buffer_store_dwordx4 {vr(32+4*t,4)}, v8, s[{sWSs}:{sWSs+3}], s21 offen sc1")
        g.label("L_A5d")
        g("s_mov_b64 exec, -1")
        g.stamp(6)
    if LOCAL:
        g("s_branch L_Hbar2")
        g.label("L_H3")
        g("s_getreg_b32 s20, hwreg(HW_REG_XCC_ID)")
        g("s_lshl_b32 s20, s20, 8")
        g("v_mov_b32 v8, s20")
        for i in range(4):
            tagit(12+i, 8, i)
        g(f"s_lshl_b32 s21, s{sX}, 9")
        g(f"s_add_u32 s21, s21, {WS_XT}")
        g(f"s_lshl_b32 s22, s{sA_}, 4")
        g("s_add_u32 s22, s22, s21")
        g("v_mov_b32 v9, 0")
        g("s_sleep 127")
        g("s_mov_b64 exec, 1")
        g(f"buffer_store_dwordx4 v[12:15], v9, s[{sWSs}:{sWSs+3}], s22 offen sc1")
        g("s_mov_b64 exec, -1")
        g("v_and_b32 v9, 31, v0")
        g("v_lshlrev_b32 v9, 4, v9")
        for _ in range(4):
            g("s_sleep 127")
        g("s_mov_b32 s70, 0x4000")
        g.label("L_H3p")
        g("s_sleep 64")
        g(f"buffer_load_dwordx4 v[16:19], v9, s[{sWSs}:{sWSs+3}], s21 offen sc1")
        g("s_sub_u32 s70, s70, 1")
        g("s_waitcnt vmcnt(0)")
        tagchk(20, 16, True, 21, 22)
        g("v_cmp_ne_u32 vcc, 0, v20")
        g("s_cbranch_vccz L_H3ok")
        g("s_cmp_lg_u32 s70, 0")
        g("s_cbranch_scc1 L_H3p")
        g.label("L_H3ok")
        g("v_cmp_ne_u32 vcc, v12, v16")
        g(f"v_mov_b32 v8, {L_LOC}")
        g("v_mov_b32 v9, 2")
        g("s_cbranch_vccnz L_H3w")
        g("v_mov_b32 v9, 1")
        g.label("L_H3w")
        g("ds_write_b32 v8, v9")
        g("s_waitcnt lgkmcnt(0)")

    g.label("L_Hbar2")
    g(f"s_lshl_b32 s{sU}, s{sHW}, 5")
    g(f"s_add_u32 s{sU}, s{sU}, {L_ST}")
    g(f"v_add_u32 v9, s{sU}, v6")
    g.stamp(7)
    g.c("barrier 2")
    g("s_barrier")
    if EARLYA:
        g(f"s_bitcmp0_b32 s{sB}, 0")
        g("s_cbranch_scc1 L_PAd")
    for kb in range(4):
        g(f"ds_read_b64_tr_b16 {vr(32+4*kb,2)}, v9 offset:{kb*4096}")
        g(f"ds_read_b64_tr_b16 {vr(34+4*kb,2)}, v9 offset:{kb*4096+512}")
    if LOCAL:
        g(f"v_mov_b32 v9, {L_LOC}")
        g("ds_read_b32 v31, v9")

    g.label("L_gather")
    g.stamp(8)
    g(f"s_lshl_b32 s58, s{sWAVE}, 3")
    g(f"s_add_u32 s58, s58, s{sB if LOCAL else sX}")
    g(f"s_lshl_b32 s59, s58, 2")
    g(f"s_add_u32 s59, s59, s{sSPLIT}")
    if MLC:
        g(f"s_lshl_b32 s59, s59, 3")
        g(f"s_add_u32 s59, s59, s{sX if LOCAL else sB}")
    g(f"s_lshl_b32 s59, s59, 7")
    g(f"s_add_u32 s59, s59, {WS_ML8 if MLC else WS_ML}")
    g(f"s_lshl_b32 s58, s58, 14")
    g(f"s_lshl_b32 s60, s{sSPLIT}, 9")
    g(f"s_add_u32 s58, s58, s60")
    g(f"s_add_u32 s60, s58, {WS_RO}")
    g(f"s_add_u32 s61, s58, {WS_RO + 4096}")
    g(f"s_add_u32 s62, s58, {WS_RO + 8192}")
    g(f"s_add_u32 s63, s58, {WS_RO + 12288}")
    g("v_lshrrev_b32 v50, 5, v0")
    g("v_and_b32 v51, 31, v0")
    g("v_lshlrev_b32 v48, 11, v50")
    g("v_lshl_add_u32 v48, v51, 4, v48")
    g("v_and_b32 v49, 3, v0")
    g("v_lshl_add_u32 v49, v49, 1, v50")
    g("v_lshlrev_b32 v49, 4, v49")
    g("s_mov_b32 s71, 15")
    g("s_mov_b32 s68, 0")
    g(f"s_mov_b32 s57, {4 if GFIRST else GEAGER}")
    g("s_mov_b32 s70, 0x40000")
    if dbg: g("s_mov_b32 s87, 0")
    g.label("L_pollr")
    if dbg: g("s_add_u32 s87, s87, 1")
    g("s_andn2_b32 s69, s71, s68")
    g("s_bcnt1_i32_b32 s69, s69")
    g(f"s_cmp_le_u32 s69, s57")
    g("s_cselect_b32 s69, 15, s68")
    g(f"s_mov_b32 s57, {GEAGER}")
    g("s_and_b32 s69, s69, s71")
    g("s_cmp_eq_u32 s68, 15")
    g("s_cbranch_scc1 L_pr4")
    g(f"buffer_load_dwordx4 {vr(72,4)}, v49, s[{sWSs}:{sWSs+3}], s59 offen sc1")
    g.label("L_pr4")
    for s_ in range(4):
        g(f"s_bitcmp1_b32 s69, {s_}")
        g(f"s_cbranch_scc0 L_pr{s_}")
        g(f"buffer_load_dwordx4 {vr(56+4*s_,4)}, v48, s[{sWSs}:{sWSs+3}], s{60+s_} offen sc1")
        g.label(f"L_pr{s_}")
    g("s_waitcnt vmcnt(0)")
    tagchk(52, 72, True, 53, 54)
    g("v_cmp_eq_u32 vcc, 0, v52")
    g("s_and_b32 s68, vcc_lo, vcc_hi")
    g("s_and_b32 s68, s68, 15")
    for s_ in range(4):
        g(f"s_bitcmp1_b32 s69, {s_}")
        g(f"s_cbranch_scc0 L_pq{s_}")
        tagchk(52, 56+4*s_, True, 53, 54)
        g("v_cmp_ne_u32 vcc, 0, v52")
        g(f"s_cbranch_vccnz L_pq{s_}")
        g(f"s_bitset0_b32 s71, {s_}")
        g.label(f"L_pq{s_}")
    g("s_xor_b32 s69, s68, 15")
    g("s_or_b32 s69, s69, s71")
    g("s_cmp_eq_u32 s69, 0")
    g("s_cbranch_scc1 L_rok")
    if RSLEEP:
        g(f"s_sleep {RSLEEP}")
    g("s_sub_u32 s70, s70, 1")
    g("s_cmp_lg_u32 s70, 0")
    g("s_cbranch_scc1 L_pollr")
    g.label("L_rok")
    g.stamp(9)
    gmath(56, 72, 52, 76)
    g(f"s_lshl_b32 s58, s{sWAVE}, 8")
    g(f"s_add_u32 s58, s58, {L_OBUF}")
    g(f"v_lshl_add_u32 v50, v51, 3, s58")
    g("ds_write_b64 v50, v[52:53]")
    g("s_waitcnt lgkmcnt(0)")
    g.c("barrier 3")
    g("s_barrier")
    g.stamp(10)
    g(f"s_cmp_ge_u32 s{sWAVE}, 4")
    g("s_cbranch_scc1 L_fin")
    g("v_and_b32 v9, 7, v0")
    g("v_lshlrev_b32 v9, 8, v9")
    g("v_lshl_add_u32 v9, v3, 4, v9")
    for kb in range(4):
        g(f"ds_read_b128 {vr(48+4*kb,4)}, v9 offset:{L_OBUF + kb*64}")
    g("v_lshlrev_b32 v8, 17, v2")
    g("v_lshl_add_u32 v8, v3, 4, v8")
    g(f"s_lshl_b32 s{sU}, s{sHW}, 3")
    g(f"s_add_u32 s{sU}, s{sU}, s{sX if LOCAL else sB}")
    g(f"s_lshl_b32 s{sU}, s{sU}, 12")
    if LOCAL:
        g(f"s_lshl_b32 s{sU2}, s{sA_}, 6")
        g("v_cmp_eq_u32 vcc, 1, v31")
    else:
        g(f"s_lshl_b32 s{sU2}, s{sX}, 2")
        g(f"s_add_u32 s{sU2}, s{sU2}, s{sSPLIT}")
        g(f"s_lshl_b32 s{sU2}, s{sU2}, 6")
    g(f"s_add_u32 s{sU}, s{sU}, s{sU2}")
    g(f"s_add_u32 s{sU}, s{sU}, {WS_PAB}")
    g("v_cmp_gt_u32 s[66:67], 8, v2")
    g("s_waitcnt lgkmcnt(0)")
    for kb in range(4):
        srcc = "0" if kb == 0 else "v[64:67]"
        g(f"v_mfma_f32_16x16x32_bf16 v[64:67], {vr(32+4*kb,4)}, {vr(48+4*kb,4)}, {srcc}")
    g("s_nop 7")
    g("s_nop 3")
    for i in range(4):
        tagit(64+i, 64+i, i)
    g("s_mov_b64 exec, s[66:67]")
    if LOCAL:
        g("s_cbranch_vccz L_PAs")
        g(f"buffer_store_dwordx4 v[64:67], v8, s[{sWSs}:{sWSs+3}], s{sU} offen")
        g("s_branch L_PAd")
        g.label("L_PAs")
    g(f"buffer_store_dwordx4 v[64:67], v8, s[{sWSs}:{sWSs+3}], s{sU} offen sc1")
    g.label("L_PAd")
    g("s_mov_b64 exec, -1")
    g.stamp(11)
    g(f"s_cmp_lg_u32 s{sHW}, 0")
    g("s_cbranch_scc1 L_fin")
    g.srd(sA, P_OUT, 8192)
    inbox_reduce("a", 0, 64, ASLEEP, 24)
    g(f"s_lshl_b32 s{sU}, s{sB}, 10")
    g(f"s_lshl_b32 s{sU2}, s{sX}, 7")
    g(f"s_add_u32 s{sU}, s{sU}, s{sU2}")
    g(f"s_lshl_b32 s{sU2}, s{sSPLIT}, 5")
    g(f"s_add_u32 s{sU}, s{sU}, s{sU2}")
    g("v_lshlrev_b32 v8, 3, v0")
    for i in range(4):
        g(f"v_cvt_pk_bf16_f32 v{16+i}, v{24+i}, v{12+i}")
    for i in range(4):
        g(f"v_lshlrev_b32 v{20+i}, 16, v{16+i}")
        g(f"v_and_b32 v{24+i}, 0xffff0000, v{16+i}")
    for i in range(4):
        g(f"v_mul_f32 v{20+i}, v10, v{20+i}")
        g(f"v_mul_f32 v{24+i}, v11, v{24+i}")
    for i in range(4):
        g(f"v_cvt_pk_bf16_f32 v{16+i}, v{20+i}, v{24+i}")
    for i in range(4):
        g(f"v_lshlrev_b32 v{20+i}, 16, v{16+i}")
        g(f"v_and_b32 v{24+i}, 0xffff0000, v{16+i}")
    for i in range(4):
        g(f"v_add_f32 v{20+i}, v{20+i}, v{24+i}")
    g("v_cvt_pk_bf16_f32 v16, v20, v21")
    g("v_cvt_pk_bf16_f32 v17, v22, v23")
    g("s_mov_b64 exec, 15")
    g(f"buffer_store_dwordx2 v[16:17], v8, s[{sA}:{sA+3}], s{sU} offen")
    g("s_cmp_lg_u32 s2, 0")
    g("s_cbranch_scc1 L_noep")
    g("s_mov_b64 exec, 1")
    g(f"buffer_store_dword v{vTag}, v8, s[{sWSs}:{sWSs+3}], 0 offen offset:{WS_EPOCH} sc1")
    g.label("L_noep")
    if dbg:
        g("s_waitcnt vmcnt(0)")
    g.stamp(12)
    g.label("L_fin")
    g.stamp_out(sWSs)
    g.label("L_end")
    g("s_endpgm")
    g.o.append('.section .rodata,"a"')
    g.o.append(".p2align 6")
    g.o.append(f".amdhsa_kernel {KN}")
    for l in ("next_free_vgpr 256", "next_free_sgpr 96", "accum_offset 128", "group_segment_fixed_size 0",
              "kernarg_size 104", "user_sgpr_count 2", "user_sgpr_kernarg_segment_ptr 1",
              "system_sgpr_workgroup_id_x 1"):
        g.o.append("  .amdhsa_" + l)
    g.o.append(".end_amdhsa_kernel")
    return "\n".join(g.o) + "\n"


if __name__ == "__main__":
    out = sys.argv[1] if len(sys.argv) > 1 else "k4.s"
    open(out, "w").write(gen(dbg=int(sys.argv[2]) if len(sys.argv) > 2 else 0))
```

```python
import sys, os
E = lambda k, d: int(os.environ.get(k, str(d)))
KN = "gated_mix__gqa_block_cached__geglu_ffn__decode_kernel"

WS_EPOCH = 0
WS_QG = 0x300000
WS_HP = 0x380000
WS_ML = 0x60000
WS_HX = 0x70000
WS_RO = 0x80000
WS_RF = 0x100000
WS_PAB = 0x200000
WS_SIZE = 0x1000000

L_H = 131072
L_QBUF = L_H
L_ZERO = L_H + 2048
L_CTL = L_H + 2304
L_FLAG = L_CTL
L_FLAG2 = L_CTL + 20
L_FLAG3 = L_CTL + 24
L_KD = L_CTL + 32
L_MW = L_CTL + 64
L_FW = L_CTL + 128
L_ST = L_H + 4096
L_AST = L_H + 20480
L_OBUF2 = L_H + 28672
L_OBUF = L_H + 30720
LDS_TOTAL = 163840

PACE = E("PACE", 885)
PACE1 = E("PACE1", PACE)
POFF = E("POFF", 0)
PFREE = E("PFREE", 1)
ANCH = E("ANCH", 0)
POFF0 = E("POFF0", 2480)
TCONT = E("TCONT", 0)
SPRIO = E("SPRIO", 0)
JD = E("JD", 58)
JD2 = E("JD2", 116)
WDT = E("WDT", 320)
WOF = E("WOF", 0)
HB = E("HB", 2)
POFFB = E("POFFB", 1400)
PACEV = E("PACEV", PACE)
WOT = E("WOT", 155)
JS2 = E("JS2", 16)
JS = E("JS", 0)
J2T = E("J2T", 265)
QT = E("QT", 380)
RT = E("RT", 900)
HT = E("HT", 1300)
MLD = E("MLD", 100)
BST = E("BST", 4096)
MEXPR = os.environ.get("MEXPR", "g&15")
assert MEXPR == "g&15"
QSLEEP0 = E("QSLEEP0", 100)
QSP = E("QSP", 32)
QS1 = E("QS1", 8)
HXS = E("HXS", 2)
ADELAY = E("ADELAY", 16)
ASLEEP = E("ASLEEP", 1)
GD = E("GD", 4)
GDH = E("GDH", 0)
RSLEEP = E("RSLEEP", 1)
LIGHT = E("LIGHT", 0)
WMAP = int(os.environ.get("WMAP", "0"), 16)
GPOL = os.environ.get("GPOL", "sc1")
QPOL = os.environ.get("QPOL", "sc1")
RDUP = E("RDUP", 0)
FAST = E("FAST", 8)
PT = E("PT", 3300)
FPOL = os.environ.get("FPOL", "nt")
FINV = os.environ.get("FINV", "")
WPOL = "nt"
KPOL = "nt"
MINIT = 0xf149f2ca

def carry_table():
    T = []
    for cb in range(8):
        c = [4*x + s for x in range(8) for s in range(2) if not (s == 1 and (x & 3) == (cb & 3))]
        assert len(set(c)) == 14
        T.append(sum(1 << h for h in c))
    return T
CTAB = carry_table()


class G:
    def __init__(self):
        self.o = []
    def __call__(self, s):
        self.o.append("    " + s)
    def label(self, s):
        self.o.append(s + ":")
    def c(self, s):
        self.o.append("    ; " + s)
    def stamp(self, i):
        if LIGHT and i == 12:
            self("s_waitcnt vmcnt(0)")
            self("s_memrealtime s[90:91]")
            self("s_lshl_b32 s74, s2, 9")
            self("s_add_u32 s74, s74, 0x180000")
            self("s_mov_b64 exec, 1")
            self("v_mov_b32 v1, 0")
            self("v_mov_b32 v2, s96")
            self("s_waitcnt lgkmcnt(0)")
            self("v_mov_b32 v3, s90")
            self("buffer_store_dwordx2 v[2:3], v1, s[16:19], s74 offen")
        if not self.stamps: return
        self("s_memrealtime s[90:91]")
        self("s_waitcnt lgkmcnt(0)")
        self(f"s_mov_b32 s{72+i}, s90")
    def stamp_out(self, sWSs):
        if not self.stamps: return
        self("s_lshl_b32 s90, s2, 9")
        self("s_lshl_b32 s91, s3, 6")
        self("s_add_u32 s90, s90, s91")
        self("s_add_u32 s90, s90, 0x180000")
        self("s_mov_b64 exec, 1")
        self("v_mov_b32 v1, 0")
        for i in range(16):
            self(f"v_mov_b32 v2, s{72+i}")
            self(f"buffer_store_dword v2, v1, s[{sWSs}:{sWSs+3}], s90 offen offset:{4*i}")
            self("s_nop 1")
    def srd(self, d, p, nbytes):
        self(f"s_mov_b32 s{d}, s{p}")
        self(f"s_and_b32 s{d+1}, s{p+1}, 0xffff")
        self(f"s_mov_b32 s{d+2}, {nbytes:#x}")
        self(f"s_mov_b32 s{d+3}, 0x20000")


def vr(a, n=1):
    return f"v{a}" if n == 1 else f"v[{a}:{a+n-1}]"
def ar(a, n=1):
    return f"a{a}" if n == 1 else f"a[{a}:{a+n-1}]"


def gen(dbg=0):
    g = G()
    g.stamps = dbg
    g.o.append(f"; @launch grid=(256,1,1) block=(512,1,1) lds={LDS_TOTAL}")
    g.o.append('.amdgcn_target "amdgcn-amd-amdhsa--gfx950"')
    g.o.append(".text")
    g.o.append(f".globl {KN}")
    g.o.append(".p2align 8")
    g.o.append(f".type {KN},@function")
    g.label(KN)
    P_X, P_K, P_V, P_WQ, P_WO, P_WG, P_WU, P_WD, P_GW, P_OUT, P_DBG, P_WS = 32, 34, 36, 38, 40, 44, 46, 48, 50, 52, 54, 56
    sWAVE, sX, sPA, sB, sSPLIT = 3, 4, 5, 6, 7
    sKs, sVs, sWSs = 8, 12, 16
    sTag, sPAIR = 88, 89
    sSEL = 92
    sT0 = 96
    sPX, sG = 67, 68
    vTag = 126
    TAGSTEP = 0x01010101

    def ctab(dst, sel):
        g(f"s_mov_b32 s{dst}, {CTAB[0]:#x}")
        for k in range(1, 8):
            g(f"s_cmp_eq_u32 s{sel}, {k}")
            g(f"s_cselect_b32 s{dst}, {CTAB[k]:#x}, s{dst}")
    def tagit(dst, src, i):
        g(f"v_perm_b32 v{dst}, v{src}, v{vTag}, s{sSEL+i}")
    def tagchk(acc, r, first, t0, t1):
        g(f"v_perm_b32 v{t0}, v{r+1}, v{r}, s64")
        g(f"v_perm_b32 v{t1}, v{r+3}, v{r+2}, s65")
        if first:
            g(f"v_or_b32 v{acc}, v{t0}, v{t1}")
            g(f"v_xor_b32 v{acc}, v{vTag}, v{acc}")
        else:
            g(f"v_or_b32 v{t0}, v{t0}, v{t1}")
            g(f"v_xor_b32 v{t0}, v{vTag}, v{t0}")
            g(f"v_or_b32 v{acc}, v{acc}, v{t0}")
    def ldswait(lbl, vaddr, vtmp, slp, bound=0x40000, off=0):
        g(f"s_mov_b32 s70, {bound:#x}")
        g.label(lbl)
        g(f"ds_read_b32 v{vtmp}, v{vaddr} offset:{off}")
        g("s_sub_u32 s70, s70, 1")
        g("s_waitcnt lgkmcnt(0)")
        g(f"v_cmp_ne_u32 vcc, 1, v{vtmp}")
        g(f"s_cbranch_vccz {lbl}ok")
        if slp: g(f"s_sleep {slp}")
        g("s_cmp_lg_u32 s70, 0")
        g(f"s_cbranch_scc1 {lbl}")
        g.label(lbl + "ok")
    def consts():
        for i in range(4):
            g(f"s_mov_b32 s{sSEL+i}, {0x07060500 | i:#x}")
        g("s_mov_b32 s64, 0x0c0c0400")
        g("s_mov_b32 s65, 0x04000c0c")

    g("s_cmp_ge_u32 s2, 256")
    g("s_cbranch_scc1 L_end")
    g("s_load_dwordx16 s[32:47], s[0:1], 0")
    g("s_load_dwordx2 s[56:57], s[0:1], 96")
    g("s_load_dwordx8 s[48:55], s[0:1], 64")
    g(f"s_memrealtime s[{sT0}:{sT0+1}]")
    g("v_lshrrev_b32 v1, 6, v0")
    g("v_and_b32 v0, 63, v0")
    g(f"v_readfirstlane_b32 s{sWAVE}, v1")
    g(f"s_and_b32 s{sX}, s2, 7")
    g(f"s_lshr_b32 s{sB}, s2, 5")
    g(f"s_bfe_u32 s{sSPLIT}, s2, 0x20003")
    g(f"s_lshl3_add_u32 s{sPAIR}, s{sB}, s{sX}")
    if WMAP:
        g(f"s_lshl_b32 s{sWAVE}, s{sWAVE}, 2")
        g(f"s_lshr_b32 s{sWAVE}, {WMAP:#x}, s{sWAVE}")
        g(f"s_and_b32 s{sWAVE}, s{sWAVE}, 7")
    if dbg:
        for i in range(16): g(f"s_mov_b32 s{72+i}, 0")
    g.stamp(0)
    g(f"s_cmp_lt_u32 s{sWAVE}, 4")
    g("s_cbranch_scc1 L_H")
    sSW = 29
    g(f"s_sub_u32 s{sSW}, s{sWAVE}, 4")

    vIoff, vVoff, vKrd, vVrd = 2, 122, 8, 12
    vStW, vStR = 6, 7
    vM, vMx = 20, 21
    vD = 24
    vP01 = 28
    vT = 36
    vF = 48
    vAcc = 80
    vOA, vDump, vMa = 116, 119, 118
    sT, sIA, sRK, sIss, sTmp, sCnt, sLog2e, sScale, sDel = 20, 21, 22, 23, 24, 25, 26, 27, 28
    sSwd, sTmp2 = 30, 31
    sAcc, sDl, sAnc, sIU, sEnd = 58, 59, 60, 61, 62
    g.c("---- S wave setup ----")
    if SPRIO: g(f"s_setprio {SPRIO}")
    g(f"s_lshl_b32 s{sRK}, s{sSW}, 15")
    g("v_and_b32 v44, 15, v0")
    g("v_lshrrev_b32 v45, 4, v0")
    for i in range(4):
        g(f"v_add_u32 v46, {4*i}, v45")
        g("v_xor_b32 v46, v44, v46")
        g("v_lshlrev_b32 v46, 4, v46")
        g(f"v_lshl_add_u32 v{vIoff+i}, v45, 8, v46")
    g(f"s_lshl_b32 s{sT}, s{sPAIR}, 4")
    g(f"s_and_b32 s{sTmp}, s{sPAIR}, 15")
    g(f"s_or_b32 s{sT}, s{sT}, s{sTmp}")
    g(f"s_lshl_b32 s{sT}, s{sT}, 17")
    free = [b_ for b_ in range(12, 17) if (1 << b_) != BST]
    assert free[1] == free[0] + 1 and free[3] == free[2] + 1
    g(f"s_lshl_b32 s{sTmp}, s{sSW}, {free[0]}")
    g(f"s_or_b32 s{sT}, s{sT}, s{sTmp}")
    g(f"s_lshl_b32 s{sTmp}, s{sSPLIT}, {free[2]}")
    g(f"s_or_b32 s{sT}, s{sT}, s{sTmp}")
    g("s_waitcnt lgkmcnt(0)")
    g.srd(sKs, P_K, 0x8000000)

    def loads(agpr=None):
        for k in range(4):
            if agpr is None:
                g(f"buffer_load_dwordx4 v{vIoff+k}, s[{sKs}:{sKs+3}], s{sTmp} offen offset:{k*1024} {KPOL} lds")
            else:
                g(f"buffer_load_dwordx4 {ar(agpr+4*k,4)}, v{vIoff+k}, s[{sKs}:{sKs+3}], s{sTmp} offen offset:{k*1024} {KPOL}")
    npace = [0]
    def pace(step, fresh):
        n = npace[0]; npace[0] += 1
        g(f"s_add_u32 s{sAcc}, s{sAcc}, {step}")
        g(f"s_lshr_b32 s{sDl}, s{sAcc}, 4")
        g(f"s_add_u32 s{sDl}, s{sDl}, s{sAnc}")
        if fresh:
            g(f"s_sub_u32 s90, s90, s{sDl}")
            g("s_cmp_ge_i32 s90, 0")
            g(f"s_cbranch_scc1 L_pg{n}")
        g.label(f"L_pc{n}")
        g("s_memrealtime s[90:91]")
        g("s_waitcnt lgkmcnt(0)")
        g(f"s_sub_u32 s90, s90, s{sDl}")
        g("s_cmp_lt_i32 s90, 0")
        g(f"s_cbranch_scc1 L_pc{n}")
        g.label(f"L_pg{n}")
    HSLOT = (3, 0, 1, 2)
    def headB(n):
        u, j = n >> 1, n & 1
        if u < 4 or u >= 6:
            g(f"s_add_u32 m0, s{sRK}, {(HSLOT[u] if u < 4 else u % 3)*8192 + j*4096}")
        g(f"s_xor_b32 s{sTmp}, s{sT}, {(u << 17) | (j*BST):#x}")
        loads(64 + 16*(n - 8) if u in (4, 5) else None)
    for i in range(PFREE):
        headB(i)
    g(f"s_load_dword s{sTag}, s[{P_WS}:{P_WS+1}], {WS_EPOCH}")
    g.c("barrier 0")
    g("s_barrier")
    g(f"s_mov_b32 s{sAnc}, s{sT0}")
    g(f"s_mov_b32 s{sAcc}, {(PFREE - 1) * PACE1 + POFF0}")
    for i in range(2):
        g(f"v_add_u32 v46, {4*i}, v45")
        g("v_lshlrev_b32 v46, 1, v46")
        g("v_xor_b32 v46, v44, v46")
        g("v_lshlrev_b32 v46, 4, v46")
        g(f"v_lshl_add_u32 v{vVoff+i}, v45, 8, v46")
    g.srd(sWSs, P_WS, WS_SIZE)
    for c in range(4):
        g(f"v_add_u32 v46, {4*c}, v45")
        g("v_xor_b32 v46, v44, v46")
        g("v_lshlrev_b32 v46, 4, v46")
        g("v_lshl_add_u32 v46, v44, 8, v46")
        g(f"v_add_u32 v{vKrd+c}, s{sRK}, v46")
    g("v_lshrrev_b32 v46, 2, v0")
    g("v_and_b32 v47, 7, v46")
    g("v_lshlrev_b32 v46, 8, v46")
    g("v_and_b32 v43, 3, v0")
    g("v_lshl_add_u32 v46, v43, 3, v46")
    g(f"s_add_u32 s{sTmp}, s{sRK}, {(16 % 3) * 8192}")
    g(f"v_add_u32 v46, s{sTmp}, v46")
    for db in range(8):
        g(f"v_xor_b32 v43, {db}, v47")
        g(f"v_lshl_add_u32 v{vVrd+db}, v43, 5, v46")
    g("v_and_b32 v43, 3, v0")
    g("v_lshlrev_b32 v43, 8, v43")
    g("v_lshl_add_u32 v43, v45, 4, v43")
    g(f"v_add_u32 v43, {L_QBUF}, v43")
    g("v_bfe_u32 v42, v0, 2, 1")
    g(f"v_mov_b32 v41, {L_ZERO}")
    g(f"v_mov_b32 v{vMx}, {MINIT:#x}")
    for j in range(2):
        g(f"v_cmp_eq_u32 vcc, {j}, v42")
        g("s_nop 1")
        g(f"v_cndmask_b32 v{vT+j}, v41, v43, vcc")
    if dbg >= 2: g("v_mov_b32 v120, 0")
    for i in range(32):
        g(f"v_mov_b32 v{vAcc+i}, 0")
    g("v_lshlrev_b32 v46, 9, v44")
    g("v_lshl_add_u32 v46, v45, 4, v46")
    g(f"s_lshl_b32 s{sTmp}, s{sSW}, 11")
    g(f"s_add_u32 s{sTmp}, s{sTmp}, {L_AST}")
    g(f"v_add_u32 v{vOA}, s{sTmp}, v46")
    g(f"s_lshl_b32 s{sTmp}, s{sSW}, 4")
    g(f"s_add_u32 s{sTmp}, s{sTmp}, {L_MW}")
    g(f"v_lshl_add_u32 v{vMa}, v0, 2, s{sTmp}")
    g("v_cmp_gt_u32 s[38:39], 4, v44")
    g(f"v_lshl_add_u32 v{vDump}, v0, 4, s{sRK}")
    g("v_and_b32 v46, 7, v0")
    g("v_lshl_add_u32 v46, v45, 3, v46")
    g(f"s_add_u32 s{sTmp}, s{sRK}, 24576")
    g(f"v_lshl_add_u32 v{vStW}, v46, 3, s{sTmp}")
    g(f"v_mov_b32 v{vStR}, v{vStW}")
    g(f"s_mov_b32 s{sLog2e}, 0x3fb8aa3b")
    g(f"s_mov_b32 s{sScale}, 0x3db504f3")
    g(f"s_mov_b32 s{sCnt}, 0")
    g(f"s_add_u32 s{sEnd}, s{sRK}, 16384")
    g("s_movk_i32 s63, 8192")
    for r_ in (112, 113, 114, 115): g(f"v_mov_b32 v{r_}, 0")
    consts()
    g(f"v_mov_b32 v47, {L_FLAG3}")
    for i in range(PFREE, 12):
        if i >= 4: g("s_waitcnt vmcnt(12)")
        pace(PACE1 + (POFFB if i == HB else 0), False)
        headB(i)
    g(f"s_add_u32 s{sTag}, s{sTag}, {TAGSTEP:#x}")
    g(f"v_mov_b32 v{vTag}, s{sTag}")
    g.stamp(1)
    ldswait("L_wq", 47, 46, 1, 0x100000)
    g.stamp(2)
    for j in range(2):
        for c in range(4):
            g(f"ds_read_b128 {ar(16*j+4*c,4)}, v{vT+j} offset:{c*64}")
    if ANCH:
        g("ds_read_b32 v46, v47 offset:4")
    g(f"s_add_u32 s{sAcc}, s{sAcc}, {POFF}")
    g("s_waitcnt vmcnt(16) lgkmcnt(0)")
    if ANCH:
        g(f"v_readfirstlane_b32 s{sAnc}, v46")
        g(f"s_sub_u32 s{sAnc}, s{sAnc}, s{sT0}")
        g(f"s_min_i32 s{sAnc}, s{sAnc}, 0")
        g(f"s_max_i32 s{sAnc}, s{sAnc}, -400")
        g(f"s_add_u32 s{sAnc}, s{sAnc}, s{sT0}")

    def qk(j):
        for c in range(4):
            srcc = "0" if (c == 0 and j == 0) else vr(vD, 4)
            g(f"v_mfma_f32_16x16x32_bf16 {vr(vD,4)}, {vr(vF+16*j+4*c,4)}, {ar(16*j+4*c,4)}, {srcc}")
    def unpack():
        e = vT
        g(f"v_lshlrev_b32 v{e}, 16, v{vT+4}")
        g(f"v_and_b32 v{e+1}, 0xffff0000, v{vT+4}")
        g(f"v_lshlrev_b32 v{e+2}, 16, v{vT+5}")
        g(f"v_and_b32 v{e+3}, 0xffff0000, v{vT+5}")
    def scores(off):
        e = vT
        g(f"v_cvt_pk_bf16_f32 v{vT+4}, v{vD}, v{vD+1}")
        g(f"v_cvt_pk_bf16_f32 v{vT+5}, v{vD+2}, v{vD+3}")
        unpack()
        for i in range(4):
            g(f"v_mul_f32 v{e+i}, s{sScale}, v{e+i}")
        g(f"v_cvt_pk_bf16_f32 v{vT+4}, v{e}, v{e+1}")
        g(f"v_cvt_pk_bf16_f32 v{vT+5}, v{e+2}, v{e+3}")
        g(f"v_max3_f32 v{vMx}, v{e}, v{e+1}, v{vMx}")
        g(f"ds_write_b64 v{vStW}, {vr(vT+4,2)} offset:{off}")
        g(f"v_max3_f32 v{vMx}, v{e+2}, v{e+3}, v{vMx}")
    def trace():
        if dbg >= 2:
            g("s_memrealtime s[90:91]")
            g("s_waitcnt lgkmcnt(0)")
            g(f"s_mov_b32 m0, s{sCnt}")
            g(f"v_writelane_b32 v120, s90, m0")
            g(f"s_add_u32 s{sCnt}, s{sCnt}, 1")
    for u in range(6):
        if u < 4:
            for j in range(2):
                for c in range(4):
                    g(f"ds_read_b128 {vr(vF+16*j+4*c,4)}, v{vKrd+c} offset:{HSLOT[u]*8192 + j*4096}")
        else:
            g(f"s_waitcnt vmcnt({(20, 16)[u-4]})")
            for j in range(2):
                for k in range(4):
                    g(f"ds_write_b128 v{vDump}, {ar(64+32*(u-4)+16*j+4*k,4)} offset:{28672 + k*1024}")
                for c in range(4):
                    g(f"ds_read_b128 {vr(vF+16*j+4*c,4)}, v{vKrd+c} offset:28672")
        g(f"s_waitcnt lgkmcnt({4 if u < 4 else 8})")
        qk(0)
        g("s_waitcnt lgkmcnt(0)")
        qk(1)
        if 1 <= u <= 4:
            pace(PACE, False)
            headB(11 + u)
        else:
            g("s_nop 7")
            g("s_nop 3")
        scores(u*256)
        trace()
    g(f"v_add_u32 v{vStW}, {6*256}, v{vStW}")
    g(f"s_mov_b32 s{sIU}, {8 << 17:#x}")
    g(f"s_add_u32 s{sIss}, s{sRK}, {(8 % 3) * 8192}")

    def issue(j, PACE=PACE):
        g(f"s_add_u32 m0, s{sIss}, {j*4096}")
        if j == 0:
            g(f"s_xor_b32 s{sIA}, s{sT}, s{sIU}")
            g(f"s_mov_b32 s{sTmp}, s{sIA}")
        else:
            g(f"s_add_u32 s{sTmp}, s{sIA}, {BST}")
        pace(PACE, True)
        loads()
    def advance():
        g(f"s_add_u32 s{sIU}, s{sIU}, {1 << 17:#x}")
        g(f"s_cmp_eq_u32 s{sIss}, s{sEnd}")
        g(f"s_cselect_b32 s{sTmp2}, {-16384 & 0xffffffff:#x}, s63")
        g(f"s_add_u32 s{sIss}, s{sIss}, s{sTmp2}")
        g(f"s_cmp_eq_u32 s{sIss}, s{sEnd}")
        g(f"s_cselect_b32 s{sDel}, {-16384 & 0xffffffff:#x}, s63")
    g.label("L_K")
    for j in range(2):
        g("s_waitcnt vmcnt(12)")
        for c in range(4):
            g(f"ds_read_b128 {vr(vF+16*j+4*c,4)}, v{vKrd+c} offset:{j*4096}")
        g("s_memrealtime s[90:91]")
        g("s_waitcnt lgkmcnt(0)")
        qk(j)
        issue(j)
    advance()
    for c in range(4):
        g(f"v_add_u32 v{vKrd+c}, s{sDel}, v{vKrd+c}")
    scores(0)
    g(f"v_add_u32 v{vStW}, 256, v{vStW}")
    trace()
    g(f"s_cmp_eq_u32 s{sIU}, {2 << 17:#x}")
    g("s_cbranch_scc1 L_Kend")
    g(f"s_cmp_lg_u32 s{sIU}, {16 << 17:#x}")
    g("s_cbranch_scc1 L_K")
    g(f"s_mov_b32 s{sKs}, s{P_V}")
    g(f"s_and_b32 s{sKs+1}, s{P_V+1}, 0xffff")
    for k in range(4):
        g(f"v_mov_b32 v{vIoff+k}, v{vVoff+(k&1)}")
    g(f"s_mov_b32 s{sIU}, 0")
    g("s_branch L_K")
    g.label("L_Kend")
    g(f"v_cvt_pk_bf16_f32 v{vMx}, v{vMx}, v{vMx}")
    g(f"v_and_b32 v{vMx}, 0xffff0000, v{vMx}")
    g(f"v_mul_f32 v{vT+6}, s{sLog2e}, v{vMx}")
    g("s_nop 1")
    g(f"v_max_f32_dpp v{vT+7}, v{vT+6}, v{vT+6} row_ror:4 row_mask:0xf bank_mask:0xf")
    g(f"v_mov_b32 v{vT+6}, v{vT+7}")
    g("s_nop 1")
    g(f"v_permlane16_swap_b32 v{vT+6}, v{vT+7}")
    g(f"v_max_f32 v{vT+6}, v{vT+6}, v{vT+7}")
    g(f"v_mov_b32 v{vT+7}, v{vT+6}")
    g("s_nop 1")
    g(f"v_permlane32_swap_b32 v{vT+6}, v{vT+7}")
    g(f"v_max_f32 v{vM}, v{vT+6}, v{vT+7}")
    g(f"s_lshl2_add_u32 s{sTmp}, s{sSW}, {L_KD}")
    g(f"v_mov_b32 v{vT+6}, s{sTmp}")
    g(f"v_mov_b32 v{vT+7}, 1")
    g("s_mov_b64 exec, 15")
    g(f"ds_write_b32 v{vMa}, v{vM}")
    g(f"ds_write_b32 v{vT+6}, v{vT+7}")
    g("s_mov_b64 exec, -1")
    g.stamp(7)
    def bodyV(tail):
        g(f"ds_read_b64 {vr(vT+4,2)}, v{vStR}")
        g(f"v_add_u32 v{vStR}, 256, v{vStR}")
        g("s_waitcnt lgkmcnt(0)")
        e = vT
        unpack()
        for i in range(4):
            g(f"v_fma_f32 v{e+i}, v{e+i}, s{sLog2e}, -v{vM}")
        for i in range(4):
            g(f"v_exp_f32 v{e+i}, v{e+i}")
        g("s_nop 0")
        g(f"v_cvt_pk_bf16_f32 v{vP01}, v{e}, v{e+1}")
        g(f"v_cvt_pk_bf16_f32 v{vP01+1}, v{e+2}, v{e+3}")
        g("s_nop 1")
        g(f"v_mov_b32_dpp v{vP01+2}, v{vP01} row_ror:12 row_mask:0xf bank_mask:0xf")
        g(f"v_mov_b32_dpp v{vP01+3}, v{vP01+1} row_ror:12 row_mask:0xf bank_mask:0xf")
        for j in range(2):
            g(f"s_waitcnt vmcnt({12 if not tail else 12 - 8*(tail-1) - 4*j})")
            for db in range(8):
                g(f"ds_read_b64_tr_b16 {vr(vF+4*db+2*j,2)}, v{vVrd+db} offset:{j*4096}")
            if not tail:
                g("s_memrealtime s[90:91]")
                g("s_waitcnt lgkmcnt(0)")
                if j:
                    for db in range(8):
                        g(f"v_mfma_f32_16x16x32_bf16 {vr(vAcc+4*db,4)}, {vr(vF+4*db,4)}, {vr(vP01,4)}, {vr(vAcc+4*db,4)}")
                issue(j, PACEV)
        if tail < 2:
            advance()
            for db in range(8):
                g(f"v_add_u32 v{vVrd+db}, s{sDel}, v{vVrd+db}")
        if tail:
            for hlf in range(2):
                g(f"s_waitcnt lgkmcnt({4 - 4*hlf})")
                for db in range(4*hlf, 4*hlf + 4):
                    g(f"v_mfma_f32_16x16x32_bf16 {vr(vAcc+4*db,4)}, {vr(vF+4*db,4)}, {vr(vP01,4)}, {vr(vAcc+4*db,4)}")
        trace()
    g.label("L_V")
    bodyV(0)
    g(f"s_cmp_lg_u32 s{sIU}, {16 << 17:#x}")
    g("s_cbranch_scc1 L_V")
    g.stamp(11)
    bodyV(1)
    bodyV(2)
    g.stamp(3)
    if dbg >= 2:
        g("s_lshl_b32 s90, s2, 2")
        g(f"s_add_u32 s90, s90, s{sSW}")
        g("s_lshl_b32 s90, s90, 8")
        g("s_add_u32 s90, s90, 0x1a0000")
        g("v_lshlrev_b32 v121, 2, v0")
        g(f"buffer_store_dword v120, v121, s[{sWSs}:{sWSs+3}], s90 offen")
    g("s_mov_b64 exec, s[38:39]")
    g("s_nop 2")
    for db in range(8):
        if db == 4: g("s_nop 2")
        g(f"ds_write_b128 v{vOA}, {vr(vAcc+4*db,4)} offset:{db*64}")
    g("s_mov_b64 exec, -1")
    g("s_waitcnt lgkmcnt(0)")
    g.c("barrier 2")
    g("s_barrier")
    g.stamp(4)
    g("s_branch L_gather")

    g.label("L_H")
    sHW = sWAVE
    sA, sBs = 24, 28
    sU, sU2 = 58, 59
    nwt = [0]
    def waitt(ticks, slp=4):
        if ticks <= 0: return
        n = nwt[0]; nwt[0] += 1
        g.label(f"L_wt{n}")
        g(f"s_sleep {slp}")
        g("s_memrealtime s[90:91]")
        g("s_waitcnt lgkmcnt(0)")
        g(f"s_sub_u32 s90, s90, s{sT0}")
        g(f"s_cmp_lt_u32 s90, {ticks}")
        g(f"s_cbranch_scc1 L_wt{n}")
    def hregs():
        g("v_lshrrev_b32 v6, 2, v2")
        g("v_lshl_add_u32 v6, v3, 3, v6")
        g("v_lshlrev_b32 v6, 7, v6")
        g("v_and_b32 v7, 3, v0")
        g("v_lshl_add_u32 v6, v7, 3, v6")
        consts()
    g("v_and_b32 v2, 15, v0")
    g("v_lshrrev_b32 v3, 4, v0")
    g("v_lshrrev_b32 v4, 3, v0")
    g("v_and_b32 v5, 7, v0")
    g("v_lshlrev_b32 v5, 4, v5")
    g(f"s_cmp_eq_u32 s{sHW}, 1")
    g("s_cbranch_scc1 L_H1")
    g("v_mov_b32 v24, 0")
    g("v_mov_b32 v25, 0")
    g("v_lshlrev_b32 v26, 3, v0")
    g(f"v_add_u32 v26, {L_ZERO}, v26")
    g("ds_write_b64 v26, v[24:25]")
    hregs()
    g("s_waitcnt lgkmcnt(0)")
    g.c("barrier 0")
    g("s_barrier")
    g(f"s_load_dword s{sTag}, s[{P_WS}:{P_WS+1}], {WS_EPOCH}")
    g.srd(sWSs, P_WS, WS_SIZE)
    g("s_waitcnt lgkmcnt(0)")
    g(f"s_add_u32 s{sTag}, s{sTag}, {TAGSTEP:#x}")
    g(f"v_mov_b32 v{vTag}, s{sTag}")
    g(f"s_cmp_eq_u32 s{sHW}, 2")
    g("s_cbranch_scc1 L_H2")
    g(f"s_cmp_eq_u32 s{sHW}, 3")
    g("s_cbranch_scc1 L_H3")
    g.srd(sA, P_X, 8192)
    g.srd(sBs, P_GW, 1024)
    g("v_lshlrev_b32 v8, 4, v0")
    g(f"s_lshl_b32 s{sU2}, s{sB}, 10")
    g(f"buffer_load_dwordx4 v[16:19], v8, s[{sA}:{sA+3}], s{sU2} offen")
    g(f"buffer_load_dwordx4 v[20:23], v8, s[{sBs}:{sBs+3}], 0 offen")
    g("s_waitcnt vmcnt(0)")
    for i in range(4):
        g(f"v_lshlrev_b32 v{24+2*i}, 16, v{16+i}")
        g(f"v_and_b32 v{25+2*i}, 0xffff0000, v{16+i}")
        g(f"v_lshlrev_b32 v{32+2*i}, 16, v{20+i}")
        g(f"v_and_b32 v{33+2*i}, 0xffff0000, v{20+i}")
    for i in range(8):
        g(f"v_mul_f32 v{24+i}, v{24+i}, v{32+i}")
    for i in range(4):
        g(f"v_cvt_pk_bf16_f32 v{32+i}, v{24+2*i}, v{25+2*i}")
    for i in range(4):
        g(f"v_lshlrev_b32 v{24+2*i}, 16, v{32+i}")
        g(f"v_and_b32 v{25+2*i}, 0xffff0000, v{32+i}")
    g("v_add_f32 v24, v24, v25")
    g("v_add_f32 v26, v26, v27")
    g("v_add_f32 v28, v28, v29")
    g("v_add_f32 v30, v30, v31")
    g("v_add_f32 v24, v24, v26")
    g("v_add_f32 v28, v28, v30")
    g("v_add_f32 v24, v24, v28")
    for rot in (1, 2, 4, 8):
        g("s_nop 1")
        g(f"v_add_f32_dpp v25, v24, v24 row_ror:{rot} row_mask:0xf bank_mask:0xf")
        g("v_mov_b32 v24, v25")
    g("s_nop 1")
    g("v_permlane16_swap_b32 v24, v25")
    g("v_add_f32 v24, v24, v25")
    g("v_mov_b32 v25, v24")
    g("s_nop 1")
    g("v_permlane32_swap_b32 v24, v25")
    g("v_add_f32 v24, v24, v25")
    g("v_cvt_pk_bf16_f32 v24, v24, v24")
    g("v_and_b32 v24, 0xffff0000, v24")
    g("v_mul_f32 v24, 0xbfb8aa3b, v24")
    g("v_exp_f32 v24, v24")
    g("s_nop 0")
    g("v_add_f32 v24, 1.0, v24")
    g("v_rcp_f32 v24, v24")
    g("s_nop 0")
    g("v_cvt_pk_bf16_f32 v24, v24, v24")
    g("v_and_b32 v10, 0xffff0000, v24")
    g("v_sub_f32 v11, 1.0, v10")
    g("v_cvt_pk_bf16_f32 v11, v11, v11")
    g("v_and_b32 v11, 0xffff0000, v11")
    g.stamp(1)
    g(f"s_lshl_b32 s{sU}, s{sPAIR}, 13")
    g(f"s_add_u32 s{sU}, s{sU}, {WS_QG}")
    g(f"s_add_u32 s{sU2}, s{sU}, 4096")
    g("v_lshlrev_b32 v26, 4, v0")
    g("v_lshlrev_b32 v25, 3, v0")
    g(f"v_add_u32 v25, {L_QBUF}, v25")
    g("s_mov_b32 s70, 0x40000")
    for rc in range(4):
        g(f"s_mov_b64 s[{40+2*rc}:{41+2*rc}], -1")
    g("v_mov_b32 v12, 1")
    g(f"v_mov_b32 v14, {L_FLAG3}")
    if dbg: g("s_mov_b32 s86, 0")
    waitt(QT, 2)
    if SPRIO: g("s_setprio 3")
    g.stamp(2)
    if QPOL != "sc1":
        for rc in range(4):
            for u in range(2):
                g(f"buffer_load_dwordx4 {vr(32+8*rc+4*u,4)}, v26, s[{sWSs}:{sWSs+3}], s{sU + (rc>>1)} offen offset:{(rc&1)*2048 + u*1024} {QPOL}")
        g("s_branch L_pollqc")
    g.label("L_pollq")
    for rc in range(4):
        g(f"s_mov_b64 exec, s[{40+2*rc}:{41+2*rc}]")
        for u in range(2):
            g(f"buffer_load_dwordx4 {vr(32+8*rc+4*u,4)}, v26, s[{sWSs}:{sWSs+3}], s{sU + (rc>>1)} offen offset:{(rc&1)*2048 + u*1024} sc1")
    g("s_mov_b64 exec, -1")
    g.label("L_pollqc")
    if dbg: g("s_add_u32 s86, s86, 1")
    for rc in range(4):
        g(f"s_waitcnt vmcnt({6-2*rc})")
        tagchk(27, 32+8*rc, True, 28, 29)
        tagchk(27, 36+8*rc, False, 28, 29)
        g(f"v_cmp_ne_u32 s[{40+2*rc}:{41+2*rc}], 0, v27")
    for i in range(8):
        g(f"v_add_f32 v{64+i}, v{32+i}, v{40+i}")
        g(f"v_add_f32 v{72+i}, v{48+i}, v{56+i}")
    g("s_or_b64 s[60:61], s[40:41], s[42:43]")
    g("s_or_b64 s[62:63], s[44:45], s[46:47]")
    g("s_or_b64 vcc, s[60:61], s[62:63]")
    g("s_cbranch_scc0 L_qok")
    if QS1: g(f"s_sleep {QS1}")
    g("s_sub_u32 s70, s70, 1")
    g("s_cmp_lg_u32 s70, 0")
    g("s_cbranch_scc1 L_pollq")
    g.label("L_qok")
    for i in range(8):
        g(f"v_add_f32 v{64+i}, v{64+i}, v{72+i}")
    for i in range(4):
        g(f"v_cvt_pk_bf16_f32 v{72+i}, v{64+2*i}, v{65+2*i}")
    for u in range(2):
        g(f"ds_write_b64 v25, {vr(72+2*u,2)} offset:{u*512}")
    g("ds_write_b32 v14, v12")
    g.stamp(3)
    g("s_branch L_Hbar2")

    g.label("L_H3")
    g(f"s_lshl2_add_u32 s{sG}, s{sX}, s{sSPLIT}")
    g(f"s_cmp_eq_u32 s{sB}, 7")
    g(f"s_cselect_b32 s{sG}, s{sG}, 99")
    g(f"s_cmp_ge_u32 s{sG}, 28")
    g("s_cbranch_scc1 L_Hbar2")
    g("v_lshlrev_b32 v9, 4, v5")
    g("v_lshl_add_u32 v9, v3, 5, v9")
    g("v_bfe_u32 v10, v0, 3, 1")
    g("v_lshl_add_u32 v9, v10, 4, v9")
    g("v_lshlrev_b32 v26, 4, v0")
    g(f"s_lshl_b32 s40, s{sG}, 14")
    g(f"s_add_u32 s40, s40, {WS_HP}")
    for k in range(1, 4):
        g(f"s_add_u32 s{40+k}, s40, {k*4096}")
    g(f"s_lshl_b32 s{sU}, s{sG}, 11")
    g(f"s_add_u32 s{sU}, s{sU}, {WS_HX}")
    g("s_mov_b32 s20, 0x05040c00")
    g("s_mov_b32 s21, 0x07060c01")
    g("s_mov_b32 s22, 0x05040c02")
    g("s_mov_b32 s23, 0x07060c03")
    g("s_mov_b32 s61, 0x3d372713")
    g("s_mov_b32 s63, 0x40135761")
    g("s_mov_b32 s70, 0x8000")
    waitt(RT, 16)
    g.stamp(1)
    g.label("L_rp")
    for pi in range(8):
        for kb in range(2):
            g(f"buffer_load_dwordx4 {vr(32+8*pi+4*kb,4)}, v9, s[{sWSs}:{sWSs+3}], s{40 + (pi>>1)} offen offset:{(pi&1)*2048 + kb*128} sc1")
    g("s_sub_u32 s70, s70, 1")
    g("s_waitcnt vmcnt(0)")
    for k in range(16):
        tagchk(10, 32+4*k, k == 0, 11, 12)
    g("v_cmp_ne_u32 vcc, 0, v10")
    g("s_cbranch_vccz L_rpok")
    g("s_sleep 64")
    g("s_cmp_lg_u32 s70, 0")
    g("s_cbranch_scc1 L_rp")
    g.label("L_rpok")
    GA, UA, T, PK = 32, 64, 96, 104
    for A in (GA, UA):
        for i in range(8):
            g(f"v_add_f32 v{A+i}, v{A+i}, v{A+8+i}")
            g(f"v_add_f32 v{A+16+i}, v{A+16+i}, v{A+24+i}")
        for i in range(8):
            g(f"v_add_f32 v{A+i}, v{A+i}, v{A+16+i}")
    for i in range(4):
        g(f"v_cvt_pk_bf16_f32 v{PK+i}, v{GA+2*i}, v{GA+2*i+1}")
        g(f"v_cvt_pk_bf16_f32 v{PK+4+i}, v{UA+2*i}, v{UA+2*i+1}")
    for i in range(4):
        g(f"v_lshlrev_b32 v{GA+2*i}, 16, v{PK+i}")
        g(f"v_and_b32 v{GA+2*i+1}, 0xffff0000, v{PK+i}")
        g(f"v_lshlrev_b32 v{UA+2*i}, 16, v{PK+4+i}")
        g(f"v_and_b32 v{UA+2*i+1}, 0xffff0000, v{PK+4+i}")
    for i in range(8):
        x = GA + i
        g(f"v_mul_f32 v{T+i}, v{x}, v{x}")
        g(f"v_mul_f32 v{T+i}, v{T+i}, v{x}")
        g(f"v_fma_f32 v{T+i}, v{T+i}, s61, v{x}")
        g(f"v_mul_f32 v{T+i}, s63, v{T+i}")
    for i in range(8):
        g(f"v_exp_f32 v{T+i}, v{T+i}")
    g("s_nop 0")
    for i in range(8):
        g(f"v_add_f32 v{T+i}, 1.0, v{T+i}")
    for i in range(8):
        g(f"v_rcp_f32 v{T+i}, v{T+i}")
    g("s_nop 0")
    for i in range(8):
        g(f"v_sub_f32 v{T+i}, 1.0, v{T+i}")
        g(f"v_mul_f32 v{T+i}, v{GA+i}, v{T+i}")
    for i in range(4):
        g(f"v_cvt_pk_bf16_f32 v{PK+i}, v{T+2*i}, v{T+2*i+1}")
    for i in range(4):
        g(f"v_lshlrev_b32 v{T+2*i}, 16, v{PK+i}")
        g(f"v_and_b32 v{T+2*i+1}, 0xffff0000, v{PK+i}")
    for i in range(8):
        g(f"v_mul_f32 v{T+i}, v{T+i}, v{UA+i}")
    for i in range(4):
        g(f"v_cvt_pk_bf16_f32 v{PK+i}, v{T+2*i}, v{T+2*i+1}")
    for kb in range(2):
        g(f"v_perm_b32 v{GA+4*kb}, v{PK+2*kb}, v{vTag}, s20")
        g(f"v_perm_b32 v{GA+4*kb+1}, v{PK+2*kb}, v{vTag}, s21")
        g(f"v_perm_b32 v{GA+4*kb+2}, v{PK+2*kb+1}, v{vTag}, s22")
        g(f"v_perm_b32 v{GA+4*kb+3}, v{PK+2*kb+1}, v{vTag}, s23")
        g(f"buffer_store_dwordx4 {vr(GA+4*kb,4)}, v26, s[{sWSs}:{sWSs+3}], s{sU} offen offset:{kb*1024} sc1")
    g.stamp(5)
    g("s_branch L_Hbar2")

    g.label("L_H2")
    g("v_lshlrev_b32 v8, 2, v7")
    g(f"v_add_u32 v8, {L_KD}, v8")
    for _ in range(4):
        g("s_sleep 127")
    ldswait("L_kd", 8, 9, 16, 0x10000)
    g.stamp(1)
    g("v_and_b32 v9, 1, v0")
    g("v_lshlrev_b32 v9, 3, v9")
    g(f"v_add_u32 v9, {L_MW}, v9")
    for w in range(4):
        g(f"ds_read_b64 {vr(12+2*w,2)}, v9 offset:{w*16}")
    g("v_lshlrev_b32 v10, 4, v0")
    g("v_add_u32 v10, 24576, v10")
    g("v_add_u32 v11, 0x10000, v10")
    RD = 32
    for w in range(4):
        for k in range(4):
            g(f"ds_read_b128 {vr(RD+16*w+4*k,4)}, v{10 + (w >> 1)} offset:{(w & 1)*32768 + k*1024}")
        if w == 1: g("s_waitcnt lgkmcnt(8)")
    g("s_mov_b32 s20, 0x3fb8aa3b")
    g("v_max3_f32 v20, v12, v14, v16")
    g("v_max3_f32 v21, v13, v15, v17")
    g("v_max_f32 v20, v20, v18")
    g("v_max_f32 v21, v21, v19")
    g("v_and_b32 v20, 0xffffff00, v20")
    g("v_and_b32 v21, 0xffffff00, v21")
    g("v_mov_b32 v22, 0")
    g("v_mov_b32 v23, 0")
    g("s_waitcnt lgkmcnt(0)")
    for c4 in range(16):
        r = RD + 4*c4
        for i in range(4):
            g(f"v_lshlrev_b32 v{24+2*i}, 16, v{r+i}")
            g(f"v_and_b32 v{25+2*i}, 0xffff0000, v{r+i}")
        for i in range(8):
            g(f"v_fma_f32 v{24+i}, v{24+i}, s20, -v{20 + (i >> 2)}")
        for i in range(8):
            g(f"v_exp_f32 v{24+i}, v{24+i}")
        g("s_nop 0")
        for i in range(4):
            g(f"v_add_f32 v{24+2*i}, v{24+2*i}, v{25+2*i}")
        g("v_add_f32 v24, v24, v26")
        g("v_add_f32 v28, v28, v30")
        g("v_add_f32 v22, v22, v24")
        g("v_add_f32 v23, v23, v28")
    for rot in (2, 4, 8):
        g("s_nop 0")
        g(f"v_add_f32_dpp v24, v22, v22 row_ror:{rot} row_mask:0xf bank_mask:0xf")
        g(f"v_add_f32_dpp v25, v23, v23 row_ror:{rot} row_mask:0xf bank_mask:0xf")
        g("v_mov_b32 v22, v24")
        g("v_mov_b32 v23, v25")
    for op in ("v_permlane16_swap_b32", "v_permlane32_swap_b32"):
        g("s_nop 0")
        g(f"{op} v22, v24")
        g(f"{op} v23, v25")
        g("v_add_f32 v22, v22, v24")
        g("v_add_f32 v23, v23, v25")
        g("v_mov_b32 v24, v22")
        g("v_mov_b32 v25, v23")
    tagit(24, 20, 0)
    tagit(25, 22, 1)
    tagit(26, 21, 2)
    tagit(27, 23, 3)
    g(f"s_lshl_b32 s{sU}, s{sPAIR}, 8")
    g(f"s_add_u32 s{sU}, s{sU}, {WS_ML}")
    g(f"s_lshl_b32 s{sU2}, s{sSPLIT}, 6")
    g(f"s_add_u32 s{sU2}, s{sU2}, s{sU}")
    g("v_lshlrev_b32 v8, 4, v7")
    g("s_mov_b64 exec, 15")
    g(f"buffer_store_dwordx4 v[24:27], v8, s[{sWSs}:{sWSs+3}], s{sU2} offen sc1")
    g("s_mov_b64 exec, 0xff")
    g("v_lshrrev_b32 v8, 1, v0")
    g("v_lshlrev_b32 v8, 6, v8")
    g("v_lshl_add_u32 v8, v9, 1, v8")
    g(f"v_subrev_u32 v8, {2*L_MW}, v8")
    g("s_mov_b32 s70, 0x8000")
    if MLD > 48: g(f"s_sleep {MLD - 48}")
    g.label("L_mp")
    g("s_sleep 48")
    g(f"buffer_load_dwordx4 v[24:27], v8, s[{sWSs}:{sWSs+3}], s{sU} offen sc1")
    g("s_sub_u32 s70, s70, 1")
    g("s_waitcnt vmcnt(0)")
    tagchk(28, 24, True, 29, 30)
    g("v_cmp_ne_u32 vcc, 0, v28")
    g("s_cbranch_vccz L_mpok")
    g("s_cmp_lg_u32 s70, 0")
    g("s_cbranch_scc1 L_mp")
    g.label("L_mpok")
    g("v_and_b32 v24, 0xffffff00, v24")
    g("v_and_b32 v26, 0xffffff00, v26")
    def red8(op, dst, src, t):
        g("s_nop 1")
        g(f"{op}_dpp v{t}, v{src}, v{src} quad_perm:[2,3,0,1] row_mask:0xf bank_mask:0xf")
        g("s_nop 1")
        g(f"v_mov_b32_dpp v{dst}, v{t} row_half_mirror row_mask:0xf bank_mask:0xf")
        g("s_nop 1")
        g(f"{op}_dpp v{dst}, v{dst}, v{t} quad_perm:[1,0,3,2] row_mask:0xf bank_mask:0xf")
    red8("v_max_f32", 28, 24, 30)
    red8("v_max_f32", 29, 26, 30)
    g("v_sub_f32 v24, v24, v28")
    g("v_sub_f32 v26, v26, v29")
    g("v_exp_f32 v24, v24")
    g("v_exp_f32 v26, v26")
    g("s_nop 0")
    g("v_mul_f32 v24, v24, v25")
    g("v_mul_f32 v26, v26, v27")
    red8("v_add_f32", 22, 24, 30)
    red8("v_add_f32", 23, 26, 30)
    g("v_rcp_f32 v22, v22")
    g("v_rcp_f32 v23, v23")
    for w in range(4):
        g(f"v_sub_f32 v{32+w}, v{12+2*w}, v28")
        g(f"v_sub_f32 v{36+w}, v{13+2*w}, v29")
    for i in range(8):
        g(f"v_exp_f32 v{32+i}, v{32+i}")
    g("s_nop 0")
    for i in range(8):
        g(f"v_mul_f32 v{32+i}, v{32+i}, v{22 + (i >> 2)}")
    g("v_and_b32 v9, 1, v0")
    g("v_lshlrev_b32 v9, 5, v9")
    g(f"v_add_u32 v9, {L_FW}, v9")
    g("s_mov_b64 exec, 3")
    g("ds_write_b128 v9, v[32:35]")
    g("ds_write_b128 v9, v[36:39] offset:16")
    g("s_mov_b64 exec, -1")
    g("s_waitcnt lgkmcnt(0)")
    g.stamp(5)
    g("s_branch L_Hbar2")

    g.label("L_H1")
    if SPRIO: g("s_setprio 3")
    g("v_lshl_add_u32 v8, v4, 13, v5")
    g("v_lshlrev_b32 v9, 6, v5")
    g("v_lshl_add_u32 v9, v3, 4, v9")
    g(f"s_lshl_b32 s{sU}, s{sSPLIT}, 20")
    g(f"s_lshl3_add_u32 s{sU2}, s{sX}, s{sB}")
    g(f"s_lshl_b32 s{sU2}, s{sU2}, 7")
    g(f"s_add_u32 s{sU}, s{sU}, s{sU2}")
    g(f"s_lshl_b32 s{sU2}, s{sSPLIT}, 8")
    g(f"s_mov_b32 m0, {L_ST}")
    g("s_waitcnt lgkmcnt(0)")
    g.srd(sA, P_WQ, 512 * 4096 * 2)
    g.srd(sBs, P_X, 8192)
    XF, TF, TA = 16, 48, 32
    for i in range(16):
        g(f"buffer_load_dwordx4 v8, s[{sA}:{sA+3}], s{sU} offen {WPOL} lds")
        if i < 15:
            g(f"s_add_u32 m0, m0, 1024")
            g(f"s_add_u32 s{sU}, s{sU}, 65536")
        if i == 3:
            for k in range(4):
                g(f"buffer_load_dwordx4 {vr(XF+4*k,4)}, v9, s[{sBs}:{sBs+3}], s{sU2} offen offset:{k*64}")
    g(f"s_load_dword s{sTag}, s[{P_WS}:{P_WS+1}], {WS_EPOCH}")
    g.c("barrier 0")
    g("s_barrier")
    hregs()
    g.srd(sWSs, P_WS, WS_SIZE)
    g(f"v_add_u32 v9, {L_ST}, v6")
    g("v_bfe_u32 v10, v0, 3, 1")
    g("v_lshlrev_b32 v10, 6, v10")
    g("v_lshl_add_u32 v10, v3, 4, v10")
    g("v_lshl_add_u32 v11, v5, 4, v10")
    g("v_lshl_add_u32 v10, v5, 12, v10")
    g(f"s_lshl2_add_u32 s{sU}, s{sX}, s{sSPLIT}")
    g(f"s_lshl3_add_u32 s{sU}, s{sU}, s{sB}")
    g(f"s_lshl_b32 s{sU}, s{sU}, 8")
    g(f"s_add_u32 s{sU}, s{sU}, {WS_QG}")
    g("s_mov_b32 s62, 0xff00ff00")
    g("s_mov_b32 s63, 0xff00ff00")
    g("s_waitcnt lgkmcnt(0)")
    g(f"s_add_u32 s{sTag}, s{sTag}, {TAGSTEP:#x}")
    g(f"v_mov_b32 v{vTag}, s{sTag}")
    def tile_mm(voff, extra=None):
        for kb in range(4):
            fr = TF + 16 * (kb & 1)
            if extra is not None: g(f"s_waitcnt vmcnt({4*(3-kb) + extra})")
            for ct in range(4):
                g(f"ds_read_b64_tr_b16 {vr(fr+4*ct,2)}, v9 offset:{kb*4096 + ct*32}")
                g(f"ds_read_b64_tr_b16 {vr(fr+4*ct+2,2)}, v9 offset:{kb*4096 + ct*32 + 512}")
            for ct in range(4):
                g(f"s_waitcnt lgkmcnt({6-2*ct})")
                srcc = "0" if kb == 0 else vr(TA+4*ct, 4)
                g(f"v_mfma_f32_16x16x32_bf16 {vr(TA+4*ct,4)}, {vr(fr+4*ct,4)}, {vr(XF+4*kb,4)}, {srcc}")
        g("s_nop 7")
        for s_ in range(2):
            for i in range(4):
                if s_ == 0 and i == 0: g("s_nop 1")
                g(f"v_cndmask_b32 v{TF+4*s_+i}, v{TA+8*s_+i}, v{TA+8*s_+4+i}, s[62:63]")
            for i in range(4):
                tagit(TF+4*s_+i, TF+4*s_+i, i)
            g(f"buffer_store_dwordx4 {vr(TF+4*s_,4)}, v{voff}, s[{sWSs}:{sWSs+3}], s{sU} offen offset:{s_*128} sc1")
    def tile_ld(step, t0, agpr, va):
        waitt(t0, 1)
        for i in range(16):
            if agpr is None:
                g(f"s_mov_b32 m0, {L_ST + i*1024}")
                g(f"buffer_load_dwordx4 v{va}, s[{sA}:{sA+3}], s{sU2} offen {WPOL} lds")
            else:
                g(f"buffer_load_dwordx4 {ar(agpr+4*i,4)}, v{va}, s[{sA}:{sA+3}], s{sU2} offen {WPOL}")
            if i < 15: g(f"s_add_u32 s{sU2}, s{sU2}, {step}")
            if JS and i % 4 == 3 and i < 15: g(f"s_sleep {JS}")
    def tile_put(agpr):
        for i in range(16):
            g(f"ds_write_b128 v14, {ar(agpr+4*i,4)} offset:{i*1024}")
            if i == 7: g("s_waitcnt lgkmcnt(0)")
    def wo_ld():
        g.srd(sA, P_WO, 4096 * 512 * 2)
        g(f"s_lshl2_add_u32 s20, s{sX}, s{sSPLIT}")
        g(f"s_lshl_b32 s20, s20, 17")
        g(f"s_lshl_b32 s{sU2}, s{sB}, 7")
        g(f"s_add_u32 s{sU2}, s20, s{sU2}")
        tile_ld(8192, WOT, 64, 15)
    g("v_lshl_add_u32 v15, v4, 10, v5")
    g("v_lshlrev_b32 v14, 4, v0")
    g(f"v_add_u32 v14, {L_ST}, v14")
    if WOF == 0: wo_ld()
    tile_mm(10, 16 if WOF == 0 else 0)
    if SPRIO: g("s_setprio 0")
    g.stamp(2)
    if WOF == 1: wo_ld()
    g(f"s_cmp_ge_u32 s{sPAIR}, 56")
    g("s_cbranch_scc1 L_H1a")
    g("s_movk_i32 s20, 3584")
    g("v_mul_u32_u24 v8, s20, v4")
    g("v_add_u32 v8, v8, v5")
    g(f"s_mul_i32 s{sU2}, s{sSPLIT}, {128*3584}")
    g(f"s_lshr_b32 s20, s{sPAIR}, 1")
    g("s_lshl_b32 s20, s20, 7")
    g(f"s_add_u32 s{sU2}, s{sU2}, s20")
    g(f"s_bitcmp1_b32 s{sPAIR}, 0")
    g(f"s_cselect_b32 s{sA}, s{P_WU}, s{P_WG}")
    g(f"s_cselect_b32 s{sA+1}, s{P_WU+1}, s{P_WG+1}")
    g(f"s_and_b32 s{sA+1}, s{sA+1}, 0xffff")
    g(f"s_mov_b32 s{sA+2}, {512*1792*2:#x}")
    tile_ld(8*3584, J2T, None, 8)
    g.label("L_H1a")
    if WOF == 2: wo_ld()
    ctab(20, sB)
    g(f"s_lshl2_add_u32 s21, s{sX}, s{sSPLIT}")
    g("s_lshr_b32 s22, s20, s21")
    g("s_and_b32 s22, s22, 1")
    g("s_cbranch_scc0 L_H1b")
    g("s_bfm_b32 s21, s21, 0")
    g("s_and_b32 s20, s20, s21")
    g("s_bcnt1_i32_b32 s20, s20")
    g.srd(sA, P_WD, 1792 * 512 * 2)
    g(f"s_lshl_b32 s{sU}, s20, 17")
    g(f"s_lshl_b32 s{sU2}, s{sB}, 7")
    g(f"s_add_u32 s{sU2}, s{sU}, s{sU2}")
    tile_ld(8192, WDT, 0, 15)
    g.label("L_H1b")
    g("s_waitcnt vmcnt(0)")
    g.stamp(4)
    g(f"s_cmp_ge_u32 s{sPAIR}, 56")
    g("s_cbranch_scc1 L_H1c")
    g(f"s_lshl2_add_u32 s{sU}, s{sPAIR}, s{sSPLIT}")
    g(f"s_lshl_b32 s{sU}, s{sU}, 11")
    g(f"s_add_u32 s{sU}, s{sU}, {WS_HP}")
    tile_mm(11)
    g.stamp(3)
    g.label("L_H1c")
    g("s_cmp_eq_u32 s22, 0")
    g("s_cbranch_scc1 L_H1wo2")
    tile_put(0)
    g("s_lshl_b32 s20, s20, 12")
    g(f"s_add_u32 s20, s20, {WS_HX}")
    g("v_lshl_add_u32 v13, v3, 8, v5")
    g("s_mov_b32 s21, 0x07060302")
    HF, RAW = 16, 64
    for i in range(16):
        g(f"v_mov_b32 v{HF+i}, 0")
    waitt(HT, 16)
    g("s_mov_b64 exec, s[62:63]")
    g("s_mov_b32 s70, 0x8000")
    g.label("L_hp")
    for k in range(8):
        g(f"buffer_load_dwordx4 {vr(RAW+4*k,4)}, v13, s[{sWSs}:{sWSs+3}], s20 offen offset:{(k>>1)*1024 + (k&1)*128} sc1")
    g("s_sub_u32 s70, s70, 1")
    g("s_waitcnt vmcnt(0)")
    for k in range(8):
        tagchk(10, RAW+4*k, k == 0, 11, 12)
    g("v_cmp_ne_u32 vcc, 0, v10")
    g("s_cbranch_vccz L_hok")
    g("s_sleep 64")
    g("s_cmp_lg_u32 s70, 0")
    g("s_cbranch_scc1 L_hp")
    g.label("L_hok")
    for k in range(8):
        g(f"v_perm_b32 v{HF+2*k}, v{RAW+4*k+1}, v{RAW+4*k}, s21")
        g(f"v_perm_b32 v{HF+2*k+1}, v{RAW+4*k+3}, v{RAW+4*k+2}, s21")
    g("s_mov_b64 exec, -1")
    WF = 48
    for t in range(4):
        for kb in range(4):
            g(f"ds_read_b64_tr_b16 {vr(WF+16*t+4*kb,2)}, v9 offset:{kb*4096 + t*32}")
            g(f"ds_read_b64_tr_b16 {vr(WF+2+16*t+4*kb,2)}, v9 offset:{kb*4096 + 512 + t*32}")
        if t == 1:
            g("s_waitcnt lgkmcnt(0)")
    g("v_lshlrev_b32 v10, 2, v5")
    g("v_lshl_add_u32 v10, v3, 4, v10")
    g(f"v_add_u32 v10, {L_OBUF2}, v10")
    g("s_waitcnt lgkmcnt(0)")
    for t in range(4):
        for kb in range(4):
            srcc = "0" if kb == 0 else vr(32+4*t, 4)
            g(f"v_mfma_f32_16x16x32_bf16 {vr(32+4*t,4)}, {vr(WF+16*t+4*kb,4)}, {vr(HF+4*kb,4)}, {srcc}")
    g("s_nop 7")
    g("s_nop 3")
    g("s_mov_b64 exec, s[62:63]")
    for t in range(4):
        g(f"ds_write_b128 v10, {vr(32+4*t,4)} offset:{t*512}")
    g("s_mov_b64 exec, -1")
    g.stamp(1)
    g.label("L_H1wo2")
    tile_put(64)
    g("s_waitcnt vmcnt(0) lgkmcnt(0)")
    g.stamp(5)

    def gaddr():
        g(f"s_lshl3_add_u32 s58, s{sWAVE}, s{sX}")
        g(f"s_lshl_b32 s58, s58, 13")
        g(f"s_lshl_b32 s60, s{sSPLIT}, 9")
        g(f"s_add_u32 s58, s58, s60")
        g(f"s_add_u32 s60, s58, {WS_RO}")
        g(f"s_add_u32 s61, s58, {WS_RO + 4096}")
        g("v_lshrrev_b32 v50, 5, v0")
        g("v_and_b32 v51, 31, v0")
        g("v_lshlrev_b32 v48, 11, v50")
        g("v_lshl_add_u32 v48, v51, 4, v48")
        g(f"s_lshl_b32 s58, s{sWAVE}, 8")
        g(f"s_add_u32 s58, s58, {L_OBUF}")
        g(f"v_lshl_add_u32 v50, v51, 3, s58")
        g("s_mov_b64 s[66:67], -1")
        g("s_mov_b64 s[68:69], -1")
        g("s_mov_b32 s70, 0x40000")
        if FAST: g(f"v_add_u32 v49, {WS_RF - WS_RO:#x}, v48")
        if dbg: g("s_mov_b32 s87, 0")
    g.label("L_Hbar2")
    g(f"s_and_b32 s21, s{sHW}, 1")
    g("s_lshl_b32 s22, s21, 10")
    g(f"s_add_u32 s48, s22, {L_AST}")
    g("v_lshl_add_u32 v116, v0, 4, s48")
    g("v_lshrrev_b32 v120, 5, v0")
    g("v_lshlrev_b32 v120, 4, v120")
    g("s_lshl_b32 s21, s21, 5")
    g(f"s_add_u32 s21, s21, {L_FW}")
    g("v_add_u32 v120, s21, v120")
    g(f"s_lshl2_add_u32 s48, s{sPAIR}, s{sSPLIT}")
    g("s_lshl_b32 s48, s48, 11")
    g("s_add_u32 s48, s48, s22")
    g(f"s_add_u32 s48, s48, {WS_RO}")
    g("v_lshlrev_b32 v121, 4, v0")
    g(f"s_lshl_b32 s{sU}, s{sHW}, 5")
    g(f"s_add_u32 s{sU}, s{sU}, {L_ST}")
    g(f"v_add_u32 v9, s{sU}, v6")
    ctab(20, sB)
    g(f"s_lshl2_add_u32 s22, s{sX}, s{sSPLIT}")
    g("s_bitcmp1_b32 s20, s22")
    g("s_cselect_b32 s98, -1, 0x00ff00ff")
    g("s_mov_b32 s99, s98")
    g("v_lshlrev_b32 v80, 2, v5")
    g("v_lshl_add_u32 v80, v3, 4, v80")
    g(f"s_lshl_b32 s20, s{sHW}, 9")
    g(f"s_add_u32 s20, s20, {L_OBUF2}")
    g("v_add_u32 v80, s20, v80")
    g(f"v_mov_b32 v83, {L_ZERO}")
    g("s_and_b32 vcc_lo, s98, 0xff00ff00")
    g("s_mov_b32 vcc_hi, vcc_lo")
    g("v_cndmask_b32 v80, v83, v80, vcc")
    g("v_lshlrev_b32 v81, 4, v5")
    g(f"v_add_u32 v81, {L_OBUF}, v81")
    g("v_cmp_gt_u32 vcc, 8, v2")
    g("s_nop 1")
    g("v_cndmask_b32 v81, v83, v81, vcc")
    g("v_lshl_add_u32 v81, v3, 4, v81")
    g("v_lshlrev_b32 v82, 6, v2")
    g("v_lshl_add_u32 v82, v3, 4, v82")
    g(f"s_lshl2_add_u32 s49, s{sB}, s{sHW}")
    g("s_lshl_b32 s49, s49, 5")
    g("s_add_u32 s49, s49, s22")
    g("s_lshl_b32 s49, s49, 10")
    g(f"s_add_u32 s49, s49, {WS_PAB}")
    ctab(20, sX)
    g("v_lshrrev_b32 v89, v4, s20")
    g("v_bfe_u32 v90, v0, 2, 1")
    g("v_mov_b32 v91, 0")
    g("v_lshlrev_b32 v93, 10, v4")
    g("v_lshl_add_u32 v93, v7, 4, v93")
    g("v_lshl_add_u32 v93, v90, 9, v93")
    g(f"s_lshl_b32 s21, s{sB}, 6")
    g("v_add_u32 v93, s21, v93")
    for i in range(4):
        g(f"v_bfe_u32 v92, v89, {8*i}, 1")
        g(f"v_cmp_ge_u32 s[{40+2*i}:{41+2*i}], v92, v90")
        g(f"v_add_u32 v{112+i}, {i*8192}, v93")
        for k in range(4):
            tagit(96+4*i+k, 91, k)
    gaddr()
    if FAST:
        g(f"v_add_u32 v122, {WS_RF - WS_RO:#x}, v121")
        if PT:
            g(f"s_cmp_lt_u32 s{sHW}, 2")
            g("s_cbranch_scc1 L_nopt")
            waitt(PT, 16)
            for i in range(4):
                g(f"v_not_b32 v{16+i}, v{vTag}")
            g(f"buffer_store_dwordx4 v[16:19], v122, s[{sWSs}:{sWSs+3}], s48 offen")
            g.label("L_nopt")
    g(f"s_cmp_lt_u32 s{sHW}, 2")
    g.stamp(7)
    g.c("barrier 2")
    g("s_barrier")
    g("s_cbranch_scc1 L_nocomb")
    g("ds_read_b128 v[24:27], v120")
    for w in range(4):
        g(f"ds_read_b128 {vr(56+4*w,4)}, v116 offset:{w*2048}")
    g("s_waitcnt lgkmcnt(2)")
    for i in range(4):
        g(f"v_mul_f32 v{16+i}, v24, v{56+i}")
    for w in range(1, 4):
        if w == 2: g("s_waitcnt lgkmcnt(0)")
        for i in range(4):
            g(f"v_fmac_f32 v{16+i}, v{24+w}, v{56+4*w+i}")
    for i in range(4):
        tagit(16+i, 16+i, i)
    if FAST: g(f"buffer_store_dwordx4 v[16:19], v122, s[{sWSs}:{sWSs+3}], s48 offen")
    g(f"buffer_store_dwordx4 v[16:19], v121, s[{sWSs}:{sWSs+3}], s48 offen sc1")
    g.stamp(8)
    g.label("L_nocomb")
    for kb in range(4):
        g(f"ds_read_b64_tr_b16 {vr(32+4*kb,2)}, v9 offset:{kb*4096}")
        g(f"ds_read_b64_tr_b16 {vr(34+4*kb,2)}, v9 offset:{kb*4096+512}")
    g("ds_read_b128 v[84:87], v80")
    g("s_cbranch_scc1 L_gslp")
    if GDH: g(f"s_sleep {GDH}")
    g("s_branch L_pollr")

    g.label("L_gather")
    g.stamp(8)
    gaddr()
    g.label("L_gslp")
    if GD: g(f"s_sleep {GD}")
    g.label("L_pollr")
    if FAST:
        for s_ in range(2):
            g(f"s_mov_b64 exec, s[{66+2*s_}:{67+2*s_}]")
            g(f"buffer_load_dwordx4 {vr(56+4*s_,4)}, v49, s[{sWSs}:{sWSs+3}], s{60+s_} offen {FPOL}")
        g("s_branch L_pollrc")
    elif GPOL != "sc1":
        for s_ in range(2):
            g(f"buffer_load_dwordx4 {vr(56+4*s_,4)}, v48, s[{sWSs}:{sWSs+3}], s{60+s_} offen {GPOL}")
        g("s_branch L_pollrc")
    g.label("L_pollr2")
    for s_ in range(2):
        g(f"s_mov_b64 exec, s[{66+2*s_}:{67+2*s_}]")
        g(f"buffer_load_dwordx4 {vr(56+4*s_,4)}, v48, s[{sWSs}:{sWSs+3}], s{60+s_} offen sc1")
    g.label("L_pollrc")
    g("s_mov_b64 exec, -1")
    if dbg: g("s_add_u32 s87, s87, 1")
    g("s_waitcnt vmcnt(0)")
    g("v_perm_b32 v52, v57, v56, s64")
    g("v_perm_b32 v53, v59, v58, s65")
    g("v_perm_b32 v54, v61, v60, s64")
    g("v_perm_b32 v55, v63, v62, s65")
    g("v_or_b32 v52, v52, v53")
    g("v_or_b32 v54, v54, v55")
    g(f"v_cmp_ne_u32 s[66:67], v{vTag}, v52")
    g(f"v_cmp_ne_u32 s[68:69], v{vTag}, v54")
    for i in range(4):
        g(f"v_add_f32 v{64+i}, v{56+i}, v{60+i}")
    g("s_or_b64 vcc, s[66:67], s[68:69]")
    g("s_cbranch_scc0 L_rok")
    if RSLEEP: g(f"s_sleep {RSLEEP}")
    g("s_sub_u32 s70, s70, 1")
    if FAST:
        if FINV: g(f"buffer_inv {FINV}")
        g(f"s_and_b32 s58, s70, {FAST - 1}")
        g("s_cbranch_scc1 L_pollr")
    g("s_cmp_lg_u32 s70, 0")
    g("s_cbranch_scc1 L_pollr2")
    g.label("L_rok")
    g.stamp(9)
    g("v_permlane32_swap_b32 v64, v66")
    g("v_permlane32_swap_b32 v65, v67")
    g("v_lshrrev_b32 v53, 3, v0")
    g("v_add_f32 v64, v64, v66")
    g("v_add_f32 v65, v65, v67")
    g("v_and_or_b32 v50, v53, 4, v50")
    g("v_cvt_pk_bf16_f32 v52, v64, v65")
    g("ds_write_b32 v50, v52")
    g("s_waitcnt lgkmcnt(0)")
    g.c("barrier 3")
    g("s_barrier")
    g.stamp(10)
    g(f"s_cmp_ge_u32 s{sWAVE}, 4")
    g("s_cbranch_scc1 L_fin")
    for kb in range(4):
        g(f"ds_read_b128 {vr(48+4*kb,4)}, v81 offset:{kb*64}")
    for kb in range(4):
        g(f"s_waitcnt lgkmcnt({3-kb})")
        g(f"v_mfma_f32_16x16x32_bf16 v[84:87], {vr(32+4*kb,4)}, {vr(48+4*kb,4)}, v[84:87]")
    g("s_mov_b64 exec, s[98:99]")
    g("s_nop 7")
    g("s_nop 2")
    for i in range(4):
        tagit(64+i, 84+i, i)
    g(f"buffer_store_dwordx4 v[64:67], v82, s[{sWSs}:{sWSs+3}], s49 offen sc1")
    g("s_mov_b64 exec, -1")
    g.stamp(11)
    g(f"s_cmp_lg_u32 s{sHW}, 0")
    g("s_cbranch_scc1 L_fin")
    g.srd(sA, P_OUT, 8192)
    g(f"s_lshl2_add_u32 s{sU2}, s{sX}, s{sSPLIT}")
    g(f"s_lshl_b32 s{sU2}, s{sU2}, 15")
    g(f"s_add_u32 s{sU2}, s{sU2}, {WS_PAB}")
    g("s_mov_b32 s70, 0x40000")
    g(f"s_lshl_b32 s{sU}, s{sB}, 10")
    g(f"s_lshl_b32 s20, s{sX}, 7")
    g(f"s_add_u32 s{sU}, s{sU}, s20")
    g(f"s_lshl_b32 s20, s{sSPLIT}, 5")
    g(f"s_add_u32 s{sU}, s{sU}, s20")
    g("v_cmp_eq_u32 vcc, 0, v90")
    g("v_lshrrev_b32 v124, 5, v0")
    g("v_bfe_u32 v125, v0, 4, 1")
    g("v_cndmask_b32 v123, v11, v10, vcc")
    g("v_lshl_add_u32 v124, v125, 1, v124")
    g("v_lshl_add_u32 v124, v7, 2, v124")
    g("v_lshlrev_b32 v124, 1, v124")
    if ADELAY > 1:
        g(f"s_sleep {ADELAY - 1}")
    g.label("L_pollia")
    for i in range(4):
        g(f"s_mov_b64 exec, s[{40+2*i}:{41+2*i}]")
        g(f"buffer_load_dwordx4 {vr(96+4*i,4)}, v{112+i}, s[{sWSs}:{sWSs+3}], s{sU2} offen sc1")
    g("s_mov_b64 exec, -1")
    g("s_waitcnt vmcnt(0)")
    for i in range(4):
        tagchk(24, 96+4*i, i == 0, 25, 26)
    g("v_cmp_ne_u32 vcc, 0, v24")
    g("s_cbranch_vccz L_ioka")
    g(f"s_sleep {ASLEEP}")
    g("s_sub_u32 s70, s70, 1")
    g("s_cmp_lg_u32 s70, 0")
    g("s_cbranch_scc1 L_pollia")
    g.label("L_ioka")
    g.stamp(13)
    for i in range(4):
        g(f"v_add_f32 v{16+i}, v{96+i}, v{100+i}")
        g(f"v_add_f32 v{20+i}, v{104+i}, v{108+i}")
    for i in range(4):
        g(f"v_add_f32 v{16+i}, v{16+i}, v{20+i}")
    g("s_nop 0")
    g("v_permlane32_swap_b32 v16, v17")
    g("v_permlane32_swap_b32 v18, v19")
    g("v_add_f32 v16, v16, v17")
    g("v_add_f32 v18, v18, v19")
    g("s_nop 1")
    g("v_permlane16_swap_b32 v16, v18")
    g("v_add_f32 v16, v16, v18")
    g("s_nop 1")
    g("v_add_f32_dpp v17, v16, v16 row_ror:8 row_mask:0xf bank_mask:0xf")
    g("v_cvt_pk_bf16_f32 v17, v17, v17")
    g("v_and_b32 v17, 0xffff0000, v17")
    g("v_mul_f32 v17, v123, v17")
    g("v_cvt_pk_bf16_f32 v17, v17, v17")
    g("v_and_b32 v17, 0xffff0000, v17")
    g("s_nop 1")
    g("v_add_f32_dpp v16, v17, v17 row_ror:4 row_mask:0xf bank_mask:0xf")
    g("v_cvt_pk_bf16_f32 v16, v16, v16")
    g("s_mov_b32 exec_lo, 0x000f000f")
    g("s_mov_b32 exec_hi, 0x000f000f")
    g(f"buffer_store_short v16, v124, s[{sA}:{sA+3}], s{sU} offen")
    g("v_mov_b32 v8, 0")
    g("s_cmp_lg_u32 s2, 0")
    g("s_cbranch_scc1 L_noep")
    g("s_mov_b64 exec, 1")
    g(f"buffer_store_dword v{vTag}, v8, s[{sWSs}:{sWSs+3}], 0 offen offset:{WS_EPOCH} sc1")
    g.label("L_noep")
    if dbg:
        g("s_waitcnt vmcnt(0)")
    g.stamp(12)
    g.label("L_fin")
    g.stamp_out(sWSs)
    g.label("L_end")
    g("s_endpgm")
    g.o.append('.section .rodata,"a"')
    g.o.append(".p2align 6")
    g.o.append(f".amdhsa_kernel {KN}")
    for l in ("next_free_vgpr 256", "next_free_sgpr 100", "accum_offset 128", "group_segment_fixed_size 0",
              "kernarg_size 104", "user_sgpr_count 2", "user_sgpr_kernarg_segment_ptr 1",
              "system_sgpr_workgroup_id_x 1"):
        g.o.append("  .amdhsa_" + l)
    g.o.append(".end_amdhsa_kernel")
    return "\n".join(g.o) + "\n"


if __name__ == "__main__":
    out = sys.argv[1] if len(sys.argv) > 1 else "k16.s"
    open(out, "w").write(gen(dbg=int(sys.argv[2]) if len(sys.argv) > 2 else 0))
```

```python
import sys, os
E = lambda k, d: int(os.environ.get(k, str(d)))
KN = "gated_mix__gqa_block_cached__geglu_ffn__decode_kernel"

WS_EPOCH = 0
WS_QG = 0x300000
WS_HP = 0x380000
WS_ML = 0x60000
WS_HX = 0x70000
WS_RO = 0x80000
WS_RF = 0x100000
WS_TS = 0x50000
WS_PAB = 0x200000
WS_SIZE = 0x1000000

L_H = 131072
L_QBUF = L_H
L_ZERO = L_H + 2048
L_CTL = L_H + 2304
L_FLAG = L_CTL
L_FLAG2 = L_CTL + 20
L_FLAG3 = L_CTL + 24
L_KD = L_CTL + 32
L_MW = L_CTL + 64
L_FW = L_CTL + 128
L_ST = L_H + 4096
L_AST = L_H + 20480
L_OBUF2 = L_H + 28672
L_OBUF = L_H + 30720
LDS_TOTAL = 163840

PACE = E("PACE", 895)
PACE1 = E("PACE1", PACE)
POFF = E("POFF", 0)
PFREE = E("PFREE", 1)
ANCH = E("ANCH", 0)
POFF0 = E("POFF0", 1600)
TCONT = E("TCONT", 0)
SPRIO = E("SPRIO", 0)
JD = E("JD", 58)
JD2 = E("JD2", 116)
WDT = E("WDT", 265)
WOF = E("WOF", 0)
HB = E("HB", 2)
POFFB = E("POFFB", 1400)
PACEV = E("PACEV", PACE)
WOT = E("WOT", 155)
JS2 = E("JS2", 16)
JS = E("JS", 0)
J2T = E("J2T", 210)
QT = E("QT", 380)
RT = E("RT", 900)
HT = E("HT", 1300)
MLD = E("MLD", 100)
BST = E("BST", 4096)
MEXPR = os.environ.get("MEXPR", "g&15")
assert MEXPR == "g&15"
QSLEEP0 = E("QSLEEP0", 100)
QSP = E("QSP", 32)
QS1 = E("QS1", 8)
HXS = E("HXS", 2)
ADELAY = E("ADELAY", 16)
ASLEEP = E("ASLEEP", 1)
GD = E("GD", 4)
GDH = E("GDH", 0)
RSLEEP = E("RSLEEP", 1)
LIGHT = E("LIGHT", 0)
WMAP = int(os.environ.get("WMAP", "0"), 16)
GPOL = os.environ.get("GPOL", "sc1")
QPOL = os.environ.get("QPOL", "sc1")
RDUP = E("RDUP", 0)
FAST = E("FAST", 8)
PT = E("PT", 3300)
FPOL = os.environ.get("FPOL", "nt")
FINV = os.environ.get("FINV", "")
WOE = E("WOE", 1)
WOD = E("WOD", 1000)
LAG = E("LAG", 79)
NOX = E("NOX", 0)
UL = E("UL", 2)
HWIN = E("HWIN", 2*UL)
POFFV = E("POFFV", 0)
ZU = E("ZU", 8)
DZ = E("DZ", 0)
HZ = E("HZ", 0)
KU = E("KU", 12)
HK = E("HK", 0)
PL = E("PL", 5)
LF = E("LF", 0)
FOFF = 0x400000
IPF = E("IPF", 2)
TMA = E("TMA", 1)
TMO = E("TMO", 0)
FT = E("FT", 0)
FMIN = E("FMIN", 4)
WPOL = "nt"
KPOL = "nt"
MINIT = 0xf149f2ca

CT = sum(1 << (4*x + j) for x in range(8) for j in range(2) if x + 8*j < 14)


class G:
    def __init__(self):
        self.o = []
    def __call__(self, s):
        self.o.append("    " + s)
    def label(self, s):
        self.o.append(s + ":")
    def c(self, s):
        self.o.append("    ; " + s)
    def stamp(self, i):
        if LIGHT and i == 12:
            self("s_waitcnt vmcnt(0)")
            self("s_memrealtime s[90:91]")
            self("s_lshl_b32 s74, s2, 9")
            self("s_add_u32 s74, s74, 0x180000")
            self("s_mov_b64 exec, 1")
            self("v_mov_b32 v1, 0")
            self("v_mov_b32 v2, s96")
            self("s_waitcnt lgkmcnt(0)")
            self("v_mov_b32 v3, s90")
            self("buffer_store_dwordx2 v[2:3], v1, s[16:19], s74 offen")
        if not self.stamps: return
        self("s_memrealtime s[90:91]")
        self("s_waitcnt lgkmcnt(0)")
        self(f"s_mov_b32 s{72+i}, s90")
    def stamp_out(self, sWSs):
        if not self.stamps: return
        self("s_mov_b32 s72, s96")
        self("s_lshl_b32 s90, s2, 9")
        self("s_lshl_b32 s91, s3, 6")
        self("s_add_u32 s90, s90, s91")
        self("s_add_u32 s90, s90, 0x180000")
        self("s_mov_b64 exec, 1")
        self("v_mov_b32 v1, 0")
        for i in range(16):
            self(f"v_mov_b32 v2, s{72+i}")
            self(f"buffer_store_dword v2, v1, s[{sWSs}:{sWSs+3}], s90 offen offset:{4*i}")
            self("s_nop 1")
    def srd(self, d, p, nbytes):
        self(f"s_mov_b32 s{d}, s{p}")
        self(f"s_and_b32 s{d+1}, s{p+1}, 0xffff")
        self(f"s_mov_b32 s{d+2}, {nbytes:#x}")
        self(f"s_mov_b32 s{d+3}, 0x20000")


def vr(a, n=1):
    return f"v{a}" if n == 1 else f"v[{a}:{a+n-1}]"
def ar(a, n=1):
    return f"a{a}" if n == 1 else f"a[{a}:{a+n-1}]"


def gen(dbg=0):
    g = G()
    g.stamps = dbg
    g.o.append(f"; @launch grid=(256,1,1) block=(512,1,1) lds={LDS_TOTAL}")
    g.o.append('.amdgcn_target "amdgcn-amd-amdhsa--gfx950"')
    g.o.append(".text")
    g.o.append(f".globl {KN}")
    g.o.append(".p2align 8")
    g.o.append(f".type {KN},@function")
    g.label(KN)
    P_X, P_K, P_V, P_WQ, P_WO, P_WG, P_WU, P_WD, P_GW, P_OUT, P_DBG, P_WS = 32, 34, 36, 38, 40, 44, 46, 48, 50, 52, 54, 56
    sWAVE, sX, sPA, sB, sSPLIT = 3, 4, 5, 6, 7
    sKs, sVs, sWSs = 8, 12, 16
    sTag, sPAIR = 88, 89
    sSEL = 92
    sT0 = 96
    sPX, sG = 67, 68
    vTag = 126
    TAGSTEP = 0x01010101

    def ctab(dst, sel):
        g(f"s_mov_b32 s{dst}, {CT:#x}")
    def tagit(dst, src, i):
        g(f"v_perm_b32 v{dst}, v{src}, v{vTag}, s{sSEL+i}")
    def tagchk(acc, r, first, t0, t1):
        g(f"v_perm_b32 v{t0}, v{r+1}, v{r}, s64")
        g(f"v_perm_b32 v{t1}, v{r+3}, v{r+2}, s65")
        if first:
            g(f"v_or_b32 v{acc}, v{t0}, v{t1}")
            g(f"v_xor_b32 v{acc}, v{vTag}, v{acc}")
        else:
            g(f"v_or_b32 v{t0}, v{t0}, v{t1}")
            g(f"v_xor_b32 v{t0}, v{vTag}, v{t0}")
            g(f"v_or_b32 v{acc}, v{acc}, v{t0}")
    def ldswait(lbl, vaddr, vtmp, slp, bound=0x40000, off=0):
        g(f"s_mov_b32 s70, {bound:#x}")
        g.label(lbl)
        g(f"ds_read_b32 v{vtmp}, v{vaddr} offset:{off}")
        g("s_sub_u32 s70, s70, 1")
        g("s_waitcnt lgkmcnt(0)")
        g(f"v_cmp_ne_u32 vcc, 1, v{vtmp}")
        g(f"s_cbranch_vccz {lbl}ok")
        if slp: g(f"s_sleep {slp}")
        g("s_cmp_lg_u32 s70, 0")
        g(f"s_cbranch_scc1 {lbl}")
        g.label(lbl + "ok")
    def consts():
        for i in range(4):
            g(f"s_mov_b32 s{sSEL+i}, {0x07060500 | i:#x}")
        g("s_mov_b32 s64, 0x0c0c0400")
        g("s_mov_b32 s65, 0x04000c0c")

    g("s_cmp_ge_u32 s2, 256")
    g("s_cbranch_scc1 L_end")
    g("s_load_dwordx16 s[32:47], s[0:1], 0")
    g("s_load_dwordx2 s[56:57], s[0:1], 96")
    g("s_load_dwordx8 s[48:55], s[0:1], 64")
    g(f"s_memrealtime s[{sT0}:{sT0+1}]")
    g("v_lshrrev_b32 v1, 6, v0")
    g("v_and_b32 v0, 63, v0")
    g(f"v_readfirstlane_b32 s{sWAVE}, v1")
    g(f"s_and_b32 s{sX}, s2, 7")
    g(f"s_lshr_b32 s{sB}, s2, 5")
    g(f"s_bfe_u32 s{sSPLIT}, s2, 0x20003")
    g(f"s_lshl3_add_u32 s{sPAIR}, s{sB}, s{sX}")
    if WMAP:
        g(f"s_lshl_b32 s{sWAVE}, s{sWAVE}, 2")
        g(f"s_lshr_b32 s{sWAVE}, {WMAP:#x}, s{sWAVE}")
        g(f"s_and_b32 s{sWAVE}, s{sWAVE}, 7")
    if dbg:
        for i in range(16): g(f"s_mov_b32 s{72+i}, 0")
    g(f"s_cmp_lt_u32 s{sWAVE}, 4")
    g("s_cbranch_scc1 L_H")
    sSW = 29
    g(f"s_sub_u32 s{sSW}, s{sWAVE}, 4")

    vIoff, vVoff, vKrd, vVrd = 2, 122, 8, 12
    vStW, vStR = 6, 7
    vM, vMx = 20, 21
    vD = 24
    vP01 = 28
    vT = 36
    vF = 48
    vAcc = 80
    vOA, vDump, vMa = 116, 119, 118
    sT, sIA, sRK, sIss, sTmp, sCnt, sLog2e, sScale, sDel = 20, 21, 22, 23, 24, 25, 26, 27, 28
    sSwd, sTmp2 = 30, 31
    sAcc, sDl, sAnc, sIU, sEnd = 58, 59, 60, 61, 62
    g.c("---- S wave setup ----")
    if SPRIO: g(f"s_setprio {SPRIO}")
    g(f"s_lshl_b32 s{sRK}, s{sSW}, 15")
    g("v_and_b32 v44, 15, v0")
    g("v_lshrrev_b32 v45, 4, v0")
    for i in range(4):
        g(f"v_add_u32 v46, {4*i}, v45")
        g("v_xor_b32 v46, v44, v46")
        g("v_lshlrev_b32 v46, 4, v46")
        g(f"v_lshl_add_u32 v{vIoff+i}, v45, 8, v46")
    g(f"s_lshl_b32 s{sT}, s{sPAIR}, 4")
    g(f"s_and_b32 s{sTmp}, s{sPAIR}, 15")
    g(f"s_or_b32 s{sT}, s{sT}, s{sTmp}")
    g(f"s_lshl_b32 s{sT}, s{sT}, 17")
    free = [b_ for b_ in range(12, 17) if (1 << b_) != BST]
    assert free[1] == free[0] + 1 and free[3] == free[2] + 1
    g(f"s_lshl_b32 s{sTmp}, s{sSW}, {free[0]}")
    g(f"s_or_b32 s{sT}, s{sT}, s{sTmp}")
    g(f"s_lshl_b32 s{sTmp}, s{sSPLIT}, {free[2]}")
    g(f"s_or_b32 s{sT}, s{sT}, s{sTmp}")
    g("s_waitcnt lgkmcnt(0)")
    g.srd(sKs, P_K, 0x8000000)

    def loads(agpr=None):
        for k in range(4):
            if agpr is None:
                g(f"buffer_load_dwordx4 v{vIoff+k}, s[{sKs}:{sKs+3}], s{sTmp} offen offset:{k*1024} {KPOL} lds")
            else:
                g(f"buffer_load_dwordx4 {ar(agpr+4*k,4)}, v{vIoff+k}, s[{sKs}:{sKs+3}], s{sTmp} offen offset:{k*1024} {KPOL}")
    npace = [0]
    def pace(step, fresh):
        n = npace[0]; npace[0] += 1
        g(f"s_add_u32 s{sAcc}, s{sAcc}, {step}")
        g(f"s_lshr_b32 s{sDl}, s{sAcc}, 4")
        g(f"s_add_u32 s{sDl}, s{sDl}, s{sAnc}")
        if fresh:
            g(f"s_sub_u32 s90, s90, s{sDl}")
            g("s_cmp_ge_i32 s90, 0")
            g(f"s_cbranch_scc1 L_pg{n}")
        g.label(f"L_pc{n}")
        g("s_memrealtime s[90:91]")
        g("s_waitcnt lgkmcnt(0)")
        g(f"s_sub_u32 s90, s90, s{sDl}")
        g("s_cmp_lt_i32 s90, 0")
        g(f"s_cbranch_scc1 L_pc{n}")
        g.label(f"L_pg{n}")
        if dbg >= 2:
            g("s_mov_b32 s91, m0")
            g(f"s_mov_b32 m0, s{sCnt}")
            g("v_writelane_b32 v120, s90, m0")
            g("s_mov_b32 m0, s91")
            g(f"s_add_u32 s{sCnt}, s{sCnt}, 1")
    HSLOT = (3, 0, 1, 2)
    def headB(n):
        u, j = n >> 1, n & 1
        if u < 4 or u >= 6:
            g(f"s_add_u32 m0, s{sRK}, {(HSLOT[u] if u < 4 else u % 3)*8192 + j*4096}")
        g(f"s_xor_b32 s{sTmp}, s{sT}, {(u << 17) | (j*BST):#x}")
        loads(64 + 16*(n - 8) if u in (4, 5) else None)
    for i in range(PFREE):
        headB(i)
    g.stamp(5)
    g(f"s_load_dword s{sTag}, s[{P_WS}:{P_WS+1}], {WS_EPOCH}")
    g("s_branch L_S2")
    ins_at = len(g.o)
    g.label("L_S2")
    g.c("barrier 0")
    g("s_barrier")
    if dbg:
        g("s_waitcnt vmcnt(0)")
        g.stamp(6)
    g(f"s_mov_b32 s{sAnc}, s{sT0}")
    g(f"s_mov_b32 s{sAcc}, {(PFREE - 1) * PACE1 + POFF0}")
    for i in range(2):
        g(f"v_add_u32 v46, {4*i}, v45")
        g("v_lshlrev_b32 v46, 1, v46")
        g("v_xor_b32 v46, v44, v46")
        g("v_lshlrev_b32 v46, 4, v46")
        g(f"v_lshl_add_u32 v{vVoff+i}, v45, 8, v46")
    g.srd(sWSs, P_WS, WS_SIZE)
    for c in range(4):
        g(f"v_add_u32 v46, {4*c}, v45")
        g("v_xor_b32 v46, v44, v46")
        g("v_lshlrev_b32 v46, 4, v46")
        g("v_lshl_add_u32 v46, v44, 8, v46")
        g(f"v_add_u32 v{vKrd+c}, s{sRK}, v46")
    g("v_lshrrev_b32 v46, 2, v0")
    g("v_and_b32 v47, 7, v46")
    g("v_lshlrev_b32 v46, 8, v46")
    g("v_and_b32 v43, 3, v0")
    g("v_lshl_add_u32 v46, v43, 3, v46")
    g(f"s_add_u32 s{sTmp}, s{sRK}, {(16 % 3) * 8192}")
    g(f"v_add_u32 v46, s{sTmp}, v46")
    for db in range(8):
        g(f"v_xor_b32 v43, {db}, v47")
        g(f"v_lshl_add_u32 v{vVrd+db}, v43, 5, v46")
    g("v_and_b32 v43, 3, v0")
    g("v_lshlrev_b32 v43, 8, v43")
    g("v_lshl_add_u32 v43, v45, 4, v43")
    g(f"v_add_u32 v43, {L_QBUF}, v43")
    g("v_bfe_u32 v42, v0, 2, 1")
    g(f"v_mov_b32 v41, {L_ZERO}")
    g(f"v_mov_b32 v{vMx}, {MINIT:#x}")
    for j in range(2):
        g(f"v_cmp_eq_u32 vcc, {j}, v42")
        g("s_nop 1")
        g(f"v_cndmask_b32 v{vT+j}, v41, v43, vcc")
    if dbg >= 2: g("v_mov_b32 v120, 0")
    for i in range(32):
        g(f"v_mov_b32 v{vAcc+i}, 0")
    g("v_lshlrev_b32 v46, 9, v44")
    g("v_lshl_add_u32 v46, v45, 4, v46")
    g(f"s_lshl_b32 s{sTmp}, s{sSW}, 11")
    g(f"s_add_u32 s{sTmp}, s{sTmp}, {L_AST}")
    g(f"v_add_u32 v{vOA}, s{sTmp}, v46")
    g(f"s_lshl_b32 s{sTmp}, s{sSW}, 4")
    g(f"s_add_u32 s{sTmp}, s{sTmp}, {L_MW}")
    g(f"v_lshl_add_u32 v{vMa}, v0, 2, s{sTmp}")
    g("v_cmp_gt_u32 s[38:39], 4, v44")
    g(f"v_lshl_add_u32 v{vDump}, v0, 4, s{sRK}")
    g("v_and_b32 v46, 7, v0")
    g("v_lshl_add_u32 v46, v45, 3, v46")
    g(f"s_add_u32 s{sTmp}, s{sRK}, 24576")
    g(f"v_lshl_add_u32 v{vStW}, v46, 3, s{sTmp}")
    g(f"v_mov_b32 v{vStR}, v{vStW}")
    g(f"s_mov_b32 s{sLog2e}, 0x3fb8aa3b")
    g(f"s_mov_b32 s{sScale}, 0x3db504f3")
    g(f"s_mov_b32 s{sCnt}, 0")
    g(f"s_add_u32 s{sEnd}, s{sRK}, 16384")
    g("s_movk_i32 s63, 8192")
    for r_ in (112, 113, 114, 115): g(f"v_mov_b32 v{r_}, 0")
    consts()
    g(f"v_mov_b32 v47, {L_FLAG3}")
    for i in range(PFREE, 12):
        if i >= HWIN: g(f"s_waitcnt vmcnt({4*HWIN - 4})")
        pace(PACE1 + (POFFB if i == HB else 0), False)
        headB(i)
    g(f"s_add_u32 s{sTag}, s{sTag}, {TAGSTEP:#x}")
    g(f"v_mov_b32 v{vTag}, s{sTag}")
    g.stamp(1)
    ldswait("L_wq", 47, 46, 1, 0x100000)
    g.stamp(2)
    for j in range(2):
        for c in range(4):
            g(f"ds_read_b128 {ar(16*j+4*c,4)}, v{vT+j} offset:{c*64}")
    if LAG:
        g("ds_read_b32 v46, v47 offset:4")
    g(f"s_add_u32 s{sAcc}, s{sAcc}, {POFF}")
    g("s_waitcnt vmcnt(16) lgkmcnt(0)")
    PK_, PV_ = PACE, PACEV
    if LAG:
        g("v_readfirstlane_b32 s42, v46")
        if TMA:
            g(f"s_sub_u32 s42, s42, s{sT0}")
            if TMO: g(f"s_add_u32 s42, s42, {TMO}")
            g("s_min_i32 s42, s42, 200")
            g("s_max_i32 s42, s42, -200")
            if TMA == 2:
                g(f"s_add_u32 s{sAnc}, s{sT0}, s42")
                g("s_mov_b32 s42, 0")
            g(f"s_mul_i32 s42, s42, {LAG}")
            g("s_ashr_i32 s42, s42, 8")
        g("s_min_i32 s42, s42, 64")
        g("s_max_i32 s42, s42, -64")
        g(f"s_add_u32 s43, s42, {PACEV}")
        g(f"s_add_u32 s42, s42, {PACE}")
        PK_, PV_ = "s42", "s43"

    def qk(j):
        for c in range(4):
            srcc = "0" if (c == 0 and j == 0) else vr(vD, 4)
            g(f"v_mfma_f32_16x16x32_bf16 {vr(vD,4)}, {vr(vF+16*j+4*c,4)}, {ar(16*j+4*c,4)}, {srcc}")
    def unpack():
        e = vT
        g(f"v_lshlrev_b32 v{e}, 16, v{vT+4}")
        g(f"v_and_b32 v{e+1}, 0xffff0000, v{vT+4}")
        g(f"v_lshlrev_b32 v{e+2}, 16, v{vT+5}")
        g(f"v_and_b32 v{e+3}, 0xffff0000, v{vT+5}")
    def scores(off):
        e = vT
        g(f"v_cvt_pk_bf16_f32 v{vT+4}, v{vD}, v{vD+1}")
        g(f"v_cvt_pk_bf16_f32 v{vT+5}, v{vD+2}, v{vD+3}")
        unpack()
        for i in range(4):
            g(f"v_mul_f32 v{e+i}, s{sScale}, v{e+i}")
        g(f"v_cvt_pk_bf16_f32 v{vT+4}, v{e}, v{e+1}")
        g(f"v_cvt_pk_bf16_f32 v{vT+5}, v{e+2}, v{e+3}")
        g(f"v_max3_f32 v{vMx}, v{e}, v{e+1}, v{vMx}")
        g(f"ds_write_b64 v{vStW}, {vr(vT+4,2)} offset:{off}")
        g(f"v_max3_f32 v{vMx}, v{e+2}, v{e+3}, v{vMx}")
    def trace():
        if dbg >= 3:
            g("s_memrealtime s[90:91]")
            g("s_waitcnt lgkmcnt(0)")
            g(f"s_mov_b32 m0, s{sCnt}")
            g(f"v_writelane_b32 v120, s90, m0")
            g(f"s_add_u32 s{sCnt}, s{sCnt}, 1")
    for u in range(6):
        if u < 4:
            for j in range(2):
                for c in range(4):
                    g(f"ds_read_b128 {vr(vF+16*j+4*c,4)}, v{vKrd+c} offset:{HSLOT[u]*8192 + j*4096}")
        else:
            g(f"s_waitcnt vmcnt({(20, 16)[u-4]})")
            for j in range(2):
                for k in range(4):
                    g(f"ds_write_b128 v{vDump}, {ar(64+32*(u-4)+16*j+4*k,4)} offset:{28672 + k*1024}")
                for c in range(4):
                    g(f"ds_read_b128 {vr(vF+16*j+4*c,4)}, v{vKrd+c} offset:28672")
        g(f"s_waitcnt lgkmcnt({4 if u < 4 else 8})")
        qk(0)
        g("s_waitcnt lgkmcnt(0)")
        qk(1)
        if 1 <= u <= (4 if UL == 2 else 5):
            pace(PK_, False)
            headB(11 + u)
        else:
            g("s_nop 7")
            g("s_nop 3")
        scores(u*256)
        trace()
    if UL == 3:
        pace(PK_, False)
        headB(17)
    VW = 8*UL - 4
    g(f"v_add_u32 v{vStW}, {6*256}, v{vStW}")
    g(f"s_mov_b32 s{sIU}, {(6 + UL) << 17:#x}")
    g(f"s_add_u32 s{sIss}, s{sRK}, {((6 + UL) % 3) * 8192}")

    def issue(j, PACE=PK_):
        g(f"s_add_u32 m0, s{sIss}, {j*4096}")
        if j == 0:
            g(f"s_xor_b32 s{sIA}, s{sT}, s{sIU}")
            g(f"s_mov_b32 s{sTmp}, s{sIA}")
        else:
            g(f"s_add_u32 s{sTmp}, s{sIA}, {BST}")
        pace(PACE, True)
        loads()
    def advance():
        g(f"s_add_u32 s{sIU}, s{sIU}, {1 << 17:#x}")
        g(f"s_cmp_eq_u32 s{sIss}, s{sEnd}")
        g(f"s_cselect_b32 s{sDel}, {-16384 & 0xffffffff:#x}, s63")
        g(f"s_add_u32 s{sIss}, s{sIss}, s{sDel}")
        if UL == 2:
            g(f"s_cmp_eq_u32 s{sIss}, s{sEnd}")
            g(f"s_cselect_b32 s{sDel}, {-16384 & 0xffffffff:#x}, s63")
    g.label("L_K")
    for j in range(2):
        g(f"s_waitcnt vmcnt({VW})")
        for c in range(4):
            g(f"ds_read_b128 {vr(vF+16*j+4*c,4)}, v{vKrd+c} offset:{j*4096}")
        g("s_memrealtime s[90:91]")
        g("s_waitcnt lgkmcnt(0)")
        qk(j)
        issue(j)
    advance()
    for c in range(4):
        g(f"v_add_u32 v{vKrd+c}, s{sDel}, v{vKrd+c}")
    scores(0)
    g(f"v_add_u32 v{vStW}, 256, v{vStW}")
    trace()
    if HK:
        g(f"s_cmp_eq_u32 s{sIU}, {KU << 17:#x}")
        g(f"s_cselect_b32 s{sTmp2}, {HK}, 0")
        g(f"s_add_u32 s{sAcc}, s{sAcc}, s{sTmp2}")
    g(f"s_cmp_eq_u32 s{sIU}, {UL << 17:#x}")
    g("s_cbranch_scc1 L_Kend")
    g(f"s_cmp_lg_u32 s{sIU}, {16 << 17:#x}")
    g("s_cbranch_scc1 L_K")
    g(f"s_mov_b32 s{sKs}, s{P_V}")
    g(f"s_and_b32 s{sKs+1}, s{P_V+1}, 0xffff")
    for k in range(4):
        g(f"v_mov_b32 v{vIoff+k}, v{vVoff+(k&1)}")
    g(f"s_mov_b32 s{sIU}, 0")
    if POFFV: g(f"s_add_u32 s{sAcc}, s{sAcc}, {POFFV}")
    g("s_branch L_K")
    g.label("L_Kend")
    g(f"v_cvt_pk_bf16_f32 v{vMx}, v{vMx}, v{vMx}")
    g(f"v_and_b32 v{vMx}, 0xffff0000, v{vMx}")
    g(f"v_mul_f32 v{vT+6}, s{sLog2e}, v{vMx}")
    g("s_nop 1")
    g(f"v_max_f32_dpp v{vT+7}, v{vT+6}, v{vT+6} row_ror:4 row_mask:0xf bank_mask:0xf")
    g(f"v_mov_b32 v{vT+6}, v{vT+7}")
    g("s_nop 1")
    g(f"v_permlane16_swap_b32 v{vT+6}, v{vT+7}")
    g(f"v_max_f32 v{vT+6}, v{vT+6}, v{vT+7}")
    g(f"v_mov_b32 v{vT+7}, v{vT+6}")
    g("s_nop 1")
    g(f"v_permlane32_swap_b32 v{vT+6}, v{vT+7}")
    g(f"v_max_f32 v{vM}, v{vT+6}, v{vT+7}")
    g(f"s_lshl2_add_u32 s{sTmp}, s{sSW}, {L_KD}")
    g(f"v_mov_b32 v{vT+6}, s{sTmp}")
    g(f"v_mov_b32 v{vT+7}, 1")
    g("s_mov_b64 exec, 15")
    g(f"ds_write_b32 v{vMa}, v{vM}")
    g(f"ds_write_b32 v{vT+6}, v{vT+7}")
    g("s_mov_b64 exec, -1")
    g.stamp(7)
    def bodyV(tail):
        g(f"ds_read_b64 {vr(vT+4,2)}, v{vStR}")
        g(f"v_add_u32 v{vStR}, 256, v{vStR}")
        g("s_waitcnt lgkmcnt(0)")
        e = vT
        unpack()
        for i in range(4):
            g(f"v_fma_f32 v{e+i}, v{e+i}, s{sLog2e}, -v{vM}")
        for i in range(4):
            g(f"v_exp_f32 v{e+i}, v{e+i}")
        g("s_nop 0")
        g(f"v_cvt_pk_bf16_f32 v{vP01}, v{e}, v{e+1}")
        g(f"v_cvt_pk_bf16_f32 v{vP01+1}, v{e+2}, v{e+3}")
        g("s_nop 1")
        g(f"v_mov_b32_dpp v{vP01+2}, v{vP01} row_ror:12 row_mask:0xf bank_mask:0xf")
        g(f"v_mov_b32_dpp v{vP01+3}, v{vP01+1} row_ror:12 row_mask:0xf bank_mask:0xf")
        for j in range(2):
            def wo_issue():
                for k in range(4):
                    g(f"buffer_load_dwordx4 v{vIoff}, s[{sKs}:{sKs+3}], s{sTmp} offen {WPOL} lds")
                    if k < 3:
                        g("s_add_u32 m0, m0, 1024")
                        g(f"s_add_u32 s{sTmp}, s{sTmp}, 8192")
            if WOE == 1 and tail == UL and j == 1:
                pace(WOD, False)
                wo_issue()
                g("s_waitcnt vmcnt(4)")
            else:
                g(f"s_waitcnt vmcnt({VW if not tail else VW - 8*(tail-1) - 4*j})")
            for db in range(8):
                g(f"ds_read_b64_tr_b16 {vr(vF+4*db+2*j,2)}, v{vVrd+db} offset:{j*4096}")
            if WOE == 2 and tail == UL and j == 1:
                wo_issue()
            if not tail:
                g("s_memrealtime s[90:91]")
                g("s_waitcnt lgkmcnt(0)")
                if j:
                    for db in range(8):
                        g(f"v_mfma_f32_16x16x32_bf16 {vr(vAcc+4*db,4)}, {vr(vF+4*db,4)}, {vr(vP01,4)}, {vr(vAcc+4*db,4)}")
                issue(j, PV_)
        if tail < UL:
            advance()
            for db in range(8):
                g(f"v_add_u32 v{vVrd+db}, s{sDel}, v{vVrd+db}")
        if tail:
            for hlf in range(2):
                g(f"s_waitcnt lgkmcnt({4 - 4*hlf})")
                for db in range(4*hlf, 4*hlf + 4):
                    g(f"v_mfma_f32_16x16x32_bf16 {vr(vAcc+4*db,4)}, {vr(vF+4*db,4)}, {vr(vP01,4)}, {vr(vAcc+4*db,4)}")
        trace()
    g.label("L_V")
    bodyV(0)
    if DZ or HZ:
        g(f"s_cmp_eq_u32 s{sIU}, {ZU << 17:#x}")
        if DZ:
            g(f"s_cselect_b32 s{sTmp2}, {DZ}, 0")
            g(f"s_add_u32 s43, s43, s{sTmp2}")
        else:
            g(f"s_cselect_b32 s{sTmp2}, {HZ}, 0")
            g(f"s_add_u32 s{sAcc}, s{sAcc}, s{sTmp2}")
    g(f"s_cmp_lg_u32 s{sIU}, {16 << 17:#x}")
    g("s_cbranch_scc1 L_V")
    g.stamp(11)
    if WOE:
        g(f"v_mov_b32 v{vIoff+1}, {L_FLAG2}")
        g(f"v_lshrrev_b32 v{vIoff}, 3, v0")
        g(f"v_and_b32 v{vIoff+2}, 7, v0")
        g(f"v_lshlrev_b32 v{vIoff+2}, 4, v{vIoff+2}")
        g(f"v_lshl_add_u32 v{vIoff}, v{vIoff}, 10, v{vIoff+2}")
        g.srd(sKs, P_WO, 4096 * 512 * 2)
        g(f"s_lshl2_add_u32 s{sTmp}, s{sX}, s{sSPLIT}")
        g(f"s_lshl2_add_u32 s{sTmp}, s{sTmp}, s{sSW}")
        g(f"s_lshl_b32 s{sTmp}, s{sTmp}, 15")
        g(f"s_lshl_b32 s{sIA}, s{sB}, 7")
        g(f"s_add_u32 s{sTmp}, s{sTmp}, s{sIA}")
        g(f"s_lshl_b32 s{sIA}, s{sSW}, 12")
        g(f"s_add_u32 m0, s{sIA}, {L_ST}")
        ldswait("L_wf", vIoff+1, vIoff+2, 4, 0x40000)
    for t_ in range(1, UL + 1):
        bodyV(t_)
    g.stamp(3)
    if dbg >= 2:
        g("s_lshl_b32 s90, s2, 2")
        g(f"s_add_u32 s90, s90, s{sSW}")
        g("s_lshl_b32 s90, s90, 8")
        g("s_add_u32 s90, s90, 0x1a0000")
        g("v_lshlrev_b32 v121, 2, v0")
        g(f"buffer_store_dword v120, v121, s[{sWSs}:{sWSs+3}], s90 offen")
    g("s_mov_b64 exec, s[38:39]")
    g("s_nop 2")
    for db in range(8):
        if db == 4: g("s_nop 2")
        g(f"ds_write_b128 v{vOA}, {vr(vAcc+4*db,4)} offset:{db*64}")
    g("s_mov_b64 exec, -1")
    g("s_waitcnt lgkmcnt(0)")
    g.c("barrier 2")
    g("s_barrier")
    g.stamp(4)
    g("s_branch L_gather")

    sHW = sWAVE
    sA, sBs = 24, 28
    sU, sU2 = 58, 59
    nwt = [0]
    def waitt(ticks, slp=4):
        if ticks <= 0: return
        n = nwt[0]; nwt[0] += 1
        g.label(f"L_wt{n}")
        g(f"s_sleep {slp}")
        g("s_memrealtime s[90:91]")
        g("s_waitcnt lgkmcnt(0)")
        g(f"s_sub_u32 s90, s90, s{sT0}")
        g(f"s_cmp_lt_u32 s90, {ticks}")
        g(f"s_cbranch_scc1 L_wt{n}")
    def hregs():
        g("v_and_b32 v2, 15, v0")
        g("v_lshrrev_b32 v6, 2, v2")
        g("v_lshl_add_u32 v6, v3, 3, v6")
        g("v_lshlrev_b32 v6, 7, v6")
        g("v_and_b32 v7, 3, v0")
        g("v_lshl_add_u32 v6, v7, 3, v6")
        consts()
    XF, TF, TA = 16, 48, 32
    e0 = len(g.o)
    g.label("L_H")
    g("v_lshrrev_b32 v3, 4, v0")
    g("v_lshrrev_b32 v4, 3, v0")
    g("v_and_b32 v5, 7, v0")
    g("v_lshlrev_b32 v5, 4, v5")
    g(f"s_cmp_lg_u32 s{sHW}, 1")
    g("s_cbranch_scc1 L_Hz")
    if SPRIO: g("s_setprio 3")
    g("v_lshl_add_u32 v8, v4, 13, v5")
    g("v_lshlrev_b32 v9, 6, v5")
    g("v_lshl_add_u32 v9, v3, 4, v9")
    g(f"s_lshl_b32 s{sU}, s{sSPLIT}, 20")
    g(f"s_lshl3_add_u32 s{sU2}, s{sX}, s{sB}")
    g(f"s_lshl_b32 s{sU2}, s{sU2}, 7")
    g(f"s_add_u32 s{sU}, s{sU}, s{sU2}")
    g(f"s_lshl_b32 s{sU2}, s{sSPLIT}, 8")
    g(f"s_mov_b32 m0, {L_ST}")
    g("s_movk_i32 s20, 15")
    g("s_waitcnt lgkmcnt(0)")
    g.srd(sA, P_WQ, 512 * 4096 * 2)
    g.srd(sBs, P_X, 8192)
    for k in range(4):
        g(f"buffer_load_dwordx4 {vr(XF+4*k,4)}, v9, s[{sBs}:{sBs+3}], s{sU2} offen offset:{k*64}")
    g.label("L_ql")
    g(f"buffer_load_dwordx4 v8, s[{sA}:{sA+3}], s{sU} offen {WPOL} lds")
    g("s_addk_i32 m0, 1024")
    g(f"s_add_u32 s{sU}, s{sU}, 65536")
    g("s_sub_u32 s20, s20, 1")
    g("s_cbranch_scc0 L_ql")
    g.stamp(6)
    g.c("barrier 0")
    g("s_barrier")
    g("s_branch L_H1")
    g.label("L_Hz")
    g("v_mov_b32 v24, 0")
    g("v_mov_b32 v25, 0")
    g("v_lshlrev_b32 v26, 3, v0")
    g(f"v_add_u32 v26, {L_ZERO}, v26")
    g("ds_write_b64 v26, v[24:25]")
    if IPF:
        g(f"s_cmp_ge_u32 s2, {8*IPF}")
        g("s_cbranch_scc1 L_noipf")
        g("s_getpc_b64 s[20:21]")
        g.label("L_pc")
        g(f"s_min_u32 s22, s{sHW}, 1")
        g(f"s_sub_u32 s22, s{sHW}, s22")
        g("s_lshl_b32 s22, s22, 13")
        g("v_lshl_add_u32 v27, v0, 7, s22")
        g("v_add_u32 v28, 0x6000, v27")
        g("v_cmp_gt_u32 vcc, L_end-L_pc, v27")
        g("s_mov_b64 exec, vcc")
        g("global_load_dword v127, v27, s[20:21]")
        g("v_cmp_gt_u32 vcc, L_end-L_pc, v28")
        g("s_mov_b64 exec, vcc")
        g("global_load_dword v127, v28, s[20:21]")
        g("s_mov_b64 exec, -1")
        g.label("L_noipf")
    g("s_waitcnt lgkmcnt(0)")
    g.c("barrier 0")
    g("s_barrier")
    g("s_branch L_Hx")
    early = g.o[e0:]
    del g.o[e0:]
    g.o[ins_at:ins_at] = early
    g.label("L_Hx")
    hregs()
    g(f"s_load_dword s{sTag}, s[{P_WS}:{P_WS+1}], {WS_EPOCH}")
    g.srd(sWSs, P_WS, WS_SIZE)
    g("s_waitcnt lgkmcnt(0)")
    g(f"s_add_u32 s{sTag}, s{sTag}, {TAGSTEP:#x}")
    g(f"v_mov_b32 v{vTag}, s{sTag}")
    g(f"s_cmp_eq_u32 s{sHW}, 2")
    g("s_cbranch_scc1 L_H2")
    g(f"s_cmp_eq_u32 s{sHW}, 3")
    g("s_cbranch_scc1 L_H3")
    if LAG:
        g(f"s_lshl_b32 s66, s{sT0}, 8")
        g("v_mov_b32 v12, s66")
        for i in range(4):
            tagit(16+i, 12, i)
        g("s_lshr_b32 s67, s2, 3")
        g("s_lshl_b32 s67, s67, 7")
        g(f"s_add_u32 s67, s67, {WS_TS}")
        g(f"s_lshl_b32 s20, s{sX}, 4")
        g("v_mov_b32 v12, s20")
        g("s_mov_b64 exec, 1")
        g(f"buffer_store_dwordx4 v[16:19], v12, s[{sWSs}:{sWSs+3}], s67 offen sc1")
        g("s_mov_b64 exec, -1")
    g.srd(sA, P_X, 8192)
    g.srd(sBs, P_GW, 1024)
    g("v_lshlrev_b32 v8, 4, v0")
    g(f"s_lshl_b32 s{sU2}, s{sB}, 10")
    g(f"buffer_load_dwordx4 v[16:19], v8, s[{sA}:{sA+3}], s{sU2} offen")
    g(f"buffer_load_dwordx4 v[20:23], v8, s[{sBs}:{sBs+3}], 0 offen")
    g("s_waitcnt vmcnt(0)")
    for i in range(4):
        g(f"v_lshlrev_b32 v{24+2*i}, 16, v{16+i}")
        g(f"v_and_b32 v{25+2*i}, 0xffff0000, v{16+i}")
        g(f"v_lshlrev_b32 v{32+2*i}, 16, v{20+i}")
        g(f"v_and_b32 v{33+2*i}, 0xffff0000, v{20+i}")
    for i in range(8):
        g(f"v_mul_f32 v{24+i}, v{24+i}, v{32+i}")
    for i in range(4):
        g(f"v_cvt_pk_bf16_f32 v{32+i}, v{24+2*i}, v{25+2*i}")
    for i in range(4):
        g(f"v_lshlrev_b32 v{24+2*i}, 16, v{32+i}")
        g(f"v_and_b32 v{25+2*i}, 0xffff0000, v{32+i}")
    g("v_add_f32 v24, v24, v25")
    g("v_add_f32 v26, v26, v27")
    g("v_add_f32 v28, v28, v29")
    g("v_add_f32 v30, v30, v31")
    g("v_add_f32 v24, v24, v26")
    g("v_add_f32 v28, v28, v30")
    g("v_add_f32 v24, v24, v28")
    for rot in (1, 2, 4, 8):
        g("s_nop 1")
        g(f"v_add_f32_dpp v25, v24, v24 row_ror:{rot} row_mask:0xf bank_mask:0xf")
        g("v_mov_b32 v24, v25")
    g("s_nop 1")
    g("v_permlane16_swap_b32 v24, v25")
    g("v_add_f32 v24, v24, v25")
    g("v_mov_b32 v25, v24")
    g("s_nop 1")
    g("v_permlane32_swap_b32 v24, v25")
    g("v_add_f32 v24, v24, v25")
    g("v_cvt_pk_bf16_f32 v24, v24, v24")
    g("v_and_b32 v24, 0xffff0000, v24")
    g("v_mul_f32 v24, 0xbfb8aa3b, v24")
    g("v_exp_f32 v24, v24")
    g("s_nop 0")
    g("v_add_f32 v24, 1.0, v24")
    g("v_rcp_f32 v24, v24")
    g("s_nop 0")
    g("v_cvt_pk_bf16_f32 v24, v24, v24")
    g("v_and_b32 v10, 0xffff0000, v24")
    g("v_sub_f32 v11, 1.0, v10")
    g("v_cvt_pk_bf16_f32 v11, v11, v11")
    g("v_and_b32 v11, 0xffff0000, v11")
    g.stamp(1)
    g(f"s_lshl_b32 s{sU}, s{sPAIR}, 13")
    g(f"s_add_u32 s{sU}, s{sU}, {WS_QG}")
    g(f"s_add_u32 s{sU2}, s{sU}, 4096")
    g("v_lshlrev_b32 v26, 4, v0")
    g("v_lshlrev_b32 v25, 3, v0")
    g(f"v_add_u32 v25, {L_QBUF}, v25")
    g("s_mov_b32 s70, 0x40000")
    for rc in range(4):
        g(f"s_mov_b64 s[{40+2*rc}:{41+2*rc}], -1")
    g("v_mov_b32 v12, 1")
    g(f"v_mov_b32 v14, {L_FLAG3}")
    if dbg: g("s_mov_b32 s86, 0")
    waitt(QT, 2)
    if SPRIO: g("s_setprio 3")
    g.stamp(2)
    if LAG:
        g("s_mov_b64 exec, 0xff")
        g(f"buffer_load_dwordx4 v[80:83], v26, s[{sWSs}:{sWSs+3}], s67 offen sc1")
        g("s_mov_b64 exec, -1")
    if LF & 1: g(f"v_xor_b32 v26, {FOFF:#x}, v26")
    if PL & 1:
        for rc in range(4):
            for u in range(2):
                g(f"buffer_load_dwordx4 {vr(32+8*rc+4*u,4)}, v26, s[{sWSs}:{sWSs+3}], s{sU + (rc>>1)} offen offset:{(rc&1)*2048 + u*1024}")
        g("s_branch L_pollqc")
    g.label("L_pollq")
    for rc in range(4):
        g(f"s_mov_b64 exec, s[{40+2*rc}:{41+2*rc}]")
        for u in range(2):
            g(f"buffer_load_dwordx4 {vr(32+8*rc+4*u,4)}, v26, s[{sWSs}:{sWSs+3}], s{sU + (rc>>1)} offen offset:{(rc&1)*2048 + u*1024} sc1")
    g("s_mov_b64 exec, -1")
    g.label("L_pollqc")
    if dbg: g("s_add_u32 s86, s86, 1")
    g("s_waitcnt vmcnt(0)")
    for rc in range(4):
        tagchk(27, 32+8*rc, True, 28, 29)
        tagchk(27, 36+8*rc, False, 28, 29)
        g(f"v_cmp_ne_u32 s[{40+2*rc}:{41+2*rc}], 0, v27")
    for i in range(8):
        g(f"v_add_f32 v{64+i}, v{32+i}, v{40+i}")
        g(f"v_add_f32 v{72+i}, v{48+i}, v{56+i}")
    g("s_or_b64 s[60:61], s[40:41], s[42:43]")
    g("s_or_b64 s[62:63], s[44:45], s[46:47]")
    g("s_or_b64 vcc, s[60:61], s[62:63]")
    g("s_cbranch_scc0 L_qok")
    if QS1: g(f"s_sleep {QS1}")
    if LF & 1: g(f"v_xor_b32 v26, {FOFF:#x}, v26")
    g("s_sub_u32 s70, s70, 1")
    g("s_cmp_lg_u32 s70, 0")
    g("s_cbranch_scc1 L_pollq")
    g.label("L_qok")
    for i in range(8):
        g(f"v_add_f32 v{64+i}, v{64+i}, v{72+i}")
    for i in range(4):
        g(f"v_cvt_pk_bf16_f32 v{72+i}, v{64+2*i}, v{65+2*i}")
    for u in range(2):
        g(f"ds_write_b64 v25, {vr(72+2*u,2)} offset:{u*512}")
    if LAG:
        g("s_mov_b64 exec, 0xff")
        tagchk(27, 80, True, 28, 29)
        g("v_subrev_u32 v13, s66, v80")
        g("v_ashrrev_i32 v13, 8, v13")
        g("v_cmp_eq_u32 vcc, 0, v27")
        g("v_min_i32 v13, 0xc8, v13")
        g("v_max_i32 v13, 0xffffff38, v13")
        g("v_cndmask_b32 v13, 0, v13, vcc")
        g("s_nop 1")
        g("v_add_u32_dpp v27, v13, v13 quad_perm:[1,0,3,2] row_mask:0xf bank_mask:0xf")
        g("s_nop 1")
        g("v_add_u32_dpp v13, v27, v27 quad_perm:[2,3,0,1] row_mask:0xf bank_mask:0xf")
        g("s_nop 1")
        g("v_add_u32_dpp v27, v13, v13 row_half_mirror row_mask:0xf bank_mask:0xf")
        if TMA:
            g("v_ashrrev_i32 v13, 3, v27")
            g(f"v_add_u32 v13, s{sT0}, v13")
            g("s_nop 0")
            g("v_readfirstlane_b32 s71, v13")
        else:
            g(f"v_mul_i32_i24 v13, {LAG}, v27")
            g("v_ashrrev_i32 v13, 11, v13")
        g("s_mov_b64 exec, 1")
        g("ds_write_b64 v14, v[12:13]")
        g("s_mov_b64 exec, -1")
        if dbg: g("v_readfirstlane_b32 s76, v13")
    else:
        g("ds_write_b32 v14, v12")
    g.stamp(3)
    g("s_branch L_Hbar2")

    g.label("L_H3")
    if NOX & 41: g("s_branch L_Hbar2")
    g(f"s_lshr_b32 s20, s{sB}, 2")
    g(f"s_lshl3_add_u32 s20, s20, s{sX}")
    g(f"s_bfe_u32 s21, s{sB}, 0x10001")
    g(f"s_lshl1_add_u32 s{sG}, s20, s21")
    g("s_and_b32 s20, s2, 0x38")
    g("s_cmp_eq_u32 s20, 0x18")
    g(f"s_cselect_b32 s{sG}, s{sG}, 99")
    g(f"s_cmp_ge_u32 s{sG}, 28")
    g("s_cbranch_scc1 L_Hbar2")
    g("v_lshlrev_b32 v9, 4, v5")
    g("v_lshl_add_u32 v9, v3, 5, v9")
    g("v_bfe_u32 v10, v0, 3, 1")
    g("v_lshl_add_u32 v9, v10, 4, v9")
    g("v_lshlrev_b32 v26, 4, v0")
    g(f"s_lshl_b32 s40, s{sG}, 14")
    g(f"s_add_u32 s40, s40, {WS_HP}")
    for k in range(1, 4):
        g(f"s_add_u32 s{40+k}, s40, {k*4096}")
    g(f"s_lshl_b32 s{sU}, s{sG}, 11")
    g(f"s_add_u32 s{sU}, s{sU}, {WS_HX}")
    g("s_mov_b32 s20, 0x05040c00")
    g("s_mov_b32 s21, 0x07060c01")
    g("s_mov_b32 s22, 0x05040c02")
    g("s_mov_b32 s23, 0x07060c03")
    g("s_mov_b32 s61, 0x3d372713")
    g("s_mov_b32 s63, 0x40135761")
    g("s_mov_b32 s70, 0x8000")
    if LF & 2: g(f"v_xor_b32 v9, {FOFF:#x}, v9")
    g(f"v_add_u32 v27, {FOFF:#x}, v26")
    waitt(RT, 16)
    g.stamp(1)
    if NOX & 256: g("s_branch L_rpok")
    g.label("L_rp")
    for pi in range(8):
        for kb in range(2):
            g(f"buffer_load_dwordx4 {vr(32+8*pi+4*kb,4)}, v9, s[{sWSs}:{sWSs+3}], s{40 + (pi>>1)} offen offset:{(pi&1)*2048 + kb*128} sc1")
    g("s_sub_u32 s70, s70, 1")
    g("s_waitcnt vmcnt(0)")
    for k in range(16):
        tagchk(10, 32+4*k, k == 0, 11, 12)
    g("v_cmp_ne_u32 vcc, 0, v10")
    g("s_cbranch_vccz L_rpok")
    if LF & 2: g(f"v_xor_b32 v9, {FOFF:#x}, v9")
    g("s_sleep 64")
    g("s_cmp_lg_u32 s70, 0")
    g("s_cbranch_scc1 L_rp")
    g.label("L_rpok")
    GA, UA, T, PK = 32, 64, 96, 104
    for A in (GA, UA):
        for i in range(8):
            g(f"v_add_f32 v{A+i}, v{A+i}, v{A+8+i}")
            g(f"v_add_f32 v{A+16+i}, v{A+16+i}, v{A+24+i}")
        for i in range(8):
            g(f"v_add_f32 v{A+i}, v{A+i}, v{A+16+i}")
    for i in range(4):
        g(f"v_cvt_pk_bf16_f32 v{PK+i}, v{GA+2*i}, v{GA+2*i+1}")
        g(f"v_cvt_pk_bf16_f32 v{PK+4+i}, v{UA+2*i}, v{UA+2*i+1}")
    for i in range(4):
        g(f"v_lshlrev_b32 v{GA+2*i}, 16, v{PK+i}")
        g(f"v_and_b32 v{GA+2*i+1}, 0xffff0000, v{PK+i}")
        g(f"v_lshlrev_b32 v{UA+2*i}, 16, v{PK+4+i}")
        g(f"v_and_b32 v{UA+2*i+1}, 0xffff0000, v{PK+4+i}")
    for i in range(8):
        x = GA + i
        g(f"v_mul_f32 v{T+i}, v{x}, v{x}")
        g(f"v_mul_f32 v{T+i}, v{T+i}, v{x}")
        g(f"v_fma_f32 v{T+i}, v{T+i}, s61, v{x}")
        g(f"v_mul_f32 v{T+i}, s63, v{T+i}")
    for i in range(8):
        g(f"v_exp_f32 v{T+i}, v{T+i}")
    g("s_nop 0")
    for i in range(8):
        g(f"v_add_f32 v{T+i}, 1.0, v{T+i}")
    for i in range(8):
        g(f"v_rcp_f32 v{T+i}, v{T+i}")
    g("s_nop 0")
    for i in range(8):
        g(f"v_sub_f32 v{T+i}, 1.0, v{T+i}")
        g(f"v_mul_f32 v{T+i}, v{GA+i}, v{T+i}")
    for i in range(4):
        g(f"v_cvt_pk_bf16_f32 v{PK+i}, v{T+2*i}, v{T+2*i+1}")
    for i in range(4):
        g(f"v_lshlrev_b32 v{T+2*i}, 16, v{PK+i}")
        g(f"v_and_b32 v{T+2*i+1}, 0xffff0000, v{PK+i}")
    for i in range(8):
        g(f"v_mul_f32 v{T+i}, v{T+i}, v{UA+i}")
    for i in range(4):
        g(f"v_cvt_pk_bf16_f32 v{PK+i}, v{T+2*i}, v{T+2*i+1}")
    for kb in range(2):
        g(f"v_perm_b32 v{GA+4*kb}, v{PK+2*kb}, v{vTag}, s20")
        g(f"v_perm_b32 v{GA+4*kb+1}, v{PK+2*kb}, v{vTag}, s21")
        g(f"v_perm_b32 v{GA+4*kb+2}, v{PK+2*kb+1}, v{vTag}, s22")
        g(f"v_perm_b32 v{GA+4*kb+3}, v{PK+2*kb+1}, v{vTag}, s23")
        if LF & 4: g(f"buffer_store_dwordx4 {vr(GA+4*kb,4)}, v27, s[{sWSs}:{sWSs+3}], s{sU} offen offset:{kb*1024}")
        g(f"buffer_store_dwordx4 {vr(GA+4*kb,4)}, v26, s[{sWSs}:{sWSs+3}], s{sU} offen offset:{kb*1024} sc1")
    g.stamp(5)
    g("s_branch L_Hbar2")

    g.label("L_H2")
    if NOX & 16: g("s_branch L_Hbar2")
    g("v_lshlrev_b32 v8, 2, v7")
    g(f"v_add_u32 v8, {L_KD}, v8")
    for _ in range(4):
        g("s_sleep 127")
    ldswait("L_kd", 8, 9, 16, 0x10000)
    g.stamp(1)
    g("v_and_b32 v9, 1, v0")
    g("v_lshlrev_b32 v9, 3, v9")
    g(f"v_add_u32 v9, {L_MW}, v9")
    for w in range(4):
        g(f"ds_read_b64 {vr(12+2*w,2)}, v9 offset:{w*16}")
    g("v_lshlrev_b32 v10, 4, v0")
    g("v_add_u32 v10, 24576, v10")
    g("v_add_u32 v11, 0x10000, v10")
    RD = 32
    for w in range(4):
        for k in range(4):
            g(f"ds_read_b128 {vr(RD+16*w+4*k,4)}, v{10 + (w >> 1)} offset:{(w & 1)*32768 + k*1024}")
        if w == 1: g("s_waitcnt lgkmcnt(8)")
    g("s_mov_b32 s20, 0x3fb8aa3b")
    g("v_max3_f32 v20, v12, v14, v16")
    g("v_max3_f32 v21, v13, v15, v17")
    g("v_max_f32 v20, v20, v18")
    g("v_max_f32 v21, v21, v19")
    g("v_and_b32 v20, 0xffffff00, v20")
    g("v_and_b32 v21, 0xffffff00, v21")
    g("v_mov_b32 v22, 0")
    g("v_mov_b32 v23, 0")
    g("s_waitcnt lgkmcnt(0)")
    for c4 in range(16):
        r = RD + 4*c4
        for i in range(4):
            g(f"v_lshlrev_b32 v{24+2*i}, 16, v{r+i}")
            g(f"v_and_b32 v{25+2*i}, 0xffff0000, v{r+i}")
        for i in range(8):
            g(f"v_fma_f32 v{24+i}, v{24+i}, s20, -v{20 + (i >> 2)}")
        for i in range(8):
            g(f"v_exp_f32 v{24+i}, v{24+i}")
        g("s_nop 0")
        for i in range(4):
            g(f"v_add_f32 v{24+2*i}, v{24+2*i}, v{25+2*i}")
        g("v_add_f32 v24, v24, v26")
        g("v_add_f32 v28, v28, v30")
        g("v_add_f32 v22, v22, v24")
        g("v_add_f32 v23, v23, v28")
    for rot in (2, 4, 8):
        g("s_nop 0")
        g(f"v_add_f32_dpp v24, v22, v22 row_ror:{rot} row_mask:0xf bank_mask:0xf")
        g(f"v_add_f32_dpp v25, v23, v23 row_ror:{rot} row_mask:0xf bank_mask:0xf")
        g("v_mov_b32 v22, v24")
        g("v_mov_b32 v23, v25")
    for op in ("v_permlane16_swap_b32", "v_permlane32_swap_b32"):
        g("s_nop 0")
        g(f"{op} v22, v24")
        g(f"{op} v23, v25")
        g("v_add_f32 v22, v22, v24")
        g("v_add_f32 v23, v23, v25")
        g("v_mov_b32 v24, v22")
        g("v_mov_b32 v25, v23")
    if NOX & 2: g("s_branch L_Hbar2")
    tagit(24, 20, 0)
    tagit(25, 22, 1)
    tagit(26, 21, 2)
    tagit(27, 23, 3)
    g(f"s_lshl_b32 s{sU}, s{sPAIR}, 8")
    g(f"s_add_u32 s{sU}, s{sU}, {WS_ML}")
    g(f"s_lshl_b32 s{sU2}, s{sSPLIT}, 6")
    g(f"s_add_u32 s{sU2}, s{sU2}, s{sU}")
    g("v_lshlrev_b32 v8, 4, v7")
    g("s_mov_b64 exec, 15")
    g(f"buffer_store_dwordx4 v[24:27], v8, s[{sWSs}:{sWSs+3}], s{sU2} offen sc1")
    if LF & 8:
        g(f"s_add_u32 s{sU2}, s{sU2}, {FOFF:#x}")
        g(f"buffer_store_dwordx4 v[24:27], v8, s[{sWSs}:{sWSs+3}], s{sU2} offen")
    g("s_mov_b64 exec, 0xff")
    g("v_lshrrev_b32 v8, 1, v0")
    g("v_lshlrev_b32 v8, 6, v8")
    g("v_lshl_add_u32 v8, v9, 1, v8")
    g(f"v_subrev_u32 v8, {2*L_MW}, v8")
    g("s_mov_b32 s70, 0x8000")
    if MLD > 48: g(f"s_sleep {MLD - 48}")
    g.label("L_mp")
    g("s_sleep 48")
    if LF & 8: g(f"v_xor_b32 v8, {FOFF:#x}, v8")
    g(f"buffer_load_dwordx4 v[24:27], v8, s[{sWSs}:{sWSs+3}], s{sU} offen sc1")
    g("s_sub_u32 s70, s70, 1")
    g("s_waitcnt vmcnt(0)")
    tagchk(28, 24, True, 29, 30)
    g("v_cmp_ne_u32 vcc, 0, v28")
    g("s_cbranch_vccz L_mpok")
    g("s_cmp_lg_u32 s70, 0")
    g("s_cbranch_scc1 L_mp")
    g.label("L_mpok")
    g("v_and_b32 v24, 0xffffff00, v24")
    g("v_and_b32 v26, 0xffffff00, v26")
    def red8(op, dst, src, t):
        g("s_nop 1")
        g(f"{op}_dpp v{t}, v{src}, v{src} quad_perm:[2,3,0,1] row_mask:0xf bank_mask:0xf")
        g("s_nop 1")
        g(f"v_mov_b32_dpp v{dst}, v{t} row_half_mirror row_mask:0xf bank_mask:0xf")
        g("s_nop 1")
        g(f"{op}_dpp v{dst}, v{dst}, v{t} quad_perm:[1,0,3,2] row_mask:0xf bank_mask:0xf")
    red8("v_max_f32", 28, 24, 30)
    red8("v_max_f32", 29, 26, 30)
    g("v_sub_f32 v24, v24, v28")
    g("v_sub_f32 v26, v26, v29")
    g("v_exp_f32 v24, v24")
    g("v_exp_f32 v26, v26")
    g("s_nop 0")
    g("v_mul_f32 v24, v24, v25")
    g("v_mul_f32 v26, v26, v27")
    red8("v_add_f32", 22, 24, 30)
    red8("v_add_f32", 23, 26, 30)
    g("v_rcp_f32 v22, v22")
    g("v_rcp_f32 v23, v23")
    for w in range(4):
        g(f"v_sub_f32 v{32+w}, v{12+2*w}, v28")
        g(f"v_sub_f32 v{36+w}, v{13+2*w}, v29")
    for i in range(8):
        g(f"v_exp_f32 v{32+i}, v{32+i}")
    g("s_nop 0")
    for i in range(8):
        g(f"v_mul_f32 v{32+i}, v{32+i}, v{22 + (i >> 2)}")
    g("v_and_b32 v9, 1, v0")
    g("v_lshlrev_b32 v9, 5, v9")
    g(f"v_add_u32 v9, {L_FW}, v9")
    g("s_mov_b64 exec, 3")
    g("ds_write_b128 v9, v[32:35]")
    g("ds_write_b128 v9, v[36:39] offset:16")
    g("s_mov_b64 exec, -1")
    g("s_waitcnt lgkmcnt(0)")
    g.stamp(5)
    g("s_branch L_Hbar2")

    g.label("L_H1")
    g(f"s_load_dword s{sTag}, s[{P_WS}:{P_WS+1}], {WS_EPOCH}")
    hregs()
    g.srd(sWSs, P_WS, WS_SIZE)
    g(f"v_add_u32 v9, {L_ST}, v6")
    g("v_bfe_u32 v10, v0, 3, 1")
    g("v_lshlrev_b32 v10, 6, v10")
    g("v_lshl_add_u32 v10, v3, 4, v10")
    g("v_lshl_add_u32 v11, v5, 4, v10")
    g("v_lshl_add_u32 v10, v5, 12, v10")
    g(f"s_lshl2_add_u32 s{sU}, s{sX}, s{sSPLIT}")
    g(f"s_lshl3_add_u32 s{sU}, s{sU}, s{sB}")
    g(f"s_lshl_b32 s{sU}, s{sU}, 8")
    g(f"s_add_u32 s{sU}, s{sU}, {WS_QG}")
    g("s_mov_b32 s62, 0xff00ff00")
    g("s_mov_b32 s63, 0xff00ff00")
    g("s_waitcnt lgkmcnt(0)")
    g(f"s_add_u32 s{sTag}, s{sTag}, {TAGSTEP:#x}")
    g(f"v_mov_b32 v{vTag}, s{sTag}")
    def tile_mm(voff, extra=None, dual=0):
        for kb in range(4):
            fr = TF + 16 * (kb & 1)
            if extra is not None: g(f"s_waitcnt vmcnt({4*(3-kb) + extra})")
            for ct in range(4):
                g(f"ds_read_b64_tr_b16 {vr(fr+4*ct,2)}, v9 offset:{kb*4096 + ct*32}")
                g(f"ds_read_b64_tr_b16 {vr(fr+4*ct+2,2)}, v9 offset:{kb*4096 + ct*32 + 512}")
            for ct in range(4):
                g(f"s_waitcnt lgkmcnt({6-2*ct})")
                srcc = "0" if kb == 0 else vr(TA+4*ct, 4)
                g(f"v_mfma_f32_16x16x32_bf16 {vr(TA+4*ct,4)}, {vr(fr+4*ct,4)}, {vr(XF+4*kb,4)}, {srcc}")
        g(f"s_add_u32 s{sU2}, s{sU}, {FOFF:#x}")
        g("s_nop 7")
        for s_ in range(2):
            for i in range(4):
                g(f"v_cndmask_b32 v{TF+4*s_+i}, v{TA+8*s_+i}, v{TA+8*s_+4+i}, s[62:63]")
            for i in range(4):
                tagit(TF+4*s_+i, TF+4*s_+i, i)
            if dual: g(f"buffer_store_dwordx4 {vr(TF+4*s_,4)}, v{voff}, s[{sWSs}:{sWSs+3}], s{sU2} offen offset:{s_*128}")
        for s_ in range(2):
            g(f"buffer_store_dwordx4 {vr(TF+4*s_,4)}, v{voff}, s[{sWSs}:{sWSs+3}], s{sU} offen offset:{s_*128} sc1")
    def tile_ld(step, t0, agpr, va):
        waitt(t0, 1)
        for i in range(16):
            if agpr is None:
                g(f"s_mov_b32 m0, {L_ST + i*1024}")
                g(f"buffer_load_dwordx4 v{va}, s[{sA}:{sA+3}], s{sU2} offen {WPOL} lds")
            else:
                g(f"buffer_load_dwordx4 {ar(agpr+4*i,4)}, v{va}, s[{sA}:{sA+3}], s{sU2} offen {WPOL}")
            if i < 15: g(f"s_add_u32 s{sU2}, s{sU2}, {step}")
            if JS and i % 4 == 3 and i < 15: g(f"s_sleep {JS}")
    def tile_put(agpr):
        for i in range(16):
            g(f"ds_write_b128 v14, {ar(agpr+4*i,4)} offset:{i*1024}")
            if i == 7: g("s_waitcnt lgkmcnt(0)")
    def wo_ld():
        g.srd(sA, P_WO, 4096 * 512 * 2)
        g(f"s_lshl2_add_u32 s20, s{sX}, s{sSPLIT}")
        g(f"s_lshl_b32 s20, s20, 17")
        g(f"s_lshl_b32 s{sU2}, s{sB}, 7")
        g(f"s_add_u32 s{sU2}, s20, s{sU2}")
        tile_ld(8192, WOT, 64, 15)
    g("v_lshl_add_u32 v15, v4, 10, v5")
    g("v_lshlrev_b32 v14, 4, v0")
    g(f"v_add_u32 v14, {L_ST}, v14")
    if WOF == 0 and not WOE: wo_ld()
    tile_mm(10, 16 if WOF == 0 and not WOE else 0, LF & 1)
    if SPRIO: g("s_setprio 0")
    g.stamp(2)
    if WOF == 1: wo_ld()
    if NOX & 1: g("s_branch L_H1wo2")
    g(f"s_lshr_b32 s23, s{sB}, 2")
    g(f"s_lshl3_add_u32 s23, s23, s{sX}")
    g(f"s_and_b32 s20, s{sB}, 3")
    g("s_lshl2_add_u32 s23, s23, s20")
    g("s_cmp_ge_u32 s23, 56")
    g("s_cbranch_scc1 L_H1a")
    g("s_movk_i32 s20, 3584")
    g("v_mul_u32_u24 v8, s20, v4")
    g("v_add_u32 v8, v8, v5")
    g(f"s_mul_i32 s{sU2}, s{sSPLIT}, {128*3584}")
    g("s_lshr_b32 s20, s23, 1")
    g("s_lshl_b32 s20, s20, 7")
    g(f"s_add_u32 s{sU2}, s{sU2}, s20")
    g("s_bitcmp1_b32 s23, 0")
    g(f"s_cselect_b32 s{sA}, s{P_WU}, s{P_WG}")
    g(f"s_cselect_b32 s{sA+1}, s{P_WU+1}, s{P_WG+1}")
    g(f"s_and_b32 s{sA+1}, s{sA+1}, 0xffff")
    g(f"s_mov_b32 s{sA+2}, {512*1792*2:#x}")
    tile_ld(8*3584, J2T, None, 8)
    g.label("L_H1a")
    if WOF == 2: wo_ld()
    g(f"s_lshl3_add_u32 s20, s{sSPLIT}, s{sX}")
    g("s_cmp_lt_u32 s20, 14")
    g("s_cselect_b32 s22, 1, 0")
    g("s_cbranch_scc0 L_H1b")
    g.srd(sA, P_WD, 1792 * 512 * 2)
    g(f"s_lshl_b32 s{sU}, s20, 17")
    g(f"s_lshl_b32 s{sU2}, s{sB}, 7")
    g(f"s_add_u32 s{sU2}, s{sU}, s{sU2}")
    tile_ld(8192, WDT, 0, 15)
    g.label("L_H1b")
    g("s_waitcnt vmcnt(0)")
    g.stamp(4)
    if NOX & 8: g("s_branch L_H1wo2")
    g("s_cmp_ge_u32 s23, 56")
    g("s_cbranch_scc1 L_H1c")
    g(f"s_lshl2_add_u32 s{sU}, s23, s{sSPLIT}")
    g(f"s_lshl_b32 s{sU}, s{sU}, 11")
    g(f"s_add_u32 s{sU}, s{sU}, {WS_HP}")
    tile_mm(11, None, LF & 2)
    g.stamp(3)
    g.label("L_H1c")
    if NOX & 96: g("s_branch L_H1wo2")
    g("s_cmp_eq_u32 s22, 0")
    g("s_cbranch_scc1 L_H1wo2")
    tile_put(0)
    g("s_lshl_b32 s20, s20, 12")
    g(f"s_add_u32 s20, s20, {WS_HX}")
    g("v_lshl_add_u32 v13, v3, 8, v5")
    g("s_mov_b32 s21, 0x07060302")
    HF, RAW = 16, 64
    for i in range(16):
        g(f"v_mov_b32 v{HF+i}, 0")
    if LF & 4: g(f"v_xor_b32 v13, {FOFF:#x}, v13")
    waitt(HT, 16)
    g("s_mov_b64 exec, s[62:63]")
    g("s_mov_b32 s70, 0x8000")
    if NOX & 128: g("s_branch L_hok")
    if PL & 4:
        for k in range(8):
            g(f"buffer_load_dwordx4 {vr(RAW+4*k,4)}, v13, s[{sWSs}:{sWSs+3}], s20 offen offset:{(k>>1)*1024 + (k&1)*128}")
        g("s_branch L_hpc")
    g.label("L_hp")
    for k in range(8):
        g(f"buffer_load_dwordx4 {vr(RAW+4*k,4)}, v13, s[{sWSs}:{sWSs+3}], s20 offen offset:{(k>>1)*1024 + (k&1)*128} sc1")
    g.label("L_hpc")
    g("s_sub_u32 s70, s70, 1")
    g("s_waitcnt vmcnt(0)")
    for k in range(8):
        tagchk(10, RAW+4*k, k == 0, 11, 12)
    g("v_cmp_ne_u32 vcc, 0, v10")
    g("s_cbranch_vccz L_hok")
    if LF & 4: g(f"v_xor_b32 v13, {FOFF:#x}, v13")
    g("s_sleep 64")
    g("s_cmp_lg_u32 s70, 0")
    g("s_cbranch_scc1 L_hp")
    g.label("L_hok")
    for k in range(8):
        g(f"v_perm_b32 v{HF+2*k}, v{RAW+4*k+1}, v{RAW+4*k}, s21")
        g(f"v_perm_b32 v{HF+2*k+1}, v{RAW+4*k+3}, v{RAW+4*k+2}, s21")
    g("s_mov_b64 exec, -1")
    WF = 48
    for t in range(4):
        for kb in range(4):
            g(f"ds_read_b64_tr_b16 {vr(WF+16*t+4*kb,2)}, v9 offset:{kb*4096 + t*32}")
            g(f"ds_read_b64_tr_b16 {vr(WF+2+16*t+4*kb,2)}, v9 offset:{kb*4096 + 512 + t*32}")
        if t == 1:
            g("s_waitcnt lgkmcnt(0)")
    g("v_lshlrev_b32 v10, 2, v5")
    g("v_lshl_add_u32 v10, v3, 4, v10")
    g(f"v_add_u32 v10, {L_OBUF2}, v10")
    g("s_waitcnt lgkmcnt(0)")
    for t in range(4):
        for kb in range(4):
            srcc = "0" if kb == 0 else vr(32+4*t, 4)
            g(f"v_mfma_f32_16x16x32_bf16 {vr(32+4*t,4)}, {vr(WF+16*t+4*kb,4)}, {vr(HF+4*kb,4)}, {srcc}")
    g("s_nop 7")
    g("s_nop 3")
    g("s_mov_b64 exec, s[62:63]")
    for t in range(4):
        g(f"ds_write_b128 v10, {vr(32+4*t,4)} offset:{t*512}")
    g("s_mov_b64 exec, -1")
    g.stamp(1)
    g.label("L_H1wo2")
    if WOE:
        g(f"v_mov_b32 v10, {L_FLAG2}")
        g("v_mov_b32 v11, 1")
        g("ds_write_b32 v10, v11")
    else:
        tile_put(64)
    g("s_waitcnt vmcnt(0) lgkmcnt(0)")
    g.stamp(5)

    def gaddr():
        g(f"s_lshl3_add_u32 s58, s{sWAVE}, s{sX}")
        g(f"s_lshl_b32 s58, s58, 13")
        g(f"s_lshl_b32 s60, s{sSPLIT}, 9")
        g(f"s_add_u32 s58, s58, s60")
        g(f"s_add_u32 s60, s58, {WS_RO}")
        g(f"s_add_u32 s61, s58, {WS_RO + 4096}")
        g("v_lshrrev_b32 v50, 5, v0")
        g("v_and_b32 v51, 31, v0")
        g("v_lshlrev_b32 v48, 11, v50")
        g("v_lshl_add_u32 v48, v51, 4, v48")
        g(f"s_lshl_b32 s58, s{sWAVE}, 8")
        g(f"s_add_u32 s58, s58, {L_OBUF}")
        g(f"v_lshl_add_u32 v50, v51, 3, s58")
        g("s_mov_b64 s[66:67], -1")
        g("s_mov_b64 s[68:69], -1")
        g("s_mov_b32 s70, 0x40000")
        if FAST: g(f"v_add_u32 v49, {WS_RF - WS_RO:#x}, v48")
        if dbg: g("s_mov_b32 s87, 0")
    g.label("L_Hbar2")
    g(f"s_and_b32 s21, s{sHW}, 1")
    g("s_lshl_b32 s22, s21, 10")
    g(f"s_add_u32 s48, s22, {L_AST}")
    g("v_lshl_add_u32 v116, v0, 4, s48")
    g("v_lshrrev_b32 v120, 5, v0")
    g("v_lshlrev_b32 v120, 4, v120")
    g("s_lshl_b32 s21, s21, 5")
    g(f"s_add_u32 s21, s21, {L_FW}")
    g("v_add_u32 v120, s21, v120")
    g(f"s_lshl2_add_u32 s48, s{sPAIR}, s{sSPLIT}")
    g("s_lshl_b32 s48, s48, 11")
    g("s_add_u32 s48, s48, s22")
    g(f"s_add_u32 s48, s48, {WS_RO}")
    g("v_lshlrev_b32 v121, 4, v0")
    g(f"s_lshl_b32 s{sU}, s{sHW}, 5")
    g(f"s_add_u32 s{sU}, s{sU}, {L_ST}")
    g(f"v_add_u32 v9, s{sU}, v6")
    ctab(20, sB)
    g(f"s_lshl2_add_u32 s22, s{sX}, s{sSPLIT}")
    g("s_bitcmp1_b32 s20, s22")
    g("s_cselect_b32 s98, -1, 0x00ff00ff")
    g("s_mov_b32 s99, s98")
    g("v_lshlrev_b32 v80, 2, v5")
    g("v_lshl_add_u32 v80, v3, 4, v80")
    g(f"s_lshl_b32 s20, s{sHW}, 9")
    g(f"s_add_u32 s20, s20, {L_OBUF2}")
    g("v_add_u32 v80, s20, v80")
    g(f"v_mov_b32 v83, {L_ZERO}")
    g("s_and_b32 vcc_lo, s98, 0xff00ff00")
    g("s_mov_b32 vcc_hi, vcc_lo")
    g("v_cndmask_b32 v80, v83, v80, vcc")
    g("v_lshlrev_b32 v81, 4, v5")
    g(f"v_add_u32 v81, {L_OBUF}, v81")
    g("v_cmp_gt_u32 vcc, 8, v2")
    g("s_nop 1")
    g("v_cndmask_b32 v81, v83, v81, vcc")
    g("v_lshl_add_u32 v81, v3, 4, v81")
    g("v_lshlrev_b32 v82, 6, v2")
    g("v_lshl_add_u32 v82, v3, 4, v82")
    g(f"s_lshl2_add_u32 s49, s{sB}, s{sHW}")
    g("s_lshl_b32 s49, s49, 5")
    g("s_add_u32 s49, s49, s22")
    g("s_lshl_b32 s49, s49, 10")
    g(f"s_add_u32 s49, s49, {WS_PAB}")
    ctab(20, sX)
    g("v_lshrrev_b32 v89, v4, s20")
    g("v_bfe_u32 v90, v0, 2, 1")
    g("v_mov_b32 v91, 0")
    g("v_lshlrev_b32 v93, 10, v4")
    g("v_lshl_add_u32 v93, v7, 4, v93")
    g("v_lshl_add_u32 v93, v90, 9, v93")
    g(f"s_lshl_b32 s21, s{sB}, 6")
    g("v_add_u32 v93, s21, v93")
    for i in range(4):
        g(f"v_bfe_u32 v92, v89, {8*i}, 1")
        g(f"v_cmp_ge_u32 s[{40+2*i}:{41+2*i}], v92, v90")
        g(f"v_add_u32 v{112+i}, {i*8192}, v93")
        for k in range(4):
            tagit(96+4*i+k, 91, k)
    gaddr()
    if FAST:
        g(f"v_add_u32 v122, {WS_RF - WS_RO:#x}, v121")
        if PT:
            g(f"s_cmp_lt_u32 s{sHW}, 2")
            g("s_cbranch_scc1 L_nopt")
            waitt(PT, 16)
            for i in range(4):
                g(f"v_not_b32 v{16+i}, v{vTag}")
            g(f"buffer_store_dwordx4 v[16:19], v122, s[{sWSs}:{sWSs+3}], s48 offen")
            g.label("L_nopt")
    g(f"s_cmp_lt_u32 s{sHW}, 2")
    g.stamp(7)
    g.c("barrier 2")
    g("s_barrier")
    g("s_cbranch_scc1 L_nocomb")
    g("ds_read_b128 v[24:27], v120")
    for w in range(4):
        g(f"ds_read_b128 {vr(56+4*w,4)}, v116 offset:{w*2048}")
    g("s_waitcnt lgkmcnt(2)")
    for i in range(4):
        g(f"v_mul_f32 v{16+i}, v24, v{56+i}")
    for w in range(1, 4):
        if w == 2: g("s_waitcnt lgkmcnt(0)")
        for i in range(4):
            g(f"v_fmac_f32 v{16+i}, v{24+w}, v{56+4*w+i}")
    for i in range(4):
        tagit(16+i, 16+i, i)
    if FAST: g(f"buffer_store_dwordx4 v[16:19], v122, s[{sWSs}:{sWSs+3}], s48 offen")
    g(f"buffer_store_dwordx4 v[16:19], v121, s[{sWSs}:{sWSs+3}], s48 offen sc1")
    g.stamp(8)
    g.label("L_nocomb")
    if not WOE:
        for kb in range(4):
            g(f"ds_read_b64_tr_b16 {vr(32+4*kb,2)}, v9 offset:{kb*4096}")
            g(f"ds_read_b64_tr_b16 {vr(34+4*kb,2)}, v9 offset:{kb*4096+512}")
    g("ds_read_b128 v[84:87], v80")
    g("s_cbranch_scc1 L_gslp")
    if GDH: g(f"s_sleep {GDH}")
    g("s_branch L_pollr")

    g.label("L_gather")
    g.stamp(8)
    gaddr()
    g.label("L_gslp")
    if GD: g(f"s_sleep {GD}")
    g.label("L_pollr")
    if FAST:
        for s_ in range(2):
            g(f"s_mov_b64 exec, s[{66+2*s_}:{67+2*s_}]")
            g(f"buffer_load_dwordx4 {vr(56+4*s_,4)}, v49, s[{sWSs}:{sWSs+3}], s{60+s_} offen {FPOL}")
        g("s_branch L_pollrc")
    elif GPOL != "sc1":
        for s_ in range(2):
            g(f"buffer_load_dwordx4 {vr(56+4*s_,4)}, v48, s[{sWSs}:{sWSs+3}], s{60+s_} offen {GPOL}")
        g("s_branch L_pollrc")
    g.label("L_pollr2")
    for s_ in range(2):
        g(f"s_mov_b64 exec, s[{66+2*s_}:{67+2*s_}]")
        g(f"buffer_load_dwordx4 {vr(56+4*s_,4)}, v48, s[{sWSs}:{sWSs+3}], s{60+s_} offen sc1")
    g.label("L_pollrc")
    g("s_mov_b64 exec, -1")
    if dbg: g("s_add_u32 s87, s87, 1")
    g("s_waitcnt vmcnt(0)")
    g("v_perm_b32 v52, v57, v56, s64")
    g("v_perm_b32 v53, v59, v58, s65")
    g("v_perm_b32 v54, v61, v60, s64")
    g("v_perm_b32 v55, v63, v62, s65")
    g("v_or_b32 v52, v52, v53")
    g("v_or_b32 v54, v54, v55")
    g(f"v_cmp_ne_u32 s[66:67], v{vTag}, v52")
    g(f"v_cmp_ne_u32 s[68:69], v{vTag}, v54")
    for i in range(4):
        g(f"v_add_f32 v{64+i}, v{56+i}, v{60+i}")
    g("s_or_b64 vcc, s[66:67], s[68:69]")
    g("s_cbranch_scc0 L_rok")
    if RSLEEP: g(f"s_sleep {RSLEEP}")
    g("s_sub_u32 s70, s70, 1")
    if FAST:
        if FINV: g(f"buffer_inv {FINV}")
        g(f"s_and_b32 s58, s70, {FAST - 1}")
        g("s_cbranch_scc1 L_pollr")
    g("s_cmp_lg_u32 s70, 0")
    g("s_cbranch_scc1 L_pollr2")
    g.label("L_rok")
    g.stamp(9)
    g("v_permlane32_swap_b32 v64, v66")
    g("v_permlane32_swap_b32 v65, v67")
    g("v_lshrrev_b32 v53, 3, v0")
    g("v_add_f32 v64, v64, v66")
    g("v_add_f32 v65, v65, v67")
    g("v_and_or_b32 v50, v53, 4, v50")
    g("v_cvt_pk_bf16_f32 v52, v64, v65")
    g("ds_write_b32 v50, v52")
    g("s_waitcnt lgkmcnt(0)")
    g.c("barrier 3")
    g("s_barrier")
    g.stamp(10)
    g(f"s_cmp_ge_u32 s{sWAVE}, 4")
    g("s_cbranch_scc1 L_fin")
    for kb in range(4):
        if WOE:
            g(f"ds_read_b64_tr_b16 {vr(32+4*kb,2)}, v9 offset:{kb*4096}")
            g(f"ds_read_b64_tr_b16 {vr(34+4*kb,2)}, v9 offset:{kb*4096+512}")
        g(f"ds_read_b128 {vr(48+4*kb,4)}, v81 offset:{kb*64}")
    for kb in range(4):
        g(f"s_waitcnt lgkmcnt({(3-kb)*(3 if WOE else 1)})")
        g(f"v_mfma_f32_16x16x32_bf16 v[84:87], {vr(32+4*kb,4)}, {vr(48+4*kb,4)}, v[84:87]")
    g("s_mov_b64 exec, s[98:99]")
    g("s_nop 7")
    g("s_nop 2")
    for i in range(4):
        tagit(64+i, 84+i, i)
    g(f"buffer_store_dwordx4 v[64:67], v82, s[{sWSs}:{sWSs+3}], s49 offen sc1")
    g("s_mov_b64 exec, -1")
    g.stamp(11)
    g(f"s_cmp_lg_u32 s{sHW}, 0")
    g("s_cbranch_scc1 L_fin")
    g.srd(sA, P_OUT, 8192)
    g(f"s_lshl2_add_u32 s{sU2}, s{sX}, s{sSPLIT}")
    g(f"s_lshl_b32 s{sU2}, s{sU2}, 15")
    g(f"s_add_u32 s{sU2}, s{sU2}, {WS_PAB}")
    g("s_mov_b32 s70, 0x40000")
    g(f"s_lshl_b32 s{sU}, s{sB}, 10")
    g(f"s_lshl_b32 s20, s{sX}, 7")
    g(f"s_add_u32 s{sU}, s{sU}, s20")
    g(f"s_lshl_b32 s20, s{sSPLIT}, 5")
    g(f"s_add_u32 s{sU}, s{sU}, s20")
    g("v_cmp_eq_u32 vcc, 0, v90")
    g("v_lshrrev_b32 v124, 5, v0")
    g("v_bfe_u32 v125, v0, 4, 1")
    g("v_cndmask_b32 v123, v11, v10, vcc")
    g("v_lshl_add_u32 v124, v125, 1, v124")
    g("v_lshl_add_u32 v124, v7, 2, v124")
    g("v_lshlrev_b32 v124, 1, v124")
    if FT:
        TL = ((PFREE - 1)*PACE1 + POFF0 + (12 - PFREE)*PACE1 + POFFB + POFF + (20 + 2*UL)*PACE + POFFV + (32 - 2*UL)*PACEV) // 16 + TMO + FT
        g(f"s_sleep {FMIN}")
        g.label("L_ft")
        g("s_memrealtime s[90:91]")
        g("s_waitcnt lgkmcnt(0)")
        g("s_sub_u32 s90, s90, s71")
        g(f"s_cmp_lt_u32 s90, {TL}")
        g("s_cbranch_scc1 L_ft")
    elif ADELAY > 1:
        g(f"s_sleep {ADELAY - 1}")
    g.label("L_pollia")
    for i in range(4):
        g(f"s_mov_b64 exec, s[{40+2*i}:{41+2*i}]")
        g(f"buffer_load_dwordx4 {vr(96+4*i,4)}, v{112+i}, s[{sWSs}:{sWSs+3}], s{sU2} offen sc1")
    g("s_mov_b64 exec, -1")
    g("s_waitcnt vmcnt(0)")
    for i in range(4):
        tagchk(24, 96+4*i, i == 0, 25, 26)
    g("v_cmp_ne_u32 vcc, 0, v24")
    g("s_cbranch_vccz L_ioka")
    g(f"s_sleep {ASLEEP}")
    g("s_sub_u32 s70, s70, 1")
    g("s_cmp_lg_u32 s70, 0")
    g("s_cbranch_scc1 L_pollia")
    g.label("L_ioka")
    g.stamp(13)
    for i in range(4):
        g(f"v_add_f32 v{16+i}, v{96+i}, v{100+i}")
        g(f"v_add_f32 v{20+i}, v{104+i}, v{108+i}")
    for i in range(4):
        g(f"v_add_f32 v{16+i}, v{16+i}, v{20+i}")
    g("s_nop 0")
    g("v_permlane32_swap_b32 v16, v17")
    g("v_permlane32_swap_b32 v18, v19")
    g("v_add_f32 v16, v16, v17")
    g("v_add_f32 v18, v18, v19")
    g("s_nop 1")
    g("v_permlane16_swap_b32 v16, v18")
    g("v_add_f32 v16, v16, v18")
    g("s_nop 1")
    g("v_add_f32_dpp v17, v16, v16 row_ror:8 row_mask:0xf bank_mask:0xf")
    g("v_cvt_pk_bf16_f32 v17, v17, v17")
    g("v_and_b32 v17, 0xffff0000, v17")
    g("v_mul_f32 v17, v123, v17")
    g("v_cvt_pk_bf16_f32 v17, v17, v17")
    g("v_and_b32 v17, 0xffff0000, v17")
    g("s_nop 1")
    g("v_add_f32_dpp v16, v17, v17 row_ror:4 row_mask:0xf bank_mask:0xf")
    g("v_cvt_pk_bf16_f32 v16, v16, v16")
    g("s_mov_b32 exec_lo, 0x000f000f")
    g("s_mov_b32 exec_hi, 0x000f000f")
    g(f"buffer_store_short v16, v124, s[{sA}:{sA+3}], s{sU} offen")
    g("v_mov_b32 v8, 0")
    g("s_cmp_lg_u32 s2, 0")
    g("s_cbranch_scc1 L_noep")
    g("s_mov_b64 exec, 1")
    g(f"buffer_store_dword v{vTag}, v8, s[{sWSs}:{sWSs+3}], 0 offen offset:{WS_EPOCH} sc1")
    g.label("L_noep")
    if dbg:
        g("s_waitcnt vmcnt(0)")
    g.stamp(12)
    g.label("L_fin")
    g.stamp_out(sWSs)
    g.label("L_end")
    g("s_endpgm")
    g.o.append('.section .rodata,"a"')
    g.o.append(".p2align 6")
    g.o.append(f".amdhsa_kernel {KN}")
    for l in ("next_free_vgpr 256", "next_free_sgpr 100", "accum_offset 128", "group_segment_fixed_size 0",
              "kernarg_size 104", "user_sgpr_count 2", "user_sgpr_kernarg_segment_ptr 1",
              "system_sgpr_workgroup_id_x 1"):
        g.o.append("  .amdhsa_" + l)
    g.o.append(".end_amdhsa_kernel")
    return "\n".join(g.o) + "\n"


if __name__ == "__main__":
    out = sys.argv[1] if len(sys.argv) > 1 else "k16.s"
    open(out, "w").write(gen(dbg=int(sys.argv[2]) if len(sys.argv) > 2 else 0))
```
